```python
import torch

def _softmax(x, axis=-1):
    return torch.softmax(x, dim=axis)
def _gelu(x):
    return torch.nn.functional.gelu(x, approximate="tanh")
def _silu(x):
    return torch.nn.functional.silu(x)
def _sigmoid(x):
    return torch.sigmoid(x)
def _layernorm(x, axis=-1, eps=1e-5):
    m = x.mean(dim=axis, keepdim=True)
    v = x.var(dim=axis, keepdim=True, unbiased=False)
    return (x - m) / torch.sqrt(v + eps)
def _scatter_add(tgt, idx, src, axis=0):
    return tgt.clone().index_add_(axis, idx, src)
def _segment_sum(src, seg, n):
    out = torch.zeros((n,) + src.shape[1:], dtype=src.dtype)
    return out.index_add_(0, seg, src)
def _pad(x, pw):
    flat = tuple(v for pair in reversed(pw) for v in pair)
    return torch.nn.functional.pad(x, flat)

kernel_name = 'recurrent_scan__spectral_fnet__dense_activation_squared_relu__prompt'

def setup_inputs():

    _w = (lambda a: (lambda t: t.to(torch.bfloat16) if t.is_floating_point() else t)(torch.as_tensor(a)))
    def _A_setup():
        B, S, D = 1, 2048, 512
        ns = torch.arange(S)[:, None] * torch.arange(S)[None, :]
        nd = torch.arange(D)[:, None] * torch.arange(D)[None, :]
        Ws_re = torch.cos(-2.0 * torch.pi * ns / S).to(float)
        Ws_im = torch.sin(-2.0 * torch.pi * ns / S).to(float)
        Wd_re = torch.cos(-2.0 * torch.pi * nd / D).to(float)
        Wd_im = torch.sin(-2.0 * torch.pi * nd / D).to(float)
        return {
            "x": _w((lambda *s: torch.randn(*s, dtype=torch.bfloat16) * 0.05)(B, S, D)),
            "dft_seq_re": _w(Ws_re),
            "dft_seq_im": _w(Ws_im),
            "dft_hid_re": _w(Wd_re),
            "dft_hid_im": _w(Wd_im),
        }
    _A_in = _A_setup()

    def _B_setup():
        B, S, D, F = 1, 2048, 512, 1792
        return {
            "x": _w((lambda *s: torch.randn(*s, dtype=torch.bfloat16) * 0.05)(B, S, D)),
            "w1": _w((lambda *s: torch.randn(*s, dtype=torch.bfloat16) * 0.05)(D, F)),
            "b1": _w((lambda *s: torch.randn(*s, dtype=torch.bfloat16) * 0.4)(F)),
            "w2": _w((lambda *s: torch.randn(*s, dtype=torch.bfloat16) * 0.05)(F, D)),
            "b2": _w((lambda *s: torch.randn(*s, dtype=torch.bfloat16) * 0.8)(D)),
        }
    _B_in = _B_setup()

    return {
        "A_x": _A_in["x"],
        "A_dft_seq_re": _A_in["dft_seq_re"],
        "A_dft_seq_im": _A_in["dft_seq_im"],
        "A_dft_hid_re": _A_in["dft_hid_re"],
        "A_dft_hid_im": _A_in["dft_hid_im"],
        "B_x": _B_in["x"],
        "B_w1": _B_in["w1"],
        "B_b1": _B_in["b1"],
        "B_w2": _B_in["w2"],
        "B_b2": _B_in["b2"],
    }

def reference(A_x, A_dft_seq_re, A_dft_seq_im, A_dft_hid_re, A_dft_hid_im, B_x, B_w1, B_b1, B_w2, B_b2):
    def _A_ref(x, dft_seq_re, dft_seq_im, dft_hid_re, dft_hid_im):
        a = torch.einsum("bsd,ed->bse", x, dft_hid_re)
        b = torch.einsum("bsd,ed->bse", x, dft_hid_im)
        y = torch.einsum("ts,bse->bte", dft_seq_re, a) - torch.einsum("ts,bse->bte", dft_seq_im, b)
        return y

    def _B_ref(x, w1, b1, w2, b2):
        h = torch.einsum("bsd,df->bsf", x, w1) + b1
        zero = torch.zeros_like(h)
        r = torch.where(h > zero, h, zero)
        h = r * r
        out = torch.einsum("bsf,fd->bsd", h, w2) + b2
        return out

    x = A_x
    xn = _layernorm(x, axis=-1)
    s = _A_ref(xn, A_dft_seq_re, A_dft_seq_im, A_dft_hid_re, A_dft_hid_im)
    g = _silu(_B_ref(xn, B_w1, B_b1, B_w2, B_b2))
    return x + s * g
```

```python
import sys
NAME = "recurrent_scan__spectral_fnet__dense_activation_squared_relu__prompt"
L = []
def e(s): L.append("    " + s)
def lab(s): L.append(s + ":")
def cm(s): L.append("    ; " + s)
def nop(n):
    while n > 0:
        k = min(n, 16); e(f"s_nop {k-1}"); n -= k
def vr(b, n): return f"v[{b}:{b+n-1}]" if n > 1 else f"v{b}"
def ar(b, n): return f"a[{b}:{b+n-1}]" if n > 1 else f"a{b}"
def sr(b, n): return f"s[{b}:{b+n-1}]" if n > 1 else f"s{b}"

WS_H2 = 0
WS_W2T = 0x700000
WS_AT = 0x900000
AT_STRIDE = 0x48000
WS_X512 = 0xA20000
WS_SIZE = 0xB00000

def load_ptrs():
    e("s_load_dwordx16 s[4:19], s[0:1], 0")
    e("s_load_dwordx8 s[20:27], s[0:1], 64")
    e("s_load_dwordx2 s[28:29], s[0:1], 96")
def srd(d, p, nbytes):
    e(f"s_mov_b32 s{d}, s{p}")
    e(f"s_and_b32 s{d+1}, s{p+1}, 0xffff")
    e(f"s_mov_b32 s{d+2}, {nbytes:#x}")
    e(f"s_mov_b32 s{d+3}, 0x00020000")

K1_W = 0
K1_TR = 147456
K1_Z = 155648
K1_LDS = 157696

def gen_k1():
    lab("k1_kernel")
    e("s_cmp_ge_u32 s2, 256")
    e("s_cbranch_scc1 K1_END")
    load_ptrs()
    e("s_and_b32 s30, s2, 7")
    e("s_lshr_b32 s31, s2, 3")
    e("s_and_b32 s52, s30, 1")
    e("s_lshl_b32 s52, s52, 3")
    e("s_and_b32 s55, s31, 7")
    e("s_add_u32 s52, s52, s55")
    e("s_lshr_b32 s53, s30, 1")
    e("s_lshl_b32 s53, s53, 2")
    e("s_lshr_b32 s55, s31, 3")
    e("s_add_u32 s53, s53, s55")
    V_LANE, V_I, V_G = 1, 2, 3
    V_ROW0, V_ROW1 = 4, 5
    V_XO0, V_XO1 = 6, 7
    V_TB = 8
    V_ST = 12
    V_ONES = 16
    V_PATCH = 20
    V_RING = 24
    V_T = 40
    V_ACC = 56
    V_X = 128
    A_CS = 0
    A_B1 = 36
    e("v_lshrrev_b32 v1, 6, v0")
    e("v_and_b32 v2, 15, v0")
    e("v_readfirstlane_b32 s54, v1")
    e(f"v_and_b32 v{V_LANE}, 63, v0")
    e(f"v_lshrrev_b32 v{V_G}, 4, v{V_LANE}")
    e("s_waitcnt lgkmcnt(0)")
    srd(32, 4, 2048*512*2)
    srd(36, 28, WS_SIZE)
    srd(40, 18, 1792*2)
    srd(44, 10, 512*512*2)
    srd(48, 20, 1792*512*2)
    t = V_T
    e("s_lshl_b32 s55, s52, 5")
    e("s_lshl_b32 s56, s54, 3")
    e("s_add_u32 s55, s55, s56")
    e(f"v_lshrrev_b32 v{t}, 2, v{V_I}")
    e(f"v_lshlrev_b32 v{t}, 1, v{t}")
    e(f"v_add_u32 v{t}, s55, v{t}")
    e(f"v_and_b32 v{t+1}, 3, v{V_I}")
    e(f"v_add_u32 v{t+2}, 1, v{t+1}")
    e(f"v_and_b32 v{t+2}, 2, v{t+2}")
    e(f"v_mov_b32 v{t+3}, 0x400")
    e(f"v_cmp_eq_u32 vcc, 0, v{t+1}")
    nop(2)
    e(f"v_cndmask_b32 v{t+3}, v{t+3}, 0, vcc")
    e(f"v_mov_b32 v{t+4}, 0x800")
    e(f"v_cmp_eq_u32 vcc, 1, v{t+1}")
    nop(2)
    e(f"v_cndmask_b32 v{t+3}, v{t+3}, v{t+4}, vcc")
    e(f"v_and_b32 v{t+4}, 1, v{t+1}")
    e(f"v_lshlrev_b32 v{t+4}, 10, v{t+4}")
    e(f"v_lshrrev_b32 v{t+5}, 1, v{t+1}")
    e(f"v_lshl_add_u32 v{t+4}, v{t+5}, 9, v{t+4}")
    for T, vrow in ((0, V_ROW0), (1, V_ROW1)):
        if T == 1: e(f"v_add_u32 v{t}, 1, v{t}")
        e(f"v_add_u32 v{t+5}, v{t+3}, v{t}")
        e(f"v_sub_u32 v{t+6}, v{t+3}, v{t}")
        e(f"v_cmp_ne_u32 vcc, 0, v{t+2}")
        nop(2)
        e(f"v_cndmask_b32 v{vrow}, v{t+5}, v{t+6}, vcc")
        if T == 0:
            e(f"v_cmp_eq_u32 vcc, 0, v{t}")
            nop(2)
            e(f"v_cndmask_b32 v{vrow}, v{vrow}, v{t+4}, vcc")
    e(f"v_lshlrev_b32 v{t}, 4, v{V_G}")
    e(f"v_lshl_add_u32 v{V_XO0}, v{V_ROW0}, 10, v{t}")
    e(f"v_lshl_add_u32 v{V_XO1}, v{V_ROW1}, 10, v{t}")
    for i in range(4):
        e(f"s_add_u32 s{56+i}, s54, {i}")
        e(f"s_and_b32 s{56+i}, s{56+i}, 3")
    e("s_cmp_lg_u32 s53, 14")
    e("s_cbranch_scc1 K1_NOPATCHLD")
    e("s_lshl_b32 s60, s54, 6")
    e(f"v_lshlrev_b32 v{t}, 1, v{V_LANE}")
    e(f"v_add_u32 v{t}, {256*1024:#x}, v{t}")
    for r in range(4):
        e(f"buffer_load_ushort v{V_PATCH+r}, v{t}, s[44:47], s60 offen offset:{r*256}")
    lab("K1_NOPATCHLD")
    e("s_cmp_ge_u32 s2, 224")
    e("s_cbranch_scc1 K1_NOTRLD")
    e("s_lshr_b32 s60, s2, 3")
    e("s_and_b32 s61, s2, 7")
    e("s_lshl_b32 s62, s60, 6")
    e("s_lshl_b32 s63, s54, 4")
    e("s_add_u32 s62, s62, s63")
    e("s_lshl_b32 s62, s62, 10")
    e("s_lshl_b32 s63, s61, 7")
    e("s_add_u32 s62, s62, s63")
    e(f"v_lshrrev_b32 v{t}, 3, v{V_LANE}")
    e(f"v_and_b32 v{t+1}, 7, v{V_LANE}")
    e(f"v_lshlrev_b32 v{t+1}, 4, v{t+1}")
    e(f"v_lshl_add_u32 v{t}, v{t}, 10, v{t+1}")
    e("s_lshl_b32 s63, s54, 11")
    e(f"s_add_u32 s63, s63, {K1_TR}")
    e("s_mov_b32 m0, s63")
    e("s_add_u32 s64, s62, 8192")
    e(f"buffer_load_dwordx4 v{t}, s[48:51], s62 offen lds")
    e("s_add_u32 s63, s63, 1024")
    e("s_mov_b32 m0, s63")
    e("s_nop 0")
    e(f"buffer_load_dwordx4 v{t}, s[48:51], s64 offen lds")
    lab("K1_NOTRLD")
    e("s_mul_i32 s60, s53, 288")
    e(f"v_lshlrev_b32 v{t}, 3, v{V_G}")
    for j in range(9):
        e(f"buffer_load_dwordx2 {ar(A_B1+2*j,2)}, v{t}, s[40:43], s60 offen offset:{32*j}")
    def xreg(r, i, T): return V_X + ((r*4+i)*2+T)*4
    for i in range(4): e(f"s_lshl_b32 s{72+i}, s{56+i}, 6")
    def xloads(r):
        for i in range(4):
            for T in range(2):
                e(f"buffer_load_dwordx4 {vr(xreg(r,i,T),4)}, v{V_XO0+T}, s[32:35], s{72+i} offen offset:{r*256}")
    xloads(0)
    e("s_add_u32 s64, s16, s60")
    e("s_addc_u32 s65, s17, 0")
    e("s_mov_b32 s66, 3584")
    e("s_mov_b32 s67, 18")
    e("s_mov_b64 s[68:69], s[64:65]")
    e("s_mov_b32 s70, 1024")
    e("s_cmp_lt_u32 s53, 12")
    e("s_cbranch_scc1 K1_SRC_DONE")
    e("s_cmp_lg_u32 s53, 12")
    e("s_cbranch_scc1 K1_SRC13")
    e("s_mov_b32 s67, 8")
    e("s_sub_u32 s68, s10, 128")
    e("s_subb_u32 s69, s11, 0")
    e("s_branch K1_SRC_DONE")
    lab("K1_SRC13")
    e("s_mov_b32 s66, 1024")
    e("s_cmp_lg_u32 s53, 13")
    e("s_cbranch_scc1 K1_SRC14")
    e("s_add_u32 s64, s10, 160")
    e("s_addc_u32 s65, s11, 0")
    e("s_branch K1_SRC_DONE")
    lab("K1_SRC14")
    e("s_cmp_lg_u32 s53, 14")
    e("s_cbranch_scc1 K1_SRC15")
    e("s_add_u32 s64, s10, 448")
    e("s_addc_u32 s65, s11, 0")
    e("s_mov_b32 s67, 4")
    e("s_sub_u32 s68, s12, 64")
    e("s_subb_u32 s69, s13, 0")
    e("s_branch K1_SRC_DONE")
    lab("K1_SRC15")
    e("s_add_u32 s64, s12, 224")
    e("s_addc_u32 s65, s13, 0")
    lab("K1_SRC_DONE")
    DA = V_ACC; DI = V_ACC + 20
    e("s_lshl_b32 s71, s54, 5")
    e("s_mul_i32 s61, s54, 9216")
    e("s_mov_b32 s62, 3641")
    e(f"v_mov_b32 v{t+8}, s64")
    e(f"v_mov_b32 v{t+9}, s65")
    e(f"v_mov_b32 v{t+10}, s68")
    e(f"v_mov_b32 v{t+11}, s69")
    e(f"v_mov_b32 v{t+12}, s66")
    e(f"v_mov_b32 v{t+13}, s70")
    e(f"v_mov_b32 v{t+7}, 0")
    for i in range(9):
        e(f"v_add_u32 v{t}, {64*i}, v{V_LANE}")
        e(f"v_mul_u32_u24 v{t+1}, s62, v{t}")
        e(f"v_lshrrev_b32 v{t+1}, 16, v{t+1}")
        e(f"v_mul_u32_u24 v{t+2}, 18, v{t+1}")
        e(f"v_sub_u32 v{t+2}, v{t}, v{t+2}")
        e(f"v_and_b32 v{t+3}, 19, v{t+1}")
        e(f"v_and_b32 v{t+4}, 4, v{t+1}")
        e(f"v_lshl_add_u32 v{t+3}, v{t+4}, 1, v{t+3}")
        e(f"v_and_b32 v{t+4}, 8, v{t+1}")
        e(f"v_lshrrev_b32 v{t+4}, 1, v{t+4}")
        e(f"v_add3_u32 v{t+3}, v{t+3}, v{t+4}, s71")
        e(f"v_cmp_gt_u32 vcc, s67, v{t+2}")
        e(f"v_lshlrev_b32 v{t+2}, 4, v{t+2}")
        e("s_nop 0")
        e(f"v_cndmask_b32 v{t+4}, v{t+13}, v{t+12}, vcc")
        e(f"v_cndmask_b32 v{DA+2*i}, v{t+10}, v{t+8}, vcc")
        e(f"v_cndmask_b32 v{DA+2*i+1}, v{t+11}, v{t+9}, vcc")
        e(f"v_mad_u32_u24 v{t+6}, v{t+3}, v{t+4}, v{t+2}")
        e(f"v_lshlrev_b32 v{DI+2*i}, 7, v{t+4}")
        e(f"v_mov_b32 v{DI+2*i+1}, 0")
        e(f"v_lshl_add_u64 {vr(DA+2*i,2)}, {vr(t+6,2)}, 0, {vr(DA+2*i,2)}")
        e(f"s_add_u32 s63, s61, {i*1024}")
        e("s_mov_b32 m0, s63")
        e("s_nop 0")
        e(f"global_load_lds_dwordx4 {vr(DA+2*i,2)}, off")
    for r in range(1, 4):
        xloads(r)
        for i in range(9):
            e(f"v_lshl_add_u64 {vr(DA+2*i,2)}, {vr(DI+2*i,2)}, 0, {vr(DA+2*i,2)}")
            e(f"s_add_u32 s63, s61, {r*36864 + i*1024}")
            e("s_mov_b32 m0, s63")
            e("s_nop 0")
            e(f"global_load_lds_dwordx4 {vr(DA+2*i,2)}, off")
    for k in range(4):
        e(f"v_mov_b32 v{V_ONES+k}, 0x3f803f80")
        e(f"v_mov_b32 v{V_ST+k}, 0")
    e(f"v_lshlrev_b32 v{t}, 3, v0")
    e(f"v_mov_b32 v{t+2}, 0")
    e(f"v_mov_b32 v{t+3}, 0")
    e(f"ds_write_b64 v{t}, {vr(t+2,2)} offset:{K1_Z - 131072}" if False else f"v_add_u32 v{t}, {K1_Z}, v{t}")
    e(f"ds_write_b64 v{t}, {vr(t+2,2)}")
    e(f"v_lshrrev_b32 v{t}, 2, v{V_I}")
    e(f"v_and_b32 v{t+1}, 1, v{V_G}")
    e(f"v_lshl_add_u32 v{t}, v{t+1}, 2, v{t}")
    e(f"v_lshrrev_b32 v{t+1}, 1, v{V_G}")
    e(f"v_lshl_add_u32 v{t}, v{t+1}, 4, v{t}")
    e(f"v_mul_u32_u24 v{t}, 0x120, v{t}")
    e(f"v_and_b32 v{t+1}, 3, v{V_I}")
    e(f"v_lshl_add_u32 v{t}, v{t+1}, 3, v{t}")
    for i in range(4):
        e(f"s_mul_i32 s63, s{56+i}, 9216")
        e(f"v_add_u32 v{V_TB+i}, s63, v{t}")
    V_PA = V_T + 15
    e(f"v_and_b32 v{t}, 19, v{V_LANE}")
    e(f"v_and_b32 v{t+1}, 4, v{V_LANE}")
    e(f"v_lshl_add_u32 v{t}, v{t+1}, 1, v{t}")
    e(f"v_and_b32 v{t+1}, 8, v{V_LANE}")
    e(f"v_lshrrev_b32 v{t+1}, 1, v{t+1}")
    e(f"v_add_u32 v{t}, v{t}, v{t+1}")
    e(f"v_mul_u32_u24 v{t}, 0x120, v{t}")
    e(f"v_add3_u32 v{V_PA}, v{t}, s61, 64")
    e("s_cmp_lt_u32 s53, 12")
    e("s_cbranch_scc1 K1_VAR_F")
    e("s_cmp_eq_u32 s53, 12")
    e("s_cbranch_scc1 K1_VAR_M")
    e("s_branch K1_VAR_D")

    def acc(j, T): return V_ACC + (j*2+T)*4
    def variant(tag, nffn):
        lab(f"K1_VAR_{tag}")
        for r in range(4):
            e(f"s_waitcnt vmcnt({9 + 17*(3-r)})")
            for i in range(4):
                for T in range(2):
                    for d in range(4):
                        x = xreg(r, i, T) + d
                        e(f"v_dot2_f32_bf16 v{V_ST+2*T}, v{x}, v{V_ONES}, v{V_ST+2*T}")
                        e(f"v_dot2_f32_bf16 v{V_ST+2*T+1}, v{x}, v{x}, v{V_ST+2*T+1}")
            e(f"s_waitcnt vmcnt({17*(3-r)})")
            if tag == "D":
                e("s_cmp_lg_u32 s53, 14")
                e(f"s_cbranch_scc1 K1_NOP_{r}")
                e("s_mov_b32 exec_hi, 0")
                if r < 2:
                    e(f"ds_write_b16 v{V_PA}, v{V_PATCH+r} offset:{r*36864}")
                else:
                    if r == 2: e(f"v_add_u32 v{V_PA}, 73728, v{V_PA}")
                    e(f"ds_write_b16 v{V_PA}, v{V_PATCH+r} offset:{(r-2)*36864}")
                e("s_mov_b32 exec_hi, -1")
                lab(f"K1_NOP_{r}")
            e("s_waitcnt lgkmcnt(0)")
            e("s_barrier")
            if r == 2:
                for i in range(4): e(f"v_add_u32 v{V_TB+i}, 73728, v{V_TB+i}")
            items = [(i, j) for i in range(4) for j in range(9)]
            PF = 3
            def rd(n):
                i, j = items[n]; slot = V_RING + (n % 4)*4
                off = (r % 2)*36864 + 32*j
                e(f"ds_read_b64_tr_b16 {vr(slot,2)}, v{V_TB+i} offset:{off}")
                e(f"ds_read_b64_tr_b16 {vr(slot+2,2)}, v{V_TB+i} offset:{off+2304}")
            for n in range(PF): rd(n)
            for n, (i, j) in enumerate(items):
                if n + PF < len(items):
                    rd(n + PF); e(f"s_waitcnt lgkmcnt({2*PF})")
                else:
                    e(f"s_waitcnt lgkmcnt({2*(len(items)-1-n)})")
                slot = V_RING + (n % 4)*4
                first = (r == 0 and i == 0)
                for T in range(2):
                    a_ = acc(j, T); c_ = "0" if first else vr(a_, 4)
                    if j < nffn:
                        e(f"v_mfma_f32_16x16x32_bf16 {vr(a_,4)}, {vr(slot,4)}, {vr(xreg(r,i,T),4)}, {c_}")
                    else:
                        e(f"v_mfma_f32_16x16x32_bf16 {vr(a_,4)}, {vr(xreg(r,i,T),4)}, {vr(slot,4)}, {c_}")
                if i == 0:
                    c_ = "0" if r == 0 else ar(A_CS+4*j, 4)
                    e(f"v_mfma_f32_16x16x32_bf16 {ar(A_CS+4*j,4)}, {vr(V_ONES,4)}, {vr(slot,4)}, {c_}")
        e("s_lshl_b32 s63, s54, 7")
        e(f"v_lshlrev_b32 v{t}, 2, v{V_I}")
        e(f"v_add3_u32 v{t+1}, v{t}, s63, 0")
        e(f"v_add_u32 v{t+1}, {K1_Z}, v{t+1}")
        e(f"ds_add_f32 v{t+1}, v{V_ST} offset:1024")
        e(f"ds_add_f32 v{t+1}, v{V_ST+1} offset:1536")
        e(f"ds_add_f32 v{t+1}, v{V_ST+2} offset:{1024+64}")
        e(f"ds_add_f32 v{t+1}, v{V_ST+3} offset:{1536+64}")
        e(f"v_add_u32 v{t}, {K1_Z}, v{t}")
        for j in range(9): e(f"v_accvgpr_read_b32 v{V_RING+j}, a{A_CS+4*j}")
        e("s_mov_b64 exec, 0xffff")
        for j in range(9): e(f"ds_add_f32 v{t}, v{V_RING+j} offset:{64*j}")
        e("s_mov_b64 exec, -1")
        e("s_waitcnt lgkmcnt(0)")
        e("s_barrier")
        e("s_cmp_ge_u32 s2, 224")
        e(f"s_cbranch_scc1 K1_NOTR_{tag}")
        e(f"v_lshrrev_b32 v{t+2}, 2, v{V_I}")
        e(f"v_lshl_add_u32 v{t+2}, v{V_G}, 3, v{t+2}")
        e(f"v_lshlrev_b32 v{t+2}, 7, v{t+2}")
        e(f"v_and_b32 v{t+3}, 3, v{V_I}")
        e(f"v_lshl_add_u32 v{t+2}, v{t+3}, 3, v{t+2}")
        e("s_lshl_b32 s63, s54, 5")
        e(f"s_add_u32 s63, s63, {K1_TR}")
        e(f"v_add_u32 v{t+2}, s63, v{t+2}")
        e(f"ds_read_b64_tr_b16 {vr(V_RING,2)}, v{t+2}")
        e(f"ds_read_b64_tr_b16 {vr(V_RING+2,2)}, v{t+2} offset:512")
        e(f"ds_read_b64_tr_b16 {vr(V_RING+4,2)}, v{t+2} offset:4096")
        e(f"ds_read_b64_tr_b16 {vr(V_RING+6,2)}, v{t+2} offset:4608")
        e("s_lshr_b32 s60, s2, 3")
        e("s_and_b32 s61, s2, 7")
        e("s_lshl_b32 s61, s61, 6")
        e("s_lshl_b32 s63, s54, 4")
        e("s_add_u32 s61, s61, s63")
        e("s_mul_i32 s61, s61, 3584")
        e("s_lshl_b32 s60, s60, 7")
        e("s_add_u32 s61, s61, s60")
        e(f"s_add_u32 s61, s61, {WS_W2T:#x}")
        e(f"v_mul_u32_u24 v{t+3}, 0xe00, v{V_I}")
        e(f"v_lshl_add_u32 v{t+3}, v{V_G}, 4, v{t+3}")
        e("s_waitcnt lgkmcnt(0)")
        e(f"buffer_store_dwordx4 {vr(V_RING,4)}, v{t+3}, s[36:39], s61 offen")
        e(f"buffer_store_dwordx4 {vr(V_RING+4,4)}, v{t+3}, s[36:39], s61 offen offset:64")
        lab(f"K1_NOTR_{tag}")
        def ln(vS, vQ, tmp):
            e(f"v_mul_f32 v{vS}, 0x3b000000, v{vS}")
            e(f"v_mul_f32 v{vQ}, 0x3b000000, v{vQ}")
            e(f"v_fma_f32 v{vQ}, -v{vS}, v{vS}, v{vQ}")
            e(f"v_max_f32 v{vQ}, 0, v{vQ}")
            e(f"v_cvt_pk_bf16_f32 v{tmp}, v{vS}, v{vQ}")
            e(f"v_lshlrev_b32 v{vS}, 16, v{tmp}")
            e(f"v_and_b32 v{vQ}, 0xffff0000, v{tmp}")
            e(f"v_add_f32 v{vQ}, 0x3727c5ac, v{vQ}")
            e(f"v_cvt_pk_bf16_f32 v{tmp}, v{vQ}, v{vQ}")
            e(f"v_lshlrev_b32 v{vQ}, 16, v{tmp}")
            e(f"v_sqrt_f32 v{vQ}, v{vQ}")
            e("s_nop 0")
            e(f"v_cvt_pk_bf16_f32 v{tmp}, v{vQ}, v{vQ}")
            e(f"v_lshlrev_b32 v{vQ}, 16, v{tmp}")
            e(f"v_rcp_f32 v{vQ}, v{vQ}")
            e("s_nop 0")
        XF = V_X
        if nffn > 0:
            e(f"ds_read_b32 v{XF}, v{t+1} offset:1024")
            e(f"ds_read_b32 v{XF+1}, v{t+1} offset:1536")
            e(f"ds_read_b32 v{XF+2}, v{t+1} offset:{1024+64}")
            e(f"ds_read_b32 v{XF+3}, v{t+1} offset:{1536+64}")
            e(f"v_lshlrev_b32 v{t+4}, 4, v{V_G}")
            e(f"v_add_u32 v{t+4}, {K1_Z}, v{t+4}")
            for j in range(nffn):
                e(f"ds_read_b128 {vr(XF+8+4*j,4)}, v{t+4} offset:{64*j}")
            e("s_waitcnt lgkmcnt(0)")
            ln(XF, XF+1, XF+4); ln(XF+2, XF+3, XF+4)
            e(f"v_mul_f32 v{XF}, v{XF}, v{XF+1}")
            e(f"v_mul_f32 v{XF+2}, v{XF+2}, v{XF+3}")
            e(f"v_mul_u32_u24 v{t+5}, 0xe00, v{V_ROW0}")
            e(f"v_lshl_add_u32 v{t+5}, v{V_G}, 3, v{t+5}")
            e(f"v_mul_u32_u24 v{t+6}, 0xe00, v{V_ROW1}")
            e(f"v_lshl_add_u32 v{t+6}, v{V_G}, 3, v{t+6}")
            e("s_mul_i32 s60, s53, 288")
            B = XF + 48
            for j in range(nffn):
                e(f"v_accvgpr_read_b32 v{B+4}, a{A_B1+2*j}")
                e(f"v_accvgpr_read_b32 v{B+5}, a{A_B1+2*j+1}")
                e(f"v_lshlrev_b32 v{B}, 16, v{B+4}")
                e(f"v_and_b32 v{B+1}, 0xffff0000, v{B+4}")
                e(f"v_lshlrev_b32 v{B+2}, 16, v{B+5}")
                e(f"v_and_b32 v{B+3}, 0xffff0000, v{B+5}")
                for T in range(2):
                    a_ = acc(j, T); o = B + 8 + (j*2+T) % 4 * 8
                    for k in range(4):
                        e(f"v_fma_f32 v{o+k}, -v{XF+2*T}, v{XF+8+4*j+k}, v{B+k}")
                    for k in range(4):
                        e(f"v_fma_f32 v{o+k}, v{XF+2*T+1}, v{a_+k}, v{o+k}")
                    for k in range(4):
                        e(f"v_max_f32 v{o+k}, 0, v{o+k}")
                    for k in range(4):
                        e(f"v_mul_f32 v{o+k}, v{o+k}, v{o+k}")
                    e(f"v_cvt_pk_bf16_f32 v{o+4}, v{o}, v{o+1}")
                    e(f"v_cvt_pk_bf16_f32 v{o+5}, v{o+2}, v{o+3}")
                    e(f"buffer_store_dwordx2 {vr(o+4,2)}, v{t+5+T}, s[36:39], s60 offen offset:{32*j}")
        if nffn < 9:
            S = XF + 64
            e("s_lshl_b32 s63, s54, 7")
            e(f"v_lshlrev_b32 v{t+4}, 4, v{V_G}")
            e(f"v_add3_u32 v{t+4}, v{t+4}, s63, 0")
            e(f"v_add_u32 v{t+4}, {K1_Z}, v{t+4}")
            e(f"ds_read_b128 {vr(S,4)}, v{t+4} offset:1024")
            e(f"ds_read_b128 {vr(S+4,4)}, v{t+4} offset:1536")
            e(f"ds_read_b128 {vr(S+8,4)}, v{t+4} offset:{1024+64}")
            e(f"ds_read_b128 {vr(S+12,4)}, v{t+4} offset:{1536+64}")
            CS = S + 16
            for j in range(nffn, 9):
                e(f"ds_read_b32 v{CS+j}, v{t} offset:{64*j}")
            e("s_waitcnt lgkmcnt(0)")
            for T in range(2):
                for k in range(4):
                    ln(S+8*T+k, S+8*T+4+k, CS+10)
            e("s_or_b32 s63, s52, s54")
            e("s_cmp_eq_u32 s63, 0")
            e("s_cselect_b32 s76, 0xffff, 0")
            e("s_mov_b32 s77, 0")
            e("s_lshl_b32 s60, s52, 6")
            e("s_lshl_b32 s61, s54, 4")
            e("s_add_u32 s60, s60, s61")
            e(f"s_add_u32 s60, s60, {WS_AT:#x}")
            e("s_mul_i32 s62, s53, 144")
            e("s_sub_u32 s62, s62, 1792")
            W = CS + 12
            for j in range(nffn, 9):
                e(f"v_add3_u32 v{W}, v{V_I}, s62, {16*j}" if 16*j <= 64 else f"v_add_u32 v{W}, {16*j}, v{V_I}")
                if 16*j > 64: e(f"v_add_u32 v{W}, s62, v{W}")
                e(f"v_cmp_lt_u32 vcc, 256, v{W}" )
                e(f"v_subrev_u32 v{W+1}, 256, v{W}")
                e(f"v_mov_b32 v{W+2}, 1.0")
                e(f"v_cndmask_b32 v{W}, v{W}, v{W+1}, vcc")
                e(f"v_cndmask_b32 v{W+2}, v{W+2}, -1.0, vcc")
                e(f"v_lshlrev_b32 v{W+1}, 10, v{W}")
                e(f"v_lshl_add_u32 v{W+1}, v{V_G}, 2, v{W+1}")
                e(f"v_mov_b32 v{W+3}, {3*AT_STRIDE:#x}")
                e(f"v_cndmask_b32 v{W+3}, 0, v{W+3}, vcc")
                e(f"v_add_u32 v{W+3}, v{W+3}, v{W+1}")
                e(f"v_mov_b32 v{W+4}, {AT_STRIDE:#x}")
                e(f"v_mov_b32 v{W+5}, {2*AT_STRIDE:#x}")
                e(f"v_cndmask_b32 v{W+4}, v{W+4}, v{W+5}, vcc")
                e(f"v_add_u32 v{W+4}, v{W+4}, v{W+1}")
                PL = W + 8; MI = W + 10; VV = W + 12
                for T in range(2):
                    a_ = acc(j, T)
                    for k in range(4):
                        e(f"v_fma_f32 v{VV+k}, -v{S+8*T+k}, v{CS+j}, v{a_+k}")
                    for k in range(4):
                        e(f"v_mul_f32 v{VV+k}, v{VV+k}, v{S+8*T+4+k}")
                    e(f"v_fma_f32 v{VV+4}, v{W+2}, v{VV+1}, v{VV}")
                    e(f"v_fma_f32 v{VV+5}, v{W+2}, v{VV+3}, v{VV+2}")
                    e(f"v_add_f32 v{PL+T}, v{VV+4}, v{VV+5}")
                    e(f"v_sub_f32 v{MI+T}, v{VV+4}, v{VV+5}")
                    if T == 0:
                        e(f"v_sub_f32 v{VV+6}, v{VV}, v{VV+1}")
                        e(f"v_cndmask_b32 v{VV+6}, v{VV+6}, 0, vcc")
                        e(f"v_cndmask_b32 v{VV+7}, v{VV+4}, 0, vcc")
                        e(f"v_cndmask_b32 v{PL}, v{PL}, v{VV+7}, s[76:77]")
                        e(f"v_cndmask_b32 v{MI}, v{MI}, v{VV+6}, s[76:77]")
                        e("s_cmp_eq_u32 s76, 0")
                        e(f"s_cbranch_scc1 K1_NOX_{tag}_{j}")
                        e(f"v_mov_b32 v{VV+6}, {288*4}")
                        e(f"v_cndmask_b32 v{VV+6}, 0, v{VV+6}, vcc")
                        e(f"v_lshl_add_u32 v{VV+6}, v{W}, 2, v{VV+6}")
                        e(f"v_add_u32 v{VV+6}, {WS_X512:#x}, v{VV+6}")
                        e("s_mov_b64 exec, s[76:77]")
                        e(f"buffer_store_dword v{VV+5}, v{VV+6}, s[36:39], 0 offen")
                        e("s_mov_b64 exec, -1")
                        lab(f"K1_NOX_{tag}_{j}")
                e(f"v_cvt_pk_bf16_f32 v{W+6}, v{PL}, v{PL+1}")
                e(f"v_cvt_pk_bf16_f32 v{W+7}, v{MI}, v{MI+1}")
                e(f"buffer_store_dword v{W+6}, v{W+3}, s[36:39], s60 offen")
                e(f"buffer_store_dword v{W+7}, v{W+4}, s[36:39], s60 offen")
        e("s_endpgm")
    variant("F", 9)
    variant("M", 4)
    variant("D", 0)
    lab("K1_END")
    e("s_endpgm")

K2_F = 0
K2_D = 49152
DP = 208
K2_D2 = K2_D + 33*DP
K2_LDS = K2_D + 2*33*DP

def gen_k2(DEPTH=8, DDEPTH=12):
    lab("k2_kernel")
    e("s_cmp_ge_u32 s2, 256")
    e("s_cbranch_scc1 K2_END")
    load_ptrs()
    e("s_and_b32 s30, s2, 7")
    e("s_lshr_b32 s31, s2, 3")
    e("s_lshr_b32 s52, s30, 1")
    e("s_lshl_b32 s52, s52, 3")
    e("s_and_b32 s55, s31, 7")
    e("s_add_u32 s52, s52, s55")
    e("s_and_b32 s53, s30, 1")
    e("s_lshl_b32 s53, s53, 2")
    e("s_lshr_b32 s55, s31, 3")
    e("s_add_u32 s53, s53, s55")
    e("s_lshr_b32 s56, s52, 4")
    e("s_and_b32 s57, s52, 15")
    e("s_lshl_b32 s57, s57, 6")
    e("s_add_u32 s57, s57, s56")
    V_LANE, V_I, V_G = 1, 2, 3
    V_XO = 4
    V_XV = 6
    V_B2 = 14
    V_OA = 22
    V_OB = 26
    V_T = 30
    V_ACC = 48
    V_ST = 112
    t = V_T
    e("v_lshrrev_b32 v1, 6, v0")
    e("v_and_b32 v2, 15, v0")
    e("v_readfirstlane_b32 s54, v1")
    e(f"v_and_b32 v{V_LANE}, 63, v0")
    e(f"v_lshrrev_b32 v{V_G}, 4, v{V_LANE}")
    e("s_waitcnt lgkmcnt(0)")
    srd(32, 4, 2048*512*2)
    srd(36, 28, WS_SIZE)
    srd(40, 22, 512*2)
    srd(44, 6, 2048*2048*2)
    srd(48, 8, 2048*2048*2)
    srd(60, 24, 2048*512*2)
    e(f"v_lshl_add_u32 v{t}, v{V_I}, 1, s57")
    e(f"v_add_u32 v{t+1}, 32, v{t}")
    e(f"v_sub_u32 v{t+2}, 0x800, v{t}")
    e(f"v_sub_u32 v{t+3}, 0x800, v{t+1}")
    e(f"v_mov_b32 v{t+4}, 0x400")
    e(f"v_cmp_eq_u32 vcc, 0, v{t}")
    nop(2)
    e(f"v_cndmask_b32 v{t+2}, v{t+2}, v{t+4}, vcc")
    e(f"v_mov_b32 v{t+5}, v{t}")
    for n in range(1, 4):
        e(f"s_cmp_eq_u32 s54, {n}")
        e("s_cselect_b64 s[58:59], -1, 0")
        e(f"v_cndmask_b32 v{t+5}, v{t+5}, v{t+n}, s[58:59]")
    e("s_lshl_b32 s64, s53, 6")
    e(f"s_sub_u32 s65, {480*2}, s64")
    e(f"v_lshlrev_b32 v{t+6}, 3, v{V_G}")
    e(f"v_lshl_add_u32 v{V_XO}, v{t+5}, 10, v{t+6}")
    for m in range(4):
        so = "s64" if m < 2 else "s65"
        e(f"buffer_load_dwordx2 {vr(V_XV+2*m,2)}, v{V_XO}, s[32:35], {so} offen offset:{32*(m&1)}")
    for m in range(4):
        so = "s64" if m < 2 else "s65"
        e(f"buffer_load_dwordx2 {vr(V_B2+2*m,2)}, v{t+6}, s[40:43], {so} offen offset:{32*(m&1)}")
    e(f"v_lshlrev_b32 v{t+7}, 4, v{V_G}")
    e("s_cmp_eq_u32 s54, 3")
    e("s_cbranch_scc1 K2_DFT")
    for n in range(4):
        e(f"v_mul_u32_u24 v{V_OB+n}, 0xe00, v{t+n}")
        e(f"v_add_u32 v{V_OB+n}, v{V_OB+n}, v{t+7}")
    e("s_lshl_b32 s66, s53, 5")
    e("s_sub_u32 s67, 480, s66")
    for m in range(4):
        so = "s66" if m < 2 else "s67"
        e(f"v_add3_u32 v{V_OA+m}, v{V_I}, {so}, {16*(m&1)}")
        e(f"v_mul_u32_u24 v{V_OA+m}, 0xe00, v{V_OA+m}")
        e(f"v_add_u32 v{V_OA+m}, v{V_OA+m}, v{t+7}")
        e(f"v_add_u32 v{V_OA+m}, {WS_W2T:#x}, v{V_OA+m}")
    e("s_mul_i32 s68, s54, 1216")
    NS = 19
    def st(s, q):
        k = s % DEPTH
        return vr(V_ST + k*32 + q*4, 4) if k < 4 else ar((k-4)*32 + q*4, 4)
    def ld(s):
        for m in range(4):
            e(f"buffer_load_dwordx4 {st(s,m)}, v{V_OA+m}, s[36:39], s68 offen offset:{64*s}")
            e(f"buffer_load_dwordx4 {st(s,4+m)}, v{V_OB+m}, s[36:39], s68 offen offset:{64*s}")
    def acc(m, n): return V_ACC + (m*4+n)*4
    def mm(s):
        for m in range(4):
            for n in range(4):
                c_ = "0" if s == 0 else vr(acc(m,n),4)
                e(f"v_mfma_f32_16x16x32_bf16 {vr(acc(m,n),4)}, {st(s,m)}, {st(s,4+n)}, {c_}")
    for s in range(DEPTH - 1): ld(s)
    for s in range(NS):
        nl = s + DEPTH - 1
        if nl < NS - 1:
            ld(nl); e(f"s_waitcnt vmcnt({8*(DEPTH-1)})")
        elif nl == NS - 1:
            e("s_cmp_eq_u32 s54, 2")
            e("s_cbranch_scc1 K2_W2TAIL")
            ld(nl); e(f"s_waitcnt vmcnt({8*(DEPTH-1)})")
        else:
            e(f"s_waitcnt vmcnt({8*(NS-1-s)})")
        mm(s)
    e("s_branch K2_FFN_DONE")
    lab("K2_W2TAIL")
    for s in range(NS - DEPTH, NS - 1):
        e(f"s_waitcnt vmcnt({8*(NS-2-s)})")
        mm(s)
    lab("K2_FFN_DONE")
    e("s_lshl_b32 s66, s54, 14")
    e(f"v_lshl_add_u32 v{t}, v{V_LANE}, 4, s66")
    nop(8)
    for q in range(16):
        e(f"ds_write_b128 v{t}, {vr(V_ACC+4*q,4)} offset:{q*1024}")
    e("s_branch K2_FINAL")
    lab("K2_DFT")
    for n in range(2):
        e(f"v_lshl_add_u32 v{V_OB+n}, v{t+n}, 12, v{t+7}")
    V_CF = V_OB + 2
    CRE = t + 10; CIM = t + 12
    for n in range(2):
        e(f"v_lshlrev_b32 v{t+8}, 12, v{t+n}")
        e(f"buffer_load_ushort v{CRE+n}, v{t+8}, s[44:47], 0 offen offset:1024")
        e(f"buffer_load_ushort v{CIM+n}, v{t+8}, s[48:51], 0 offen offset:1024")
    e("s_lshl_b32 s66, s53, 5")
    for m in range(2):
        e(f"v_add3_u32 v{V_OA+m}, v{V_I}, s66, {16*m}")
        e(f"v_lshl_add_u32 v{V_OA+m}, v{V_OA+m}, 10, v{t+7}")
    e("s_add_u32 s67, s66, 32")
    e("s_lshl_b32 s67, s67, 10")
    e(f"v_add_u32 v{V_OA+2}, s67, v{t+7}")
    e(f"s_mul_i32 s68, s56, {AT_STRIDE:#x}")
    e(f"s_add_u32 s68, s68, {WS_AT:#x}")
    e(f"s_add_u32 s69, s68, {2*AT_STRIDE:#x}")
    XA = V_ST + 5*20
    XB = XA + 12
    ALT = XB + 12
    assert ALT + 4 <= 256, ALT
    e("s_lshl_b32 s70, s53, 7")
    e(f"s_add_u32 s70, s70, {WS_X512:#x}")
    for m in range(3):
        e(f"buffer_load_dwordx4 {vr(XA+4*m,4)}, v{t+7}, s[36:39], s70 offen offset:{64*m}")
        e(f"buffer_load_dwordx4 {vr(XB+4*m,4)}, v{t+7}, s[36:39], s70 offen offset:{288*4+64*m}")
    for k in range(4): e(f"v_mov_b32 v{ALT+k}, 0xbf803f80")
    def dst(s, q):
        k = s % DDEPTH
        return vr(V_ST + k*20 + q*4, 4) if k < 5 else ar((k-5)*20 + q*4, 4)
    def dld(s):
        ph, ss = divmod(s, 16)
        sa = "s68" if ph == 0 else "s69"; sb = "s[44:47]" if ph == 0 else "s[48:51]"
        for m in range(3):
            e(f"buffer_load_dwordx4 {dst(s,m)}, v{V_OA+m}, s[36:39], {sa} offen offset:{64*ss}")
        for n in range(2):
            e(f"buffer_load_dwordx4 {dst(s,3+n)}, v{V_OB+n}, {sb}, 0 offen offset:{64*ss}")
    def pacc(ph, m, n): return V_ACC + ((ph*3+m)*2+n)*4
    def sacc(m): return V_ACC + 48 + 4*m
    def dmm(s):
        ph, ss = divmod(s, 16)
        for m in range(3):
            for n in range(2):
                c_ = "0" if ss == 0 else vr(pacc(ph,m,n),4)
                e(f"v_mfma_f32_16x16x32_bf16 {vr(pacc(ph,m,n),4)}, {dst(s,m)}, {dst(s,3+n)}, {c_}")
            if ph == 0:
                c_ = "0" if ss == 0 else vr(sacc(m),4)
                e(f"v_mfma_f32_16x16x32_bf16 {vr(sacc(m),4)}, {dst(s,m)}, {vr(ALT,4)}, {c_}")
    ND = 32
    for s in range(DDEPTH - 1): dld(s)
    for s in range(ND):
        nl = s + DDEPTH - 1
        if nl < ND:
            dld(nl); e(f"s_waitcnt vmcnt({5*(DDEPTH-1)})")
        else:
            e(f"s_waitcnt vmcnt({5*(ND-1-s)})")
        dmm(s)
    for n in range(2):
        e(f"v_lshlrev_b32 v{CRE+n}, 16, v{CRE+n}")
        e(f"v_lshlrev_b32 v{CIM+n}, 16, v{CIM+n}")
    e("s_cmp_eq_u32 s53, 0")
    e("s_cselect_b32 s72, 0xffff, 0")
    e("s_mov_b32 s73, 0")
    e("s_cmp_eq_u32 s53, 7")
    e("s_cselect_b32 s74, 0xffff, 0")
    e("s_mov_b32 s75, 0")
    e(f"v_mul_u32_u24 v{t}, {DP}, v{V_I}")
    e(f"v_add3_u32 v{t}, v{t}, v{t+7}, 0")
    e(f"v_add_u32 v{t}, {K2_D}, v{t}")
    nop(8)
    O = V_ST
    for m in range(3):
        for n in range(2):
            P = pacc(0,m,n); Q = pacc(1,m,n); o = O + ((m*2+n) % 2)*8
            for k in range(4):
                e(f"v_fma_f32 v{P+k}, v{CRE+n}, v{XA+4*m+k}, v{P+k}")
                e(f"v_fma_f32 v{Q+k}, v{CIM+n}, v{XB+4*m+k}, v{Q+k}")
            if m == 0: e(f"v_cndmask_b32 v{Q}, v{Q}, 0, s[72:73]")
            if m == 2: e(f"v_cndmask_b32 v{Q}, v{Q}, 0, s[74:75]")
            for k in range(4):
                e(f"v_sub_f32 v{o+k}, v{P+k}, v{Q+k}")
                e(f"v_add_f32 v{o+4+k}, v{P+k}, v{Q+k}")
            e(f"ds_write_b128 v{t}, {vr(o,4)} offset:{n*16*DP + m*64}")
            e(f"ds_write_b128 v{t}, {vr(o+4,4)} offset:{33*DP + n*16*DP + m*64}")
    for m in range(3):
        for k in range(4):
            e(f"v_add_f32 v{sacc(m)+k}, v{sacc(m)+k}, v{XA+4*m+k}")
    e(f"v_cmp_eq_u32 vcc, 0, v{V_I}")
    e("s_and_saveexec_b64 s[76:77], vcc")
    for m in range(3):
        e(f"ds_write_b128 v{t}, {vr(sacc(m),4)} offset:{32*DP + m*64}")
        e(f"ds_write_b128 v{t}, {vr(sacc(m),4)} offset:{33*DP + 32*DP + m*64}")
    e("s_mov_b64 exec, s[76:77]")
    lab("K2_FINAL")
    e("s_waitcnt vmcnt(0) lgkmcnt(0)")
    e("s_barrier")
    e("s_lshl_b32 s66, s54, 10")
    e(f"v_lshl_add_u32 v{t}, v{V_LANE}, 4, s66")
    R = V_ACC
    for m in range(4):
        for w in range(3):
            e(f"ds_read_b128 {vr(R+(m*3+w)*4,4)}, v{t} offset:{(w*16+m*4)*1024}")
    e("s_and_b32 s66, s54, 1")
    e("s_lshl_b32 s66, s66, 4")
    e(f"v_add_u32 v{t+1}, s66, v{V_I}")
    e("s_cmp_eq_u32 s54, 2")
    e("s_cselect_b32 s67, s57, 1")
    e(f"v_or_b32 v{t+2}, s67, v{V_I}")
    e(f"v_cmp_eq_u32 vcc, 0, v{t+2}")
    nop(2)
    e(f"v_cndmask_b32 v{t+1}, v{t+1}, 32, vcc")
    e(f"v_mul_u32_u24 v{t+1}, {DP}, v{t+1}")
    e("s_cmp_lt_u32 s54, 2")
    e(f"s_cselect_b32 s66, 0, {K2_D2-K2_D}")
    e(f"s_cselect_b32 s67, {K2_D2-K2_D}, 0")
    e(f"s_add_u32 s66, s66, {K2_D}")
    e(f"s_add_u32 s67, s67, {K2_D}")
    e(f"v_lshlrev_b32 v{t+7}, 4, v{V_G}")
    e(f"v_add3_u32 v{t+2}, v{t+1}, v{t+7}, s66")
    e(f"v_sub_u32 v{t+3}, v{t+1}, v{t+7}")
    e(f"v_add_u32 v{t+3}, s67, v{t+3}")
    Y = V_ST
    e(f"ds_read_b128 {vr(Y,4)}, v{t+2}")
    e(f"ds_read_b128 {vr(Y+4,4)}, v{t+2} offset:64")
    for m2 in range(2):
        for k in range(4):
            e(f"ds_read_b32 v{Y+8+4*m2+k}, v{t+3} offset:{(32-16*m2-k)*4}")
    e("s_waitcnt lgkmcnt(0)")
    U = V_ST + 16
    for m in range(4):
        u = U + m*16
        p0 = R + m*12
        e(f"v_lshlrev_b32 v{u}, 16, v{V_B2+2*m}")
        e(f"v_and_b32 v{u+1}, 0xffff0000, v{V_B2+2*m}")
        e(f"v_lshlrev_b32 v{u+2}, 16, v{V_B2+2*m+1}")
        e(f"v_and_b32 v{u+3}, 0xffff0000, v{V_B2+2*m+1}")
        for k in range(4):
            e(f"v_add_f32 v{p0+k}, v{p0+k}, v{p0+4+k}")
            e(f"v_add_f32 v{u+k}, v{u+k}, v{p0+8+k}")
        for k in range(4):
            e(f"v_add_f32 v{u+k}, v{u+k}, v{p0+k}")
        for k in range(4):
            e(f"v_mul_f32 v{u+4+k}, 0xbfb8aa3b, v{u+k}")
        for k in range(4):
            e(f"v_exp_f32 v{u+4+k}, v{u+4+k}")
        e("s_nop 0")
        for k in range(4):
            e(f"v_add_f32 v{u+4+k}, 1.0, v{u+4+k}")
        for k in range(4):
            e(f"v_rcp_f32 v{u+4+k}, v{u+4+k}")
        e(f"v_lshlrev_b32 v{u+8}, 16, v{V_XV+2*m}")
        e(f"v_and_b32 v{u+9}, 0xffff0000, v{V_XV+2*m}")
        e(f"v_lshlrev_b32 v{u+10}, 16, v{V_XV+2*m+1}")
        e(f"v_and_b32 v{u+11}, 0xffff0000, v{V_XV+2*m+1}")
        for k in range(4):
            e(f"v_mul_f32 v{u+k}, v{u+k}, v{u+4+k}")
        for k in range(4):
            e(f"v_fma_f32 v{u+k}, v{Y+4*m+k}, v{u+k}, v{u+8+k}")
        e(f"v_cvt_pk_bf16_f32 v{u+12}, v{u}, v{u+1}")
        e(f"v_cvt_pk_bf16_f32 v{u+13}, v{u+2}, v{u+3}")
        so = "s64" if m < 2 else "s65"
        e(f"buffer_store_dwordx2 {vr(u+12,2)}, v{V_XO}, s[60:63], {so} offen offset:{32*(m&1)}")
    lab("K2_END")
    e("s_endpgm")

def kd(name, nvgpr, acc_off):
    return f""".amdhsa_kernel {name}
  .amdhsa_next_free_vgpr {nvgpr}
  .amdhsa_next_free_sgpr 96
  .amdhsa_accum_offset {acc_off}
  .amdhsa_group_segment_fixed_size 0
  .amdhsa_kernarg_size 104
  .amdhsa_user_sgpr_count 2
  .amdhsa_user_sgpr_kernarg_segment_ptr 1
  .amdhsa_system_sgpr_workgroup_id_x 1
.end_amdhsa_kernel
"""

def main(out):
    hdr = f"""; FNet (folded real 2-D DFT) * silu(squared-relu FFN) + residual, two launches.
; @launch kernel=k1_kernel grid=(256,1,1) block=(256,1,1) lds={K1_LDS}
; @launch kernel=k2_kernel grid=(256,1,1) block=(256,1,1) lds={K2_LDS}
.amdgcn_target "amdgcn-amd-amdhsa--gfx950"
.text
"""
    body = []
    for nm, fn in (("k1_kernel", gen_k1), ("k2_kernel", gen_k2)):
        L.clear()
        fn()
        body.append(f".globl {nm}\n.p2align 8\n.type {nm},@function\n" + "\n".join(L) + "\n")
    txt = hdr + "".join(body) + '.section .rodata,"a"\n.p2align 6\n' + kd("k1_kernel", 256+56, 256) + ".p2align 6\n" + kd("k2_kernel", 256+160, 256)
    open(out, "w").write(txt)

if __name__ == "__main__":
    main(sys.argv[1] if len(sys.argv) > 1 else f"cdna_kernels/{NAME}.s")
```

```python
import sys, os
NAME = "recurrent_scan__spectral_fnet__dense_activation_squared_relu__prompt"
L = []
def e(s): L.append("    " + s)
def lab(s): L.append(s + ":")
def nop(n):
    while n > 0:
        k = min(n, 16); e(f"s_nop {k-1}"); n -= k
def vr(b, n): return f"v[{b}:{b+n-1}]" if n > 1 else f"v{b}"
def ar(b, n): return f"a[{b}:{b+n-1}]" if n > 1 else f"a{b}"

PROF = int(os.environ.get("PROF", "0"))
OPT = dict(kv.split("=") for kv in os.environ.get("OPT", "").split(",") if kv)
def opt(k, d): return type(d)(OPT.get(k, d))
def stamp(k):
    if PROF: e(f"s_memtime s[{80+2*k}:{81+2*k}]")
def prof_begin():
    if PROF: e("s_memrealtime s[96:97]")
def prof_end(kidx, tmp):
    if not PROF: return
    e("s_memrealtime s[98:99]")
    e("s_waitcnt lgkmcnt(0)")
    e("s_mov_b32 s76, s26"); e("s_and_b32 s77, s27, 0xffff"); e("s_mov_b32 s78, 0x40000"); e("s_mov_b32 s79, 0x00020000")
    e("s_lshl_b32 s30, s2, 3"); e("s_add_u32 s30, s30, s54"); e("s_lshl_b32 s30, s30, 6"); e(f"s_add_u32 s30, s30, {kidx*131072}")
    e("s_mov_b64 exec, 1")
    e(f"v_mov_b32 v{tmp}, 0")
    for k in range(10):
        e(f"v_mov_b32 v{tmp+1}, s{80+2*k}")
        e(f"buffer_store_dword v{tmp+1}, v{tmp}, s[76:79], s30 offen offset:{4*k}")
        e("s_nop 1")

TILE_B = 56 * 1024
WS_H2 = 0
WS_W2 = 0x700000
WS_AT = 0x900000
ASTR = 17 * 16384
WS_X512 = WS_AT + 4 * ASTR
WS_SIZE = WS_X512 + 4096

def load_ptrs():
    e("s_load_dwordx16 s[4:19], s[0:1], 0")
    e("s_load_dwordx8 s[20:27], s[0:1], 64")
    e("s_load_dwordx2 s[28:29], s[0:1], 96")
def srd(d, p, nbytes):
    e(f"s_mov_b32 s{d}, s{p}")
    e(f"s_and_b32 s{d+1}, s{p+1}, 0xffff")
    e(f"s_mov_b32 s{d+2}, {nbytes:#x}")
    e(f"s_mov_b32 s{d+3}, 0x00020000")

def quad_consts(vmem, vbase, vsgn, vspec, tmp):
    e(f"v_mov_b32 v{vbase}, 0x400")
    e(f"v_cmp_eq_u32 vcc, 0, v{vmem}")
    e(f"v_add_u32 v{tmp}, 1, v{vmem}")
    e(f"v_and_b32 v{tmp}, 2, v{tmp}")
    e(f"v_cndmask_b32 v{vbase}, v{vbase}, 0, vcc")
    e(f"v_sub_u32 v{vsgn}, 1, v{tmp}")
    e(f"v_cmp_eq_u32 vcc, 1, v{vmem}")
    e(f"v_mov_b32 v{tmp}, 0x800")
    e(f"v_and_b32 v{vspec}, 1, v{vmem}")
    e(f"v_cndmask_b32 v{vbase}, v{vbase}, v{tmp}, vcc")
    e(f"v_lshlrev_b32 v{vspec}, 10, v{vspec}")
    e(f"v_lshrrev_b32 v{tmp}, 1, v{vmem}")
    e(f"v_lshl_add_u32 v{vspec}, v{tmp}, 9, v{vspec}")

ST_H2 = opt("sth2", "")
ST_W2 = opt("stw2", "")
ST_AT = opt("stat", "")
ST_OUT = opt("stout", "")
def fl(s): return (" " + s.replace("+", " ")) if s else ""

K1_GEN = 131072
K1_TR = 147456
K1_Z = 155648
K1_LDS = 157696

def gen_k1():
    lab("k1_kernel")
    e("s_cmp_ge_u32 s2, 256")
    e("s_cbranch_scc1 K1_END")
    prof_begin(); stamp(0)
    load_ptrs()
    e("s_and_b32 s30, s2, 7")
    e("s_lshr_b32 s31, s2, 3")
    e("s_and_b32 s52, s30, 1")
    e("s_lshl_b32 s52, s52, 3")
    e("s_and_b32 s55, s31, 7")
    e("s_add_u32 s52, s52, s55")
    e("s_lshr_b32 s53, s30, 1")
    e("s_lshl_b32 s53, s53, 2")
    e("s_lshr_b32 s55, s31, 3")
    e("s_add_u32 s53, s53, s55")
    V_LANE, V_I, V_G = 1, 2, 3
    e("v_lshrrev_b32 v1, 6, v0")
    e("v_and_b32 v2, 15, v0")
    e("v_readfirstlane_b32 s54, v1")
    e(f"v_and_b32 v{V_LANE}, 63, v0")
    e(f"v_lshrrev_b32 v{V_G}, 4, v{V_LANE}")
    e("s_and_b32 s55, s54, 3")
    e("s_cmp_lt_u32 s54, 4")
    e("s_cbranch_scc1 K1_CONS")
    t = 40
    V_XO = 4
    V_WO = 8
    V_SA = 10
    V_CA = 12
    V_ONES = 28
    V_SUM = 30
    V_CS = 60
    V_D = 72
    e("s_lshl_b32 s56, s52, 5")
    e("s_and_b32 s57, s55, 1")
    e("s_add_u32 s56, s56, s57")
    e("s_lshr_b32 s57, s55, 1")
    e("s_lshl_b32 s57, s57, 4")
    e("s_add_u32 s56, s56, s57")
    e(f"v_bfe_u32 v{t}, v{V_LANE}, 3, 2")
    quad_consts(t, t+1, t+2, t+3, t+4)
    e(f"v_lshrrev_b32 v{t+4}, 5, v{V_LANE}")
    e(f"v_lshl_add_u32 v{t+4}, v{t+4}, 1, s56")
    e(f"v_and_b32 v{t+5}, 7, v{V_LANE}")
    e(f"v_xor_b32 v{t+5}, v{t+5}, v{V_G}")
    e(f"v_lshlrev_b32 v{t+5}, 4, v{t+5}")
    e(f"v_xor_b32 v{t+6}, 64, v{t+5}")
    for q in range(4):
        if q: e(f"v_add_u32 v{t+4}, 4, v{t+4}")
        e(f"v_mad_i32_i24 v{t+7}, v{t+2}, v{t+4}, v{t+1}")
        if q == 0:
            e(f"v_cmp_eq_u32 vcc, 0, v{t+4}")
            nop(2)
            e(f"v_cndmask_b32 v{t+7}, v{t+7}, v{t+3}, vcc")
        e(f"v_lshl_add_u32 v{V_XO+q}, v{t+7}, 10, v{t+5+(q&1)}")
    e("s_waitcnt lgkmcnt(0)")
    srd(32, 4, 2048*512*2)
    srd(36, 28, WS_SIZE)
    srd(40, 18, 1792*2)
    srd(48, 20, 1792*512*2)
    e("s_cmp_lt_u32 s53, 14")
    e("s_cbranch_scc0 K1_H_DSRC")
    srd(44, 16, 512*3584)
    e("s_mov_b32 s58, 3584")
    e("s_lshl_b32 s59, s53, 8")
    e("s_branch K1_H_SRC")
    lab("K1_H_DSRC")
    srd(44, 10, 512*1024)
    e("s_mov_b32 s58, 1024")
    e("s_sub_u32 s59, s53, 14")
    e("s_lshl_b32 s59, s59, 8")
    lab("K1_H_SRC")
    e(f"v_bfe_u32 v{t}, v{V_LANE}, 1, 3")
    e(f"v_xor_b32 v{t}, v{t}, v{V_G}")
    e(f"v_and_b32 v{t+1}, 1, v{V_LANE}")
    e(f"v_lshl_add_u32 v{t}, v{t}, 1, v{t+1}")
    e(f"v_lshlrev_b32 v{t}, 4, v{t}")
    e(f"v_xor_b32 v{t+1}, 0x80, v{t}")
    e(f"v_mad_u32_u24 v{V_WO}, v{V_G}, s58, v{t}")
    e(f"v_mad_u32_u24 v{V_WO+1}, v{V_G}, s58, v{t+1}")
    e("s_lshl_b32 s60, s55, 4")
    e("s_mul_i32 s60, s60, s58")
    e("s_add_u32 s60, s60, s59")
    e("s_lshl_b32 s61, s58, 2")
    e("s_lshl_b32 s62, s55, 12")
    e("s_mul_i32 s63, s58, 48")
    VQ = []
    def dma_stage(k):
        b = k % 4
        for q in range(4):
            e(f"s_add_u32 m0, s62, {b*32768 + q*1024}")
            e(f"s_movk_i32 s64, {k*128}")
            e(f"buffer_load_dwordx4 v{V_XO+q}, s[32:35], s64 offen lds")
            VQ.append(("st", k))
            e(f"s_add_u32 m0, s62, {b*32768 + 16384 + q*1024}")
            e("s_nop 0")
            e(f"buffer_load_dwordx4 v{V_WO+(q>>1)}, s[44:47], s60 offen lds")
            VQ.append(("st", k))
            e("s_add_u32 s60, s60, s61")
        e("s_add_u32 s60, s60, s63")
    def vwait(tag):
        idx = max(i for i, x in enumerate(VQ) if x == tag)
        n = len(VQ) - 1 - idx
        e(f"s_waitcnt vmcnt({n})")
        del VQ[:idx+1]
    dma_stage(0)
    e("s_min_u32 s65, s2, 223")
    e("s_lshr_b32 s66, s65, 3")
    e("s_and_b32 s67, s65, 7")
    e("s_lshl_b32 s68, s66, 6")
    e("s_lshl_b32 s69, s55, 4")
    e("s_add_u32 s68, s68, s69")
    e("s_lshl_b32 s68, s68, 10")
    e("s_lshl_b32 s69, s67, 7")
    e("s_add_u32 s68, s68, s69")
    e(f"v_lshrrev_b32 v{t}, 3, v{V_LANE}")
    e(f"v_and_b32 v{t+1}, 7, v{V_LANE}")
    e(f"v_lshlrev_b32 v{t+1}, 4, v{t+1}")
    e(f"v_lshl_add_u32 v{t}, v{t}, 10, v{t+1}")
    e("s_lshl_b32 s69, s55, 11")
    e(f"s_add_u32 m0, s69, {K1_TR}")
    e("s_add_u32 s70, s68, 8192")
    e(f"buffer_load_dwordx4 v{t}, s[48:51], s68 offen lds"); VQ.append(("st", 0))
    e(f"s_add_u32 m0, s69, {K1_TR+1024}")
    e("s_nop 0")
    e(f"buffer_load_dwordx4 v{t}, s[48:51], s70 offen lds"); VQ.append(("st", 0))
    e(f"v_lshlrev_b32 v{t+2}, 2, v{V_LANE}")
    e("s_lshl_b32 s71, s53, 8")
    e(f"buffer_load_dword v{t+10}, v{t+2}, s[40:43], s71 offen"); VQ.append(("st", 0))
    for k in range(1, 4): dma_stage(k)
    stamp(1)
    e(f"v_lshl_add_u32 v{t}, s53, 4, v{V_I}")
    e(f"v_cmp_eq_u32 vcc, 0, v{t}")
    e(f"v_mov_b32 v{t+1}, 0x100")
    e(f"v_mov_b32 v{t+3}, 0xbe800000")
    e(f"v_cndmask_b32 v{t}, v{t}, v{t+1}, vcc")
    e(f"v_cndmask_b32 v{t+3}, 0, v{t+3}, vcc")
    e(f"v_cvt_f32_u32 v{t}, v{t}")
    e(f"v_mul_f32 v{t}, 0x3b000000, v{t}")
    e("s_lshl_b32 s64, s55, 7")
    e(f"v_lshl_add_u32 v{t+1}, v{V_G}, 3, s64")
    e(f"v_cvt_f32_u32 v{t+1}, v{t+1}")
    e(f"v_fma_f32 v{t+3}, v{t+1}, v{t}, v{t+3}")
    e(f"v_lshl_add_u32 v{t+4}, v{V_LANE}, 4, s62")
    e(f"v_add_u32 v{t+4}, {K1_GEN}, v{t+4}")
    import struct
    def fbits(x): return struct.unpack("<I", struct.pack("<f", x))[0]
    for ks in range(4):
        for k in range(8):
            n = 32*ks + k
            if n == 0: e(f"v_mov_b32 v{V_D+k}, v{t+3}")
            else:
                e(f"v_mov_b32 v{V_D+8}, {fbits(float(n)):#x}")
                e(f"v_fma_f32 v{V_D+k}, v{V_D+8}, v{t}, v{t+3}")
        for k in range(8): e(f"v_sin_f32 v{V_D+k}, -v{V_D+k}")
        e("s_nop 0")
        for k in range(4): e(f"v_cvt_pk_bf16_f32 v{V_D+12+4*(ks&1)+k}, v{V_D+2*k}, v{V_D+2*k+1}")
        e(f"ds_write_b128 v{t+4}, {vr(V_D+12+4*(ks&1),4)} offset:{ks*1024}")
    e(f"v_mov_b32 v{t+6}, 0")
    e(f"v_mov_b32 v{t+7}, 0")
    e(f"v_lshlrev_b32 v{t+5}, 3, v{V_LANE}")
    e(f"v_add_u32 v{t+5}, {K1_Z}, v{t+5}")
    e(f"ds_write_b64 v{t+5}, {vr(t+6,2)}")
    e(f"v_mov_b32 v{V_ONES}, 0x3f803f80")
    for k in range(8):
        e(f"v_mov_b32 v{V_SUM+k}, 0"); e(f"v_mov_b32 v{V_CS+k}, 0")
    e(f"v_lshl_add_u32 v{V_SA}, v{V_LANE}, 4, s62")
    e(f"v_add_u32 v{V_SA+1}, 0x10000, v{V_SA}")
    e(f"v_lshrrev_b32 v{t}, 2, v{V_I}")
    e(f"v_and_b32 v{t+1}, 1, v{V_G}")
    e(f"v_lshl_add_u32 v{t+2}, v{t+1}, 2, v{t}")
    e(f"v_lshl_add_u32 v{t}, v{t+1}, 3, v{t}")
    e(f"v_lshrrev_b32 v{t+1}, 1, v{V_G}")
    e(f"v_lshl_add_u32 v{t}, v{t+1}, 2, v{t}")
    e(f"v_lshlrev_b32 v{t}, 8, v{t}")
    e(f"v_lshl_add_u32 v{t}, v{t+2}, 5, v{t}")
    e(f"v_and_b32 v{t+1}, 3, v{V_I}")
    e(f"v_lshl_add_u32 v{t}, v{t+1}, 3, v{t}")
    e(f"v_add3_u32 v{t}, v{t}, s62, 0")
    e(f"v_add_u32 v{t}, 0x4000, v{t}")
    for j in range(8):
        e(f"v_xor_b32 v{V_CA+j}, {j<<5}, v{t}")
        e(f"v_add_u32 v{V_CA+8+j}, 0x10000, v{V_CA+j}")
    for k in range(8):
        vwait(("st", k))
        if k == 0:
            e(f"v_lshlrev_b32 v{t+6}, 16, v{t+10}")
            e(f"v_and_b32 v{t+7}, 0xffff0000, v{t+10}")
            e(f"ds_write_b64 v{t+5}, {vr(t+6,2)} offset:1536")
            e("s_waitcnt lgkmcnt(0)")
        e("s_barrier")
        if k == 0: stamp(2)
        if k == 7: stamp(3)
        if 1 <= k <= 4: dma_stage(k + 3)
        b = k % 4; off = (b & 1) * 32768; hi = b >> 1
        for q in range(4):
            e(f"ds_read_b128 {vr(V_D+4*q,4)}, v{V_SA+hi} offset:{off + q*1024}")
        for j in range(8):
            e(f"ds_read_b64_tr_b16 {vr(V_D+16+2*j,2)}, v{V_CA+8*hi+j} offset:{off}")
        if k == 0:
            e(f"v_lshrrev_b32 v{t+2}, 2, v{V_I}")
            e(f"v_lshl_add_u32 v{t+2}, v{V_G}, 2, v{t+2}")
            e(f"v_lshlrev_b32 v{t+2}, 7, v{t+2}")
            e(f"v_and_b32 v{t+3}, 3, v{V_I}")
            e(f"v_lshl_add_u32 v{t+2}, v{t+3}, 3, v{t+2}")
            e("s_lshl_b32 s64, s55, 5")
            e(f"s_add_u32 s64, s64, {K1_TR}")
            e(f"v_add_u32 v{t+2}, s64, v{t+2}")
            for u in range(4):
                e(f"ds_read_b64_tr_b16 {vr(V_D+32+2*u,2)}, v{t+2} offset:{u*2048}")
            nl = 4
        else: nl = 0
        for q in range(4):
            e(f"s_waitcnt lgkmcnt({8 + nl + 3 - q})")
            for d in range(4):
                e(f"v_dot2_f32_bf16 v{V_SUM+2*q}, v{V_D+4*q+d}, v{V_ONES}, v{V_SUM+2*q}")
                e(f"v_dot2_f32_bf16 v{V_SUM+2*q+1}, v{V_D+4*q+d}, v{V_D+4*q+d}, v{V_SUM+2*q+1}")
        e(f"s_waitcnt lgkmcnt({nl})")
        for d in range(2):
            for j in range(8):
                e(f"v_dot2_f32_bf16 v{V_CS+j}, v{V_D+16+2*j+d}, v{V_ONES}, v{V_CS+j}")
        if k == 0:
            e("s_waitcnt lgkmcnt(0)")
            e("s_cmp_ge_u32 s2, 224")
            e("s_cbranch_scc1 K1_H_NOTR")
            e("s_lshl_b32 s64, s67, 2")
            e("s_add_u32 s64, s64, s55")
            e(f"s_mul_i32 s64, s64, {TILE_B}")
            e("s_lshl_b32 s65, s66, 11")
            e("s_add_u32 s64, s64, s65")
            e(f"s_add_u32 s64, s64, {WS_W2:#x}")
            e(f"v_lshlrev_b32 v{t+3}, 4, v{V_LANE}")
            e(f"buffer_store_dwordx4 {vr(V_D+32,4)}, v{t+3}, s[36:39], s64 offen{fl(ST_W2)}")
            e(f"buffer_store_dwordx4 {vr(V_D+36,4)}, v{t+3}, s[36:39], s64 offen offset:1024{fl(ST_W2)}")
            lab("K1_H_NOTR")
    nop(3)
    e(f"v_lshlrev_b32 v{t}, 2, v{V_I}")
    e(f"v_add_u32 v{t}, {K1_Z}, v{t}")
    for j in range(8): e(f"ds_add_f32 v{t}, v{V_CS+j} offset:{64*j}")
    for perm in ("quad_perm:[1,0,3,2]", "quad_perm:[2,3,0,1]", "row_half_mirror"):
        for k in range(8):
            e(f"v_add_f32_dpp v{V_SUM+k}, v{V_SUM+k}, v{V_SUM+k} {perm} row_mask:0xf bank_mask:0xf")
    e(f"v_and_b32 v{t+1}, 7, v{V_LANE}")
    for q in range(1, 4):
        e(f"v_cmp_eq_u32 vcc, {q}, v{t+1}")
        nop(2)
        e(f"v_cndmask_b32 v{V_SUM}, v{V_SUM}, v{V_SUM+2*q}, vcc")
        e(f"v_cndmask_b32 v{V_SUM+1}, v{V_SUM+1}, v{V_SUM+2*q+1}, vcc")
    vS, vQ, tmp = V_SUM, V_SUM+1, t+2
    e(f"v_mul_f32 v{vS}, 0x3b000000, v{vS}")
    e(f"v_mul_f32 v{vQ}, 0x3b000000, v{vQ}")
    e(f"v_fma_f32 v{vQ}, -v{vS}, v{vS}, v{vQ}")
    e(f"v_max_f32 v{vQ}, 0, v{vQ}")
    e(f"v_cvt_pk_bf16_f32 v{tmp}, v{vS}, v{vQ}")
    e(f"v_lshlrev_b32 v{vS}, 16, v{tmp}")
    e(f"v_and_b32 v{vQ}, 0xffff0000, v{tmp}")
    e(f"v_add_f32 v{vQ}, 0x3727c5ac, v{vQ}")
    e(f"v_cvt_pk_bf16_f32 v{tmp}, v{vQ}, v{vQ}")
    e(f"v_lshlrev_b32 v{vQ}, 16, v{tmp}")
    e(f"v_sqrt_f32 v{vQ}, v{vQ}")
    e(f"v_lshrrev_b32 v{t+3}, 3, v{V_LANE}")
    e(f"v_cvt_pk_bf16_f32 v{tmp}, v{vQ}, v{vQ}")
    e(f"v_lshlrev_b32 v{vQ}, 16, v{tmp}")
    e(f"v_rcp_f32 v{vQ}, v{vQ}")
    e(f"v_lshl_add_u32 v{t+3}, v{t+1}, 3, v{t+3}")
    e("s_lshl_b32 s64, s55, 7")
    e(f"s_add_u32 s64, s64, {K1_Z}")
    e(f"v_lshl_add_u32 v{t+3}, v{t+3}, 2, s64")
    e(f"v_cmp_gt_u32 vcc, 4, v{t+1}")
    e("s_and_saveexec_b64 s[64:65], vcc")
    e(f"ds_write_b32 v{t+3}, v{vS} offset:512")
    e(f"ds_write_b32 v{t+3}, v{vQ} offset:1024")
    e("s_mov_b64 exec, s[64:65]")
    e("s_waitcnt lgkmcnt(0)")
    stamp(4)
    e("s_barrier")
    if PROF: e("s_waitcnt vmcnt(0)")
    stamp(7)
    prof_end(0, 1)
    e("s_endpgm")

    lab("K1_CONS")
    V_WA = 4
    V_XA = 12
    V_GA = 14
    V_L16 = 15
    t = 16
    V_RING = 32
    V_XF = 56
    V_ACC = 72
    V_E = 144
    NR = 6
    e(f"v_lshrrev_b32 v{t}, 2, v{V_I}")
    e(f"v_and_b32 v{t+1}, 1, v{V_G}")
    e(f"v_lshl_add_u32 v{t+2}, v{t+1}, 2, v{t}")
    e(f"v_lshl_add_u32 v{t}, v{V_G}, 3, v{t}")
    e(f"v_lshlrev_b32 v{t}, 8, v{t}")
    e(f"v_lshl_add_u32 v{t}, v{t+2}, 5, v{t}")
    e(f"v_and_b32 v{t+1}, 3, v{V_I}")
    e(f"v_lshl_add_u32 v{t}, v{t+1}, 3, v{t}")
    e(f"v_add_u32 v{t}, 0x4000, v{t}")
    for j in range(8): e(f"v_xor_b32 v{V_WA+j}, {j<<5}, v{t}")
    e(f"v_lshrrev_b32 v{t}, 1, v{V_I}")
    e(f"v_xor_b32 v{t}, v{t}, v{V_G}")
    e(f"v_lshlrev_b32 v{t}, 4, v{t}")
    e(f"v_lshl_add_u32 v{t}, v{V_I}, 7, v{t}")
    e("s_lshl_b32 s62, s55, 12")
    e(f"v_add_u32 v{V_XA}, s62, v{t}")
    e(f"v_xor_b32 v{V_XA+1}, 64, v{V_XA}")
    e(f"v_lshlrev_b32 v{V_L16}, 4, v{V_LANE}")
    e(f"v_add_u32 v{V_GA}, {K1_GEN}, v{V_L16}")
    for k in range(72): e(f"v_mov_b32 v{V_ACC+k}, 0")
    e("s_waitcnt lgkmcnt(0)")
    srd(36, 28, WS_SIZE)
    e("s_mov_b32 s56, 4")
    e("s_cmp_lt_u32 s53, 14")
    e("s_cbranch_scc0 K1_VAR_D")

    def acc(j, T): return V_ACC + (j*2+T)*4
    def variant(tag, nffn):
        lab(f"K1_VAR_{tag}")
        Q = []
        PF = 4
        def rd_item(n):
            it = n % 36; st, rem = divmod(it, 18); kk, j = divmod(rem, 9)
            slot = V_RING + (n % NR)*4
            if j < 8:
                off = st*32768 + kk*8192
                e(f"ds_read_b64_tr_b16 {vr(slot,2)}, v{V_WA+j} offset:{off}"); Q.append(("w", n))
                e(f"ds_read_b64_tr_b16 {vr(slot+2,2)}, v{V_WA+j} offset:{off+1024}"); Q.append(("w", n))
                if st == 1 and kk == 1: e(f"v_xor_b32 v{V_WA+j}, 0x10000, v{V_WA+j}")
            else:
                e(f"ds_read_b128 {vr(slot,4)}, v{V_GA} offset:{(st*2+kk)*1024}"); Q.append(("w", n))
                if st == 1 and kk == 1: e(f"v_add_u32 v{V_GA}, 0x1000, v{V_GA}")
        def rd_x(ksn):
            k4 = ksn % 4; st, kk = divmod(k4, 2)
            for T in range(2):
                e(f"ds_read_b128 {vr(V_XF+(kk*2+T)*4,4)}, v{V_XA+kk} offset:{st*32768 + T*2048}"); Q.append(("x", ksn))
            if st == 1: e(f"v_xor_b32 v{V_XA+kk}, 0x10000, v{V_XA+kk}")
        def need(tags):
            idx = max([i for i, x in enumerate(Q) if x in tags], default=-1)
            if idx >= 0:
                e(f"s_waitcnt lgkmcnt({len(Q)-1-idx})")
                del Q[:idx+1]
        def stage_start(n0):
            e("s_barrier")
            rd_x(n0 // 9)
            for n in range(n0, n0+PF): rd_item(n)
        stage_start(0)
        stamp(2)
        lab(f"K1_LOOP_{tag}")
        Q0 = [(a, b) for a, b in Q]
        for n in range(36):
            st, rem = divmod(n, 18); kk, j = divmod(rem, 9)
            if rem + PF < 18: rd_item(n + PF)
            if rem == 3: rd_x(n // 9 + 1)
            if rem == 16:
                e("s_waitcnt lgkmcnt(0)"); Q.clear()
                stage_start(n + 2)
            need([("w", n), ("x", n // 9)])
            slot = V_RING + (n % NR)*4
            for T in range(2):
                a_ = acc(j, T); xf = vr(V_XF+(kk*2+T)*4, 4)
                if j < nffn: e(f"v_mfma_f32_16x16x32_bf16 {vr(a_,4)}, {vr(slot,4)}, {xf}, {vr(a_,4)}")
                else: e(f"v_mfma_f32_16x16x32_bf16 {vr(a_,4)}, {xf}, {vr(slot,4)}, {vr(a_,4)}")
        Q1 = [(a, b - (36 if a == "w" else 4)) for a, b in Q]
        assert Q0 == Q1, (Q0, Q1)
        e("s_sub_u32 s56, s56, 1")
        e("s_cmp_lg_u32 s56, 0")
        e(f"s_cbranch_scc1 K1_LOOP_{tag}")
        stamp(5)
        e("s_waitcnt lgkmcnt(0)")
        e("s_lshl_b32 s63, s55, 7")
        e(f"s_add_u32 s63, s63, {K1_Z}")
        S = V_E
        e(f"v_lshl_add_u32 v{t+4}, v{V_G}, 4, s63")
        def rd_S():
            e(f"ds_read_b128 {vr(S,4)}, v{t+4} offset:512")
            e(f"ds_read_b128 {vr(S+4,4)}, v{t+4} offset:1024")
            e(f"ds_read_b128 {vr(S+8,4)}, v{t+4} offset:{512+64}")
            e(f"ds_read_b128 {vr(S+12,4)}, v{t+4} offset:{1024+64}")
        if nffn:
            R = V_E + 16
            e(f"v_lshl_add_u32 v{t+1}, v{V_I}, 2, s63")
            e(f"ds_read_b32 v{R}, v{t+1} offset:512")
            e(f"ds_read_b32 v{R+2}, v{t+1} offset:1024")
            e(f"ds_read_b32 v{R+4}, v{t+1} offset:{512+64}")
            e(f"ds_read_b32 v{R+6}, v{t+1} offset:{1024+64}")
            CB = V_E + 24
            e(f"v_lshlrev_b32 v{t+5}, 4, v{V_G}")
            e(f"v_add_u32 v{t+5}, {K1_Z}, v{t+5}")
            def rd_cb(j):
                e(f"ds_read_b128 {vr(CB+4*j,4)}, v{t+5} offset:{64*j}")
                e(f"ds_read_b128 {vr(CB+32+4*j,4)}, v{t+5} offset:{1536+64*j}")
            for j in range(5): rd_cb(j)
            e("s_lshl_b32 s60, s52, 3")
            e("s_and_b32 s61, s55, 1")
            e("s_lshl_b32 s61, s61, 2")
            e("s_add_u32 s60, s60, s61")
            e("s_and_b32 s61, s55, 2")
            e("s_add_u32 s60, s60, s61")
            e(f"s_mul_i32 s60, s60, {TILE_B}")
            e("s_lshl_b32 s61, s53, 12")
            e("s_add_u32 s60, s60, s61")
            e(f"s_add_u32 s61, s60, {TILE_B}")
            O = V_RING
            for jp in range(4):
                e(f"s_waitcnt lgkmcnt({[6, 8, 8, 4][jp]})")
                if jp == 0:
                    for j in range(5, 8): rd_cb(j)
                    e(f"v_mul_f32 v{R}, v{R}, v{R+2}")
                    e(f"v_mul_f32 v{R+4}, v{R+4}, v{R+6}")
                if jp == 1: rd_S()
                for T in range(2):
                    o = O + ((jp*2+T) % 3)*12
                    for hh in range(2):
                        j = 2*jp + hh
                        for k in range(2):
                            e(f"v_pk_fma_f32 {vr(o+4*hh+2*k,2)}, {vr(R+4*T,2)}, {vr(CB+4*j+2*k,2)}, {vr(CB+32+4*j+2*k,2)} op_sel_hi:[0,1,1] neg_lo:[1,0,0] neg_hi:[1,0,0]")
                    for hh in range(2):
                        j = 2*jp + hh
                        for k in range(2):
                            e(f"v_pk_fma_f32 {vr(o+4*hh+2*k,2)}, {vr(R+4*T+2,2)}, {vr(acc(j,T)+2*k,2)}, {vr(o+4*hh+2*k,2)} op_sel_hi:[0,1,1]")
                    for k in range(8):
                        e(f"v_mul_f32 v{o+k}, v{o+k}, |v{o+k}|")
                    for k in range(4):
                        e(f"v_cvt_pk_bf16_f32 v{o+8+k}, v{o+2*k}, v{o+2*k+1}")
                    for k in range(4):
                        e(f"v_pk_max_i16 v{o+8+k}, v{o+8+k}, 0")
                    e(f"buffer_store_dwordx4 {vr(o+8,4)}, v{V_L16}, s[36:39], s{60+T} offen offset:{1024*jp}{fl(ST_H2)}")
            e("s_waitcnt lgkmcnt(0)")
        else:
            rd_S()
            CS = V_E + 16
            e(f"v_lshlrev_b32 v{t+1}, 2, v{V_I}")
            e(f"v_add_u32 v{t+1}, {K1_Z}, v{t+1}")
            for j in range(8): e(f"ds_read_b32 v{CS+j}, v{t+1} offset:{64*j}")
            e("s_waitcnt lgkmcnt(0)")
        e("s_or_b32 s63, s52, s55")
        e("s_cmp_eq_u32 s63, 0")
        e("s_cselect_b32 s76, 0xffff, 0")
        e("s_mov_b32 s77, 0")
        e("s_and_b32 s64, s55, 1")
        e("s_lshl_b32 s64, s64, 3")
        e("s_lshr_b32 s65, s52, 1")
        e("s_add_u32 s64, s64, s65")
        e("s_lshl_b32 s64, s64, 10")
        e("s_and_b32 s65, s52, 1")
        e("s_lshl_b32 s65, s65, 3")
        e("s_add_u32 s64, s64, s65")
        e("s_lshr_b32 s65, s55, 1")
        e("s_lshl_b32 s65, s65, 2")
        e("s_add_u32 s64, s64, s65")
        e(f"s_add_u32 s64, s64, {WS_AT:#x}")
        W = V_E + 90
        PL = W; MI = W + 2; VV = W + 4
        def xstore(tagj, vaddr, vdata):
            e("s_cmp_eq_u32 s76, 0")
            e(f"s_cbranch_scc1 K1_NOX_{tagj}")
            e("s_mov_b64 exec, s[76:77]")
            e(f"buffer_store_dword v{vdata}, v{vaddr}, s[36:39], 0 offen")
            e("s_mov_b64 exec, -1")
            lab(f"K1_NOX_{tagj}")
        if not nffn:
            e("s_sub_u32 s66, s53, 14")
            e("s_lshl_b32 s66, s66, 3")
            e("s_lshl_b32 s67, s66, 14")
            e("s_add_u32 s67, s67, s64")
            e(f"s_add_u32 s68, s67, {ASTR:#x}")
            e("s_lshl_b32 s66, s66, 6")
            e(f"s_add_u32 s66, s66, {WS_X512:#x}")
            e(f"v_lshl_add_u32 v{t+6}, v{V_I}, 2, s66")
            for j in range(8):
                for T in range(2):
                    a_ = acc(j, T)
                    for k in range(4): e(f"v_fma_f32 v{VV+k}, -v{S+8*T+k}, v{CS+j}, v{a_+k}")
                    for k in range(4): e(f"v_mul_f32 v{VV+k}, v{VV+k}, v{S+8*T+4+k}")
                    e(f"v_add_f32 v{VV+4}, v{VV}, v{VV+1}")
                    e(f"v_add_f32 v{VV+5}, v{VV+2}, v{VV+3}")
                    e(f"v_add_f32 v{PL+T}, v{VV+4}, v{VV+5}")
                    e(f"v_sub_f32 v{MI+T}, v{VV+4}, v{VV+5}")
                    if T == 0:
                        e(f"v_sub_f32 v{VV+6}, v{VV}, v{VV+1}")
                        e(f"v_cndmask_b32 v{PL}, v{PL}, v{VV+4}, s[76:77]")
                        e(f"v_cndmask_b32 v{MI}, v{MI}, v{VV+6}, s[76:77]")
                        xstore(f"{tag}_{j}", t+6, VV+5)
                        e(f"v_add_u32 v{t+6}, 64, v{t+6}")
                o = W + 12 + 2*(j & 1)
                e(f"v_cvt_pk_bf16_f32 v{o}, v{PL}, v{PL+1}")
                e(f"v_cvt_pk_bf16_f32 v{o+1}, v{MI}, v{MI+1}")
                e(f"buffer_store_dword v{o}, v{V_L16}, s[36:39], s67 offen{fl(ST_AT)}")
                e(f"buffer_store_dword v{o+1}, v{V_L16}, s[36:39], s68 offen{fl(ST_AT)}")
                e("s_add_u32 s67, s67, 0x4000")
                e("s_add_u32 s68, s68, 0x4000")
        e(f"v_lshl_add_u32 v{t}, s53, 4, v{V_I}")
        e(f"v_cmp_eq_u32 vcc, 0, v{t}")
        e("s_lshl_b32 s66, s53, 14")
        e(f"s_add_u32 s67, s66, {3*ASTR:#x}")
        e(f"s_add_u32 s66, s66, {2*ASTR:#x}")
        e(f"v_mov_b32 v{t+1}, s67")
        e(f"v_mov_b32 v{t+2}, {16*16384:#x}")
        e(f"v_cndmask_b32 v{t+1}, v{t+1}, v{t+2}, vcc")
        e(f"v_add_u32 v{t+1}, v{t+1}, v{V_L16}")
        e(f"v_mov_b32 v{t+3}, s66")
        e(f"v_mov_b32 v{t+2}, {ASTR + 16*16384:#x}")
        e(f"v_cndmask_b32 v{t+3}, v{t+3}, v{t+2}, vcc")
        e(f"v_add_u32 v{t+3}, v{t+3}, v{V_L16}")
        e(f"v_mov_b32 v{t+2}, -1.0")
        e(f"v_cndmask_b32 v{t+2}, v{t+2}, 1.0, vcc")
        e(f"v_add_u32 v{t+6}, 288, v{t}")
        e(f"v_mov_b32 v{t+7}, 0x100")
        e(f"v_cndmask_b32 v{t+6}, v{t+6}, v{t+7}, vcc")
        e(f"v_lshlrev_b32 v{t+6}, 2, v{t+6}")
        e(f"v_add_u32 v{t+6}, {WS_X512:#x}, v{t+6}")
        for T in range(2):
            a_ = acc(8, T)
            for k in range(4): e(f"v_mul_f32 v{VV+k}, v{a_+k}, v{S+8*T+4+k}")
            e(f"v_fma_f32 v{VV+4}, v{t+2}, v{VV+1}, v{VV}")
            e(f"v_fma_f32 v{VV+5}, v{t+2}, v{VV+3}, v{VV+2}")
            e(f"v_add_f32 v{PL+T}, v{VV+4}, v{VV+5}")
            e(f"v_sub_f32 v{MI+T}, v{VV+4}, v{VV+5}")
            if T == 0:
                e(f"v_sub_f32 v{VV+6}, v{VV}, v{VV+1}")
                e(f"v_cndmask_b32 v{VV+6}, 0, v{VV+6}, vcc")
                e(f"v_cndmask_b32 v{VV+7}, 0, v{VV+4}, vcc")
                e(f"v_cndmask_b32 v{PL}, v{PL}, v{VV+7}, s[76:77]")
                e(f"v_cndmask_b32 v{MI}, v{MI}, v{VV+6}, s[76:77]")
                xstore(f"{tag}_g", t+6, VV+5)
        o = W + 16
        e(f"v_cvt_pk_bf16_f32 v{o}, v{PL}, v{PL+1}")
        e(f"v_cvt_pk_bf16_f32 v{o+1}, v{MI}, v{MI+1}")
        e(f"buffer_store_dword v{o}, v{t+1}, s[36:39], s64 offen{fl(ST_AT)}")
        e(f"buffer_store_dword v{o+1}, v{t+3}, s[36:39], s64 offen{fl(ST_AT)}")
        stamp(6)
        if PROF: e("s_waitcnt vmcnt(0)")
        stamp(7)
        prof_end(0, 1)
        e("s_endpgm")
    variant("F", 8)
    variant("D", 0)
    lab("K1_END")
    e("s_endpgm")

PP = 272
K2_F = 0
K2_D = 3 * 64 * PP
DP = 208
DARR = 17 * DP
K2_LDS = K2_D + 4 * DARR

def gen_k2():
    DEPTH = opt("depth", 8); DD = opt("ddepth", 8)
    lab("k2_kernel")
    e("s_cmp_ge_u32 s2, 256")
    e("s_cbranch_scc1 K2_END")
    prof_begin(); stamp(0)
    load_ptrs()
    e("s_and_b32 s30, s2, 7")
    e("s_lshr_b32 s31, s2, 3")
    e("s_and_b32 s52, s30, 1")
    e("s_lshl_b32 s52, s52, 3")
    e("s_and_b32 s55, s31, 7")
    e("s_add_u32 s52, s52, s55")
    e("s_bfe_u32 s56, s30, 0x10001")
    e("s_lshr_b32 s53, s30, 2")
    e("s_lshl_b32 s53, s53, 2")
    e("s_lshr_b32 s55, s31, 3")
    e("s_add_u32 s53, s53, s55")
    e("s_lshl_b32 s57, s52, 5")
    e("s_add_u32 s57, s57, s56")
    V_LANE, V_I, V_G = 1, 2, 3
    V_L16 = 4
    V_XO = 5
    V_XV = 6
    V_B2 = 14
    V_OA = 22
    t = 30
    V_ACC = 48
    V_ST = 120
    e("v_lshrrev_b32 v1, 6, v0")
    e("v_and_b32 v2, 15, v0")
    e("v_readfirstlane_b32 s54, v1")
    e(f"v_and_b32 v{V_LANE}, 63, v0")
    e(f"v_lshrrev_b32 v{V_G}, 4, v{V_LANE}")
    e(f"v_lshlrev_b32 v{V_L16}, 4, v{V_LANE}")
    e("s_waitcnt lgkmcnt(0)")
    srd(36, 28, WS_SIZE)
    e("s_cmp_eq_u32 s54, 3")
    e("s_cbranch_scc1 K2_DFT")
    e("s_lshl_b32 s60, s52, 1")
    e("s_add_u32 s60, s60, s56")
    e(f"s_mul_i32 s60, s60, {4*TILE_B}")
    for n in range(4):
        e(f"s_add_u32 s61, s60, {n*TILE_B}")
        e(f"v_add_u32 v{V_OA+4+n}, s61, v{V_L16}")
    e(f"s_mul_i32 s62, s53, {2*TILE_B}")
    e(f"s_add_u32 s61, s62, {WS_W2:#x}")
    e(f"v_add_u32 v{V_OA}, s61, v{V_L16}")
    e(f"v_add_u32 v{V_OA+1}, {TILE_B:#x}, v{V_OA}")
    e(f"s_sub_u32 s61, {WS_W2 + 30*TILE_B:#x}, s62")
    e(f"v_add_u32 v{V_OA+2}, s61, v{V_L16}")
    e(f"v_add_u32 v{V_OA+3}, {TILE_B:#x}, v{V_OA+2}")
    e("s_mul_i32 s68, s54, 19456")
    NS = 19
    def st(s, q):
        k = s % DEPTH
        return vr(V_ST + k*32 + q*4, 4) if k < 4 else ar((k-4)*32 + q*4, 4)
    def ld(s):
        if s and s % 4 == 0: e("s_add_u32 s68, s68, 0x1000")
        for m in range(4):
            e(f"buffer_load_dwordx4 {st(s,m)}, v{V_OA+m}, s[36:39], s68 offen offset:{1024*(s%4)}")
            e(f"buffer_load_dwordx4 {st(s,4+m)}, v{V_OA+4+m}, s[36:39], s68 offen offset:{1024*(s%4)}")
    def acc(m, n): return V_ACC + (m*4+n)*4
    def mm(s):
        for m in range(4):
            for n in range(4):
                c_ = "0" if s == 0 else vr(acc(m,n),4)
                e(f"v_mfma_f32_16x16x32_bf16 {vr(acc(m,n),4)}, {st(s,m)}, {st(s,4+n)}, {c_}")
    def fin_loads():
        srd(32, 4, 2048*512*2)
        srd(40, 22, 512*2)
        srd(60, 24, 2048*512*2)
        e(f"v_bfe_u32 v{t}, v{V_LANE}, 2, 2")
        quad_consts(t, t+1, t+2, t+3, t+4)
        e("s_lshl_b32 s66, s54, 3")
        e("s_add_u32 s66, s66, s57")
        e(f"v_lshl_add_u32 v{t+4}, v{V_G}, 1, s66")
        e(f"v_mad_i32_i24 v{t+5}, v{t+2}, v{t+4}, v{t+1}")
        e(f"v_cmp_eq_u32 vcc, 0, v{t+4}")
        e(f"v_and_b32 v{t+6}, 3, v{V_LANE}")
        e(f"v_lshlrev_b32 v{t+6}, 4, v{t+6}")
        e(f"v_cndmask_b32 v{t+5}, v{t+5}, v{t+3}, vcc")
        e(f"v_lshl_add_u32 v{V_XO}, v{t+5}, 10, v{t+6}")
        e("s_lshl_b32 s64, s53, 6")
        e(f"s_sub_u32 s65, {480*2}, s64")
        e(f"buffer_load_dwordx4 {vr(V_XV,4)}, v{V_XO}, s[32:35], s64 offen")
        e(f"buffer_load_dwordx4 {vr(V_XV+4,4)}, v{V_XO}, s[32:35], s65 offen")
        e(f"buffer_load_dwordx4 {vr(V_B2,4)}, v{t+6}, s[40:43], s64 offen")
        e(f"buffer_load_dwordx4 {vr(V_B2+4,4)}, v{t+6}, s[40:43], s65 offen")
    for s in range(DEPTH - 1):
        ld(s)
        if s == 1: fin_loads()
    stamp(1)
    for s in range(NS):
        if s == 1: stamp(2)
        if s == 8: stamp(3)
        nl = s + DEPTH - 1
        extra = 4 if s < 2 else 0
        if nl < NS - 1:
            ld(nl); e(f"s_waitcnt vmcnt({min(63, 8*(DEPTH-1) + extra)})")
        elif nl == NS - 1:
            e("s_cmp_eq_u32 s54, 2")
            e("s_cbranch_scc1 K2_W2TAIL")
            ld(nl); e(f"s_waitcnt vmcnt({8*(DEPTH-1)})")
        else:
            e(f"s_waitcnt vmcnt({8*(NS-1-s)})")
        mm(s)
    e("s_branch K2_FFN_DONE")
    lab("K2_W2TAIL")
    for s in range(NS - DEPTH, NS - 1):
        e(f"s_waitcnt vmcnt({8*(NS-2-s)})")
        mm(s)
    lab("K2_FFN_DONE")
    stamp(4)
    e(f"s_mul_i32 s66, s54, {64*PP}")
    e(f"v_mul_u32_u24 v{t}, {PP}, v{V_I}")
    e(f"v_lshl_add_u32 v{t}, v{V_G}, 4, v{t}")
    e(f"v_add_u32 v{t}, s66, v{t}")
    nop(6)
    for m in range(4):
        for n in range(4):
            e(f"ds_write_b128 v{t}, {vr(acc(m,n),4)} offset:{n*16*PP + m*64}")
    e("s_branch K2_FINAL")
    lab("K2_DFT")
    e(f"s_mul_i32 s68, s56, {ASTR:#x}")
    e("s_lshl_b32 s69, s53, 15")
    e("s_add_u32 s68, s68, s69")
    e(f"s_add_u32 s68, s68, {WS_AT:#x}")
    e(f"s_add_u32 s69, s68, {2*ASTR:#x}")
    e(f"v_add_u32 v{V_OA+1}, 0x4000, v{V_L16}")
    e(f"v_lshlrev_b32 v{V_OA+2}, 8, v{V_G}")
    e(f"v_add_u32 v{V_OA+2}, 0x8000, v{V_OA+2}")
    OFF = [V_L16, V_OA+1, V_OA+2]
    def dst(s, q):
        return ar((s % DD)*24 + q*4, 4)
    def dld(s):
        if s and s % 4 == 0:
            e("s_add_u32 s68, s68, 0x1000"); e("s_add_u32 s69, s69, 0x1000")
        for m in range(3):
            e(f"buffer_load_dwordx4 {dst(s,m)}, v{OFF[m]}, s[36:39], s68 offen offset:{1024*(s%4)}")
            e(f"buffer_load_dwordx4 {dst(s,3+m)}, v{OFF[m]}, s[36:39], s69 offen offset:{1024*(s%4)}")
    XA = V_ST; XB = XA + 12; CF = XB + 12
    XR = CF + 4
    TG = XR + 8
    FR = TG + 16
    for s in range(2): dld(s)
    e("s_lshl_b32 s70, s53, 7")
    e(f"s_add_u32 s70, s70, {WS_X512:#x}")
    e(f"v_lshlrev_b32 v{t+7}, 4, v{V_G}")
    for m in range(3):
        e(f"buffer_load_dwordx4 {vr(XA+4*m,4)}, v{t+7}, s[36:39], s70 offen offset:{64*m}")
        e(f"buffer_load_dwordx4 {vr(XB+4*m,4)}, v{t+7}, s[36:39], s70 offen offset:{288*4+64*m}")
    fin_loads()
    for s in range(2, DD - 1): dld(s)
    stamp(1)
    VT = t + 10; VINC = t + 11; VT1 = t + 12; CRE = t + 13; CIM = t + 14
    e(f"v_lshl_add_u32 v{VT}, v{V_I}, 1, s57")
    e(f"v_cvt_f32_u32 v{VT}, v{VT}")
    e(f"v_mul_f32 v{VINC}, 0x3d000000, v{VT}")
    e(f"v_mul_f32 v{VT1}, 0x3a000000, v{VT}")
    e(f"v_mul_f32 v{CRE}, 0x3e800000, v{VT}")
    e(f"v_sin_f32 v{CIM}, -v{CRE}")
    e(f"v_cos_f32 v{CRE}, v{CRE}")
    e(f"v_lshlrev_b32 v{t+8}, 1, v{V_G}")
    def init_args(sp):
        for k in range(8):
            e(f"v_add_u32 v{t+9}, {8*k + sp}, v{t+8}")
            e(f"v_cvt_f32_u32 v{t+9}, v{t+9}")
            e(f"v_mul_f32 v{XR+k}, v{t+9}, v{VT1}")
    e(f"v_and_b32 v{t+9}, 1, v{V_G}")
    e(f"v_mov_b32 v{CF}, 0x80008000")
    e(f"v_mul_lo_u32 v{t+9}, v{t+9}, v{CF}")
    e(f"v_or_b32 v{CF}, 0x3f803f80, v{t+9}")
    for k in range(1, 4): e(f"v_mov_b32 v{CF+k}, v{CF}")
    def gen(s):
        if s % 8 == 0: init_args(s // 8)
        else:
            for k in range(8): e(f"v_add_f32 v{XR+k}, v{XR+k}, v{VINC}")
        for k in range(8):
            e(f"v_cos_f32 v{TG+k}, v{XR+k}")
            e(f"v_sin_f32 v{TG+8+k}, -v{XR+k}")
        e("s_nop 0")
        f = FR + (s % 2)*8
        for k in range(8): e(f"v_cvt_pk_bf16_f32 v{f+k}, v{TG+2*k}, v{TG+2*k+1}")
    def pacc(ph, sp, m): return V_ACC + ((ph*2+sp)*3+m)*4
    def sacc(ph, m): return V_ACC + 48 + (ph*3+m)*4
    def dmm(s):
        sp, h = divmod(s, 8); f = FR + (s % 2)*8
        for ph in range(2):
            for m in range(3):
                a_ = pacc(ph, sp, m); c_ = "0" if h == 0 else vr(a_, 4)
                e(f"v_mfma_f32_16x16x32_bf16 {vr(a_,4)}, {dst(s,3*ph+m)}, {vr(f+4*ph,4)}, {c_}")
        for m in range(3):
            a_ = sacc(sp, m); c_ = "0" if h == 0 else vr(a_, 4)
            e(f"v_mfma_f32_16x16x32_bf16 {vr(a_,4)}, {dst(s,3*sp+m)}, {vr(CF,4)}, {c_}")
    ND = 16
    gen(0)
    for s in range(ND):
        if s == 1: stamp(2)
        if s == 8: stamp(3)
        nl = s + DD - 1
        if nl < ND: dld(nl)
        if s + 1 < ND: gen(s + 1)
        else: nop(2)
        extra = 10 if s < 2 else 0
        e(f"s_waitcnt vmcnt({min(63, 6*(min(nl, ND-1) - s) + extra)})")
        dmm(s)
    stamp(4)
    e("s_cmp_eq_u32 s53, 0")
    e("s_cselect_b32 s72, 0xffff, 0")
    e("s_mov_b32 s73, 0")
    e("s_cmp_eq_u32 s53, 7")
    e("s_cselect_b32 s74, 0xffff, 0")
    e("s_mov_b32 s75, 0")
    e(f"v_mul_u32_u24 v{t}, {DP}, v{V_I}")
    e(f"v_add3_u32 v{t}, v{t}, v{t+7}, 0")
    e(f"v_add_u32 v{t}, {K2_D}, v{t}")
    nop(6)
    O = TG
    for m in range(3):
        EP, OP, EQ, OQ = pacc(0,0,m), pacc(0,1,m), pacc(1,0,m), pacc(1,1,m)
        o = O + (m % 2)*16
        for k in range(4):
            e(f"v_fma_f32 v{EP+k}, v{CRE}, v{XA+4*m+k}, v{EP+k}")
            e(f"v_fma_f32 v{EQ+k}, v{CIM}, v{XB+4*m+k}, v{EQ+k}")
        if m != 1:
            msk = "s[72:73]" if m == 0 else "s[74:75]"
            e(f"v_cndmask_b32 v{EQ}, v{EQ}, 0, {msk}")
            e(f"v_cndmask_b32 v{OQ}, v{OQ}, 0, {msk}")
            e(f"v_cndmask_b32 v{sacc(1,m)}, v{sacc(1,m)}, 0, {msk}")
        for k in range(4):
            e(f"v_add_f32 v{o+k}, v{EP+k}, v{OP+k}")
            e(f"v_sub_f32 v{o+8+k}, v{EP+k}, v{OP+k}")
            e(f"v_add_f32 v{EP+k}, v{EQ+k}, v{OQ+k}")
            e(f"v_sub_f32 v{OP+k}, v{OQ+k}, v{EQ+k}")
        for k in range(4):
            e(f"v_add_f32 v{o+4+k}, v{o+k}, v{EP+k}")
            e(f"v_sub_f32 v{o+k}, v{o+k}, v{EP+k}")
            e(f"v_add_f32 v{o+12+k}, v{o+8+k}, v{OP+k}")
            e(f"v_sub_f32 v{o+8+k}, v{o+8+k}, v{OP+k}")
        for a in range(4):
            e(f"ds_write_b128 v{t}, {vr(o+4*a,4)} offset:{a*DARR + m*64}")
    for m in range(3):
        for k in range(4):
            e(f"v_add_f32 v{sacc(0,m)+k}, v{sacc(0,m)+k}, v{XA+4*m+k}")
            e(f"v_sub_f32 v{XA+4*m+k}, v{sacc(0,m)+k}, v{sacc(1,m)+k}")
            e(f"v_add_f32 v{sacc(0,m)+k}, v{sacc(0,m)+k}, v{sacc(1,m)+k}")
    e(f"v_cmp_eq_u32 vcc, 0, v{V_I}")
    e("s_and_saveexec_b64 s[76:77], vcc")
    for m in range(3):
        e(f"ds_write_b128 v{t}, {vr(sacc(0,m),4)} offset:{16*DP + m*64}")
        e(f"ds_write_b128 v{t}, {vr(XA+4*m,4)} offset:{DARR + 16*DP + m*64}")
    e("s_mov_b64 exec, s[76:77]")
    lab("K2_FINAL")
    e(f"v_lshrrev_b32 v{t+1}, 2, v{V_LANE}")
    e("s_lshl_b32 s66, s54, 4")
    e(f"v_add_u32 v{t+2}, s66, v{t+1}")
    e(f"v_mul_u32_u24 v{t+2}, {PP}, v{t+2}")
    e(f"v_and_b32 v{t+3}, 3, v{V_LANE}")
    e(f"v_lshl_add_u32 v{t+2}, v{t+3}, 5, v{t+2}")
    e(f"v_and_b32 v{t+4}, 3, v{t+1}")
    e("s_lshl_b32 s66, s54, 2")
    e(f"v_add_u32 v{t+5}, s66, v{V_G}")
    e(f"v_or_b32 v{t+6}, s57, v{t+5}")
    e(f"v_cmp_eq_u32 vcc, 0, v{t+6}")
    e(f"v_lshlrev_b32 v{t+8}, 1, v{t+4}")
    e(f"v_mov_b32 v{t+9}, 0x48")
    e(f"v_lshrrev_b32 v{t+9}, v{t+8}, v{t+9}")
    e(f"v_and_b32 v{t+9}, 3, v{t+9}")
    e(f"v_and_b32 v{t+8}, 2, v{t+4}")
    e(f"v_lshlrev_b32 v{t+8}, 3, v{t+8}")
    e(f"v_cndmask_b32 v{t+4}, v{t+4}, v{t+9}, vcc")
    e(f"v_cndmask_b32 v{t+5}, v{t+5}, v{t+8}, vcc")
    e(f"v_mul_u32_u24 v{t+5}, {DP}, v{t+5}")
    e(f"v_add_u32 v{t+5}, {K2_D}, v{t+5}")
    e(f"v_mov_b32 v{t+8}, {DARR}")
    e(f"v_mad_u32_u24 v{t+6}, v{t+4}, v{t+8}, v{t+5}")
    e(f"v_lshl_add_u32 v{t+6}, v{t+3}, 5, v{t+6}")
    e(f"v_xor_b32 v{t+4}, 1, v{t+4}")
    e(f"v_mad_u32_u24 v{t+5}, v{t+4}, v{t+8}, v{t+5}")
    e(f"v_lshlrev_b32 v{t+3}, 5, v{t+3}")
    e(f"v_sub_u32 v{t+5}, v{t+5}, v{t+3}")
    e("s_waitcnt vmcnt(0) lgkmcnt(0)")
    stamp(5)
    e("s_barrier")
    stamp(6)
    R = V_ACC
    Y = V_ST
    for b in range(2):
        for w in range(3):
            for hh in range(2):
                e(f"ds_read_b128 {vr(R+(b*3+w)*8+4*hh,4)}, v{t+2} offset:{w*64*PP + b*128 + hh*16}")
        if b == 0:
            e(f"ds_read_b128 {vr(Y,4)}, v{t+6}")
            e(f"ds_read_b128 {vr(Y+4,4)}, v{t+6} offset:16")
    e("s_waitcnt lgkmcnt(6)")
    for k in range(8):
        e(f"ds_read_b32 v{Y+8+k}, v{t+5} offset:{(32-k)*4}")
    U = V_ST + 16
    for b in range(2):
        u = U + b*32; p0 = R + b*24
        for k in range(4):
            e(f"v_lshlrev_b32 v{u+2*k}, 16, v{V_B2+4*b+k}")
            e(f"v_and_b32 v{u+2*k+1}, 0xffff0000, v{V_B2+4*b+k}")
        if b == 1: e("s_waitcnt lgkmcnt(8)")
        for k in range(4):
            e(f"v_pk_add_f32 {vr(p0+2*k,2)}, {vr(p0+2*k,2)}, {vr(p0+8+2*k,2)}")
            e(f"v_pk_add_f32 {vr(u+2*k,2)}, {vr(u+2*k,2)}, {vr(p0+16+2*k,2)}")
        for k in range(4):
            e(f"v_pk_add_f32 {vr(u+2*k,2)}, {vr(u+2*k,2)}, {vr(p0+2*k,2)}")
        for k in range(8): e(f"v_mul_f32 v{u+8+k}, 0xbfb8aa3b, v{u+k}")
        for k in range(8): e(f"v_exp_f32 v{u+8+k}, v{u+8+k}")
        for k in range(4):
            e(f"v_lshlrev_b32 v{u+16+2*k}, 16, v{V_XV+4*b+k}")
            e(f"v_and_b32 v{u+16+2*k+1}, 0xffff0000, v{V_XV+4*b+k}")
        for k in range(8): e(f"v_add_f32 v{u+8+k}, 1.0, v{u+8+k}")
        for k in range(8): e(f"v_rcp_f32 v{u+8+k}, v{u+8+k}")
        if b == 1: e("s_waitcnt lgkmcnt(0)")
        else: e("s_nop 0")
        for k in range(4):
            e(f"v_pk_mul_f32 {vr(u+2*k,2)}, {vr(u+2*k,2)}, {vr(u+8+2*k,2)}")
        for k in range(4):
            e(f"v_pk_fma_f32 {vr(u+2*k,2)}, {vr(Y+8*b+2*k,2)}, {vr(u+2*k,2)}, {vr(u+16+2*k,2)}")
        for k in range(4):
            e(f"v_cvt_pk_bf16_f32 v{u+24+k}, v{u+2*k}, v{u+2*k+1}")
        e(f"buffer_store_dwordx4 {vr(u+24,4)}, v{V_XO}, s[60:63], s{64+b} offen{fl(ST_OUT)}")
    if PROF: e("s_waitcnt vmcnt(0)")
    stamp(7)
    prof_end(1, 1)
    lab("K2_END")
    e("s_endpgm")

def kd(name, nvgpr, acc_off):
    return f""".amdhsa_kernel {name}
  .amdhsa_next_free_vgpr {nvgpr}
  .amdhsa_next_free_sgpr 102
  .amdhsa_accum_offset {acc_off}
  .amdhsa_group_segment_fixed_size 0
  .amdhsa_kernarg_size 104
  .amdhsa_user_sgpr_count 2
  .amdhsa_user_sgpr_kernarg_segment_ptr 1
  .amdhsa_system_sgpr_workgroup_id_x 1
.end_amdhsa_kernel
"""

def main(out):
    hdr = f"""; FNet (folded real 2-D DFT) * silu(squared-relu FFN) + residual, two launches.
; @launch kernel=k1_kernel grid=(256,1,1) block=(512,1,1) lds={K1_LDS}
; @launch kernel=k2_kernel grid=(256,1,1) block=(256,1,1) lds={K2_LDS}
.amdgcn_target "amdgcn-amd-amdhsa--gfx950"
.text
"""
    body = []
    for nm, fn in (("k1_kernel", gen_k1), ("k2_kernel", gen_k2)):
        L.clear()
        fn()
        body.append(f".globl {nm}\n.p2align 8\n.type {nm},@function\n" + "\n".join(L) + "\n")
    txt = hdr + "".join(body) + '.section .rodata,"a"\n.p2align 6\n' + kd("k1_kernel", 256, 256) + ".p2align 6\n" + kd("k2_kernel", 256+192, 256)
    open(out, "w").write(txt)

if __name__ == "__main__":
    main(sys.argv[1] if len(sys.argv) > 1 else f"cdna_kernels/{NAME}.s")
```

```python
import sys, os
NAME = "recurrent_scan__spectral_fnet__dense_activation_squared_relu__prompt"
L = []
def e(s): L.append("    " + s)
def lab(s): L.append(s + ":")
def nop(n):
    while n > 0:
        k = min(n, 16); e(f"s_nop {k-1}"); n -= k
def vr(b, n): return f"v[{b}:{b+n-1}]" if n > 1 else f"v{b}"
def ar(b, n): return f"a[{b}:{b+n-1}]" if n > 1 else f"a{b}"

PROF = int(os.environ.get("PROF", "0"))
OPT = dict(kv.split("=") for kv in os.environ.get("OPT", "").split(",") if kv)
def opt(k, d): return type(d)(OPT.get(k, d))
PM = int(os.environ.get("PM", "0"))
def stamp(k, pm=0):
    if PROF and (pm == PM or k == 0): e(f"s_memtime s[{80+2*k}:{81+2*k}]")
def prof_begin():
    if PROF: e("s_memrealtime s[96:97]")
def prof_end(kidx, tmp):
    if not PROF: return
    e("s_memrealtime s[98:99]")
    e("s_waitcnt lgkmcnt(0)")
    e("s_mov_b32 s76, s26"); e("s_and_b32 s77, s27, 0xffff"); e("s_mov_b32 s78, 0x40000"); e("s_mov_b32 s79, 0x00020000")
    e("s_lshl_b32 s30, s2, 3"); e("s_add_u32 s30, s30, s54"); e("s_lshl_b32 s30, s30, 6"); e(f"s_add_u32 s30, s30, {kidx*131072}")
    e("s_mov_b64 exec, 1")
    e(f"v_mov_b32 v{tmp}, 0")
    for k in range(10):
        e(f"v_mov_b32 v{tmp+1}, s{80+2*k}")
        e(f"buffer_store_dword v{tmp+1}, v{tmp}, s[76:79], s30 offen offset:{4*k}")
        e("s_nop 1")

TILE_B = opt('tk', 57) * 1024
WS_H2 = 0
WS_W2 = 0x800000
WS_AT = 0xA00000
ASTR = 17 * 16384
WS_X512 = WS_AT + 4 * ASTR
WS_SIZE = WS_X512 + 4096

def load_ptrs():
    e("s_load_dwordx16 s[4:19], s[0:1], 0")
    e("s_load_dwordx8 s[20:27], s[0:1], 64")
    e("s_load_dwordx2 s[28:29], s[0:1], 96")
def srd(d, p, nbytes):
    e(f"s_mov_b32 s{d}, s{p}")
    e(f"s_and_b32 s{d+1}, s{p+1}, 0xffff")
    e(f"s_mov_b32 s{d+2}, {nbytes:#x}")
    e(f"s_mov_b32 s{d+3}, 0x00020000")

def quad_consts(vmem, vbase, vsgn, vspec, tmp):
    e(f"v_mov_b32 v{vbase}, 0x400")
    e(f"v_cmp_eq_u32 vcc, 0, v{vmem}")
    e(f"v_add_u32 v{tmp}, 1, v{vmem}")
    e(f"v_and_b32 v{tmp}, 2, v{tmp}")
    e(f"v_cndmask_b32 v{vbase}, v{vbase}, 0, vcc")
    e(f"v_sub_u32 v{vsgn}, 1, v{tmp}")
    e(f"v_cmp_eq_u32 vcc, 1, v{vmem}")
    e(f"v_mov_b32 v{tmp}, 0x800")
    e(f"v_and_b32 v{vspec}, 1, v{vmem}")
    e(f"v_cndmask_b32 v{vbase}, v{vbase}, v{tmp}, vcc")
    e(f"v_lshlrev_b32 v{vspec}, 10, v{vspec}")
    e(f"v_lshrrev_b32 v{tmp}, 1, v{vmem}")
    e(f"v_lshl_add_u32 v{vspec}, v{tmp}, 9, v{vspec}")

ST_H2 = opt("sth2", "sc1")
ST_W2 = opt("stw2", "sc1")
ST_AT = opt("stat", "sc1")
ST_OUT = opt("stout", "")
def fl(s): return (" " + s.replace("+", " ")) if s else ""

SLOT = 24576
NSL = 5
K1_WB = 3 * SLOT
K1_SP = 5 * SLOT
K1_TR = K1_WB + 32768
K1_Z = K1_SP + 32768
K1_LDS = K1_Z + 2048
def goff(g): return K1_SP + g*8192 if g < 4 else K1_WB + (g-4)*8192

def gen_k1():
    SCH = [x.split(".") if x else [] for x in opt("sch", "s0.s1.s2/s3.s4//s5/s6/s7.b0/b1.b2.b3.b4/b5.b6.b7/t").split("/")]
    assert len(SCH) == 9
    for k, l in enumerate(SCH):
        for x in l:
            if x[0] == "s": assert int(x[1]) < 5 or k >= int(x[1]) - 2
            if x[0] == "b": assert k >= {0:0,1:0,2:0,3:0,4:6,5:6,6:6,7:7}[int(x[1])]
            if x == "t": assert k >= 7
    flat = sum(SCH, []); assert flat[-1] == "t"
    NP1 = opt("np1", 4)
    assert [x for x in flat if x[0] == "b"] == [f"b{i}" for i in range(8)]
    lab("k1_kernel")
    e("s_cmp_ge_u32 s2, 256")
    e("s_cbranch_scc1 K1_END")
    prof_begin(); stamp(0)
    load_ptrs()
    e("s_and_b32 s78, s2, 1")
    e("s_and_b32 s52, s2, 6")
    e("s_bfe_u32 s55, s2, 0x10003")
    e("s_add_u32 s52, s52, s55")
    e("s_lshr_b32 s53, s2, 4")
    e("s_lshl_b32 s73, s52, 1")
    e("s_add_u32 s73, s73, s78")
    e("s_add_u32 s73, s73, s53")
    if opt("rh", 0): e("s_add_u32 s73, s52, s53")
    e(f"s_and_b32 s73, s73, {opt('rm', 7)}")
    if opt("rs", 0): e(f"s_lshl_b32 s73, s73, {opt('rs', 0)}")
    V_LANE, V_I, V_G = 1, 2, 3
    V_WA = 4
    V_XA = 8
    V_GA = 10
    V_L16 = 11
    V_ZG = 12
    V_ATO = 13
    t = 16
    R = 24
    V_RING = 32
    V_X = 56
    V_ACC = 184
    V_E = 240
    NR = 6; PF = 4
    def xreg(ks, T): return V_X + (ks*2+T)*4
    def soff(st): return (st % NSL)*SLOT - (K1_WB if st in (3, 4) else 0)
    e("v_lshrrev_b32 v1, 6, v0")
    e("v_and_b32 v2, 15, v0")
    e("v_readfirstlane_b32 s54, v1")
    e(f"v_and_b32 v{V_LANE}, 63, v0")
    e(f"v_lshrrev_b32 v{V_G}, 4, v{V_LANE}")
    e("s_and_b32 s55, s54, 3")
    e("s_lshl_b32 s62, s55, 12")
    e("s_cmp_lt_u32 s54, 4")
    e("s_cbranch_scc1 K1_CONS")
    def xa_setup():
        e(f"v_lshrrev_b32 v{t}, 1, v{V_I}")
        e(f"v_xor_b32 v{t}, v{t}, v{V_G}")
        e(f"v_lshlrev_b32 v{t}, 4, v{t}")
        e(f"v_lshl_add_u32 v{t}, v{V_I}, 7, v{t}")
        e(f"v_add_u32 v{V_XA}, s62, v{t}")
        e(f"v_add_u32 v{V_XA}, 0x2000, v{V_XA}")
        e("s_and_b32 s64, s55, 1")
        e("s_lshl_b32 s64, s64, 6")
        e(f"v_xor_b32 v{V_XA}, s64, v{V_XA}")
        e(f"v_xor_b32 v{V_XA+1}, 64, v{V_XA}")
    def cs_add(src, off):
        e("s_mov_b64 exec, 0xffff")
        for q in range(2): e(f"ds_add_f32 v10, v{src+4*q} offset:{off+64*q}")
        e("s_mov_b64 exec, -1")
    def wa_setup(js, add):
        e(f"v_lshrrev_b32 v{t}, 2, v{V_I}")
        e(f"v_and_b32 v{t+1}, 1, v{V_G}")
        e(f"v_lshrrev_b32 v{t+2}, 1, v{t}")
        e(f"v_lshl_add_u32 v{t+2}, v{t+1}, 1, v{t+2}")
        e(f"v_lshl_add_u32 v{t}, v{V_G}, 3, v{t}")
        e(f"v_lshlrev_b32 v{t}, 7, v{t}")
        e(f"v_lshl_add_u32 v{t}, v{t+2}, 5, v{t}")
        e(f"v_and_b32 v{t+1}, 3, v{V_I}")
        e(f"v_lshl_add_u32 v{t}, v{t+1}, 3, v{t}")
        if add: e(f"v_add_u32 v{t}, {add}, v{t}")
        e("s_and_b32 s64, s55, 1")
        e("s_lshl_b32 s64, s64, 12")
        e("s_and_b32 s79, s55, 2")
        e("s_lshl_b32 s79, s79, 5")
        e("s_or_b32 s64, s64, s79")
        e("s_lshl_b32 s79, s79, 1")
        e(f"v_xor_b32 v{t}, s64, v{t}")
        for q, j in enumerate(js): e(f"v_xor_b32 v{V_WA+q}, {j<<5}, v{t}")
        e(f"v_lshlrev_b32 v{V_L16}, 4, v{V_LANE}")
        e(f"v_lshlrev_b32 v{V_ZG}, 4, v{V_G}")
        e(f"v_add_u32 v{V_ZG}, {K1_Z}, v{V_ZG}")
    def out_setup(jp0):
        e("s_lshl_b32 s60, s52, 4")
        e("s_lshr_b32 s61, s55, 1")
        e("s_lshl_b32 s61, s61, 3")
        e("s_add_u32 s60, s60, s61")
        e("s_lshl_b32 s61, s78, 2")
        e("s_add_u32 s60, s60, s61")
        e("s_and_b32 s61, s55, 1")
        e("s_lshl_b32 s61, s61, 1")
        e("s_add_u32 s60, s60, s61")
        e(f"s_mul_i32 s60, s60, {TILE_B}")
        e("s_lshl_b32 s61, s53, 12")
        e("s_add_u32 s60, s60, s61")
        if jp0: e(f"s_add_u32 s60, s60, {1024*jp0}")
        e("s_lshl_b32 s61, s79, 3")
        e("s_add_u32 s60, s60, s61")
        e(f"s_add_u32 s61, s60, {TILE_B}")
        e("s_or_b32 s63, s52, s55")
        e("s_or_b32 s63, s63, s78")
        e("s_cmp_eq_u32 s63, 0")
        e("s_cselect_b32 s76, 0xffff, 0")
        e("s_mov_b32 s77, 0")
        e("s_lshl_b32 s64, s78, 3")
        e("s_add_u32 s64, s64, s52")
        e("s_lshl_b32 s64, s64, 10")
        e("s_lshl_b32 s65, s55, 8")
        e("s_add_u32 s64, s64, s65")
        e(f"s_add_u32 s64, s64, {WS_AT:#x}")
        e("s_lshl_b32 s63, s55, 7")
        e("s_and_b32 s66, s53, 1")
        e("s_lshl_b32 s66, s66, 3")
        if jp0: e(f"s_add_u32 s66, s66, {2*jp0}")
        e("s_lshl_b32 s67, s66, 14")
        e("s_add_u32 s67, s67, s64")
        e("s_lshl_b32 s65, s79, 8")
        e("s_add_u32 s67, s67, s65")
        e("s_lshl_b32 s65, s79, 4")
        e("s_sub_u32 s65, 0x400, s65")
        e("s_lshl_b32 s66, s66, 6")
        e(f"s_add_u32 s66, s66, {WS_X512:#x}")
        e(f"v_lshl_add_u32 v14, v{V_I}, 2, s66")
        e(f"v_and_b32 v{t+5}, 1, v{V_G}")
        e(f"v_mul_u32_u24 v{t+5}, {ASTR:#x}, v{t+5}")
        e(f"v_lshrrev_b32 v{t+6}, 1, v{V_G}")
        e(f"v_lshl_add_u32 v{t+5}, v{t+6}, 14, v{t+5}")
        e(f"v_lshl_add_u32 v{V_ATO}, v{V_I}, 4, v{t+5}")
        e(f"v_lshlrev_b32 v15, 2, v{V_I}")
        e(f"v_add_u32 v15, {K1_Z}, v15")
        e(f"v_xor_b32 v10, s79, v15")
    if opt("hprio", 1): e("s_setprio 3")
    V_CS = 216; V_XO = 224; V_WO = 228; V_TO = 230; V_TA = 231; V_TD = 232; V_ONES = V_E
    h = 36
    e("s_lshl_b32 s56, s52, 6")
    e("s_add_u32 s56, s56, s78")
    e("s_lshl_b32 s57, s55, 4")
    e("s_add_u32 s56, s56, s57")
    e(f"v_bfe_u32 v{h}, v{V_LANE}, 3, 2")
    quad_consts(h, h+1, h+2, h+3, h+4)
    e(f"v_lshrrev_b32 v{h+4}, 5, v{V_LANE}")
    e(f"v_lshl_add_u32 v{h+4}, v{h+4}, 1, s56")
    e(f"v_and_b32 v{h+5}, 7, v{V_LANE}")
    e(f"v_xor_b32 v{h+5}, v{h+5}, v{V_G}")
    e(f"v_lshlrev_b32 v{h+5}, 4, v{h+5}")
    e(f"v_xor_b32 v{h+6}, 64, v{h+5}")
    for q in range(4):
        if q: e(f"v_add_u32 v{h+4}, 4, v{h+4}")
        e(f"v_mad_i32_i24 v{h+7}, v{h+2}, v{h+4}, v{h+1}")
        if q == 0:
            e(f"v_cmp_eq_u32 vcc, 0, v{h+4}")
            nop(2)
            e(f"v_cndmask_b32 v{h+7}, v{h+7}, v{h+3}, vcc")
        e(f"v_lshl_add_u32 v{V_XO+q}, v{h+7}, 10, v{h+5+(q&1)}")
    e(f"v_and_b32 v{h}, 7, v{V_LANE}")
    e(f"v_and_b32 v{h+1}, 1, v{V_G}")
    e(f"v_lshlrev_b32 v{h+1}, 1, v{h+1}")
    e(f"v_xor_b32 v{h}, v{h}, v{h+1}")
    e(f"v_lshlrev_b32 v{h}, 4, v{h}")
    e(f"v_xor_b32 v{h+1}, 64, v{h}")
    e(f"v_lshrrev_b32 v{h+2}, 3, v{V_LANE}")
    e("s_lshl_b32 s57, s55, 11")
    e("s_lshl_b32 s72, s73, 7")
    e("s_waitcnt lgkmcnt(0)")
    srd(32, 4, 2048*512*2)
    e("s_cmp_lt_u32 s53, 14")
    e("s_cbranch_scc0 K1_H_DSRC")
    srd(44, 16, 512*3584)
    e("s_mov_b32 s58, 3584")
    e("s_lshl_b32 s59, s53, 8")
    e("s_branch K1_H_SRC")
    lab("K1_H_DSRC")
    srd(44, 10, 512*1024)
    e("s_mov_b32 s58, 1024")
    e("s_sub_u32 s59, s53, 14")
    e("s_lshl_b32 s59, s59, 8")
    lab("K1_H_SRC")
    e(f"v_mad_u32_u24 v{V_WO}, v{h+2}, s58, v{h}")
    e(f"v_mad_u32_u24 v{V_WO+1}, v{h+2}, s58, v{h+1}")
    e("s_lshl_b32 s60, s55, 4")
    e("s_mul_i32 s60, s60, s58")
    e("s_add_u32 s60, s60, s59")
    e("s_add_u32 s61, s60, 128")
    e("s_lshl_b32 s63, s58, 3")
    e("s_lshr_b32 s59, s58, 1")
    VQ = []
    def vwait(tag):
        idx = max([i for i, x in enumerate(VQ) if x == tag], default=-1)
        if idx >= 0:
            e(f"s_waitcnt vmcnt({len(VQ) - 1 - idx})")
            del VQ[:idx+1]
    def S_ops(k):
        b = k % NSL
        def xop(q):
            def f():
                if q == 0:
                    e(f"s_add_u32 s74, s72, {k*128}")
                    e(f"s_and_b32 s74, s74, 1023")
                e(f"s_add_u32 m0, s62, {b*SLOT + 8192 + q*1024}")
                if q == 0: e("s_mul_i32 s75, s74, s59")
                elif q == 1: e("s_add_u32 s75, s75, s60")
                else: e("s_nop 0")
                e(f"buffer_load_dwordx4 v{V_XO+q}, s[32:35], s74 offen lds"); VQ.append(("st", k))
            return f
        def wop(q):
            def f():
                e(f"s_add_u32 m0, s57, {b*SLOT + q*1024}")
                e("s_nop 0" if q == 0 else "s_add_u32 s75, s75, s63")
                e(f"buffer_load_dwordx4 v{V_WO+q}, s[44:47], s75 offen lds"); VQ.append(("st", k))
            return f
        return [xop(0), xop(1), wop(0), xop(2), xop(3), wop(1)]
    def B_ops(g):
        ops = []
        for q in range(2):
            def f(g=g, q=q):
                if q == 0:
                    e(f"s_add_u32 s75, s72, {g*128}")
                    e(f"s_and_b32 s75, s75, 1023")
                    e("s_mul_i32 s75, s75, s59")
                e(f"s_add_u32 m0, s57, {goff(g) + q*1024}")
                e(f"s_add_u32 s75, s75, {'s61' if q == 0 else 's63'}")
                e(f"buffer_load_dwordx4 v{V_WO+q}, s[44:47], s75 offen lds"); VQ.append(("wb", g))
            ops.append(f)
        return ops
    def t_ops():
        def f0():
            e(f"s_add_u32 m0, s57, {K1_TR}")
            e("s_add_u32 s70, s68, 16384")
            e(f"buffer_load_dwordx4 v{V_TO}, s[48:51], s68 offen lds"); VQ.append(("t", 0))
        def f1():
            e(f"s_add_u32 m0, s57, {K1_TR+1024}")
            e("s_nop 0")
            e(f"buffer_load_dwordx4 v{V_TO}, s[48:51], s70 offen lds"); VQ.append(("t", 0))
        return [f0, f1]
    def T_op():
        vwait(("t", 0))
        for m in range(2):
            for u in range(2):
                e(f"ds_read_b64_tr_b16 {vr(V_TD+4*m+2*u,2)}, v{V_TA} offset:{u*1024 + m*32}")
        e(f"s_add_u32 s70, s71, {TILE_B}")
        e("s_waitcnt lgkmcnt(0)")
    def U_op():
        e(f"v_lshlrev_b32 v{h+3}, 4, v{V_LANE}")
        if opt("sku", 0): e("s_cmp_lt_u32 s2, 224"); e("s_cselect_b64 exec, -1, 0")
        if not opt("nou", 0): e(f"buffer_store_dwordx4 {vr(V_TD,4)}, v{h+3}, s[36:39], s71 offen{fl(ST_W2)}")
        if opt("sku", 0): e("s_mov_b64 exec, -1")
        if opt("sku", 0): e("s_cmp_lt_u32 s2, 224"); e("s_cselect_b64 exec, -1, 0")
        if not opt("nou", 0): e(f"buffer_store_dwordx4 {vr(V_TD+4,4)}, v{h+3}, s[36:39], s70 offen{fl(ST_W2)}")
        if opt("sku", 0): e("s_mov_b64 exec, -1")
    def sched(k):
        ops = []
        for x in SCH[k]:
            if x[0] == "s": ops += S_ops(int(x[1]))
            elif x[0] == "b": ops += B_ops(int(x[1]))
            elif x == "t": ops += t_ops()
            elif x == "T": ops.append(T_op)
            elif x == "n": ops.append(lambda: None)
            else: ops.append(U_op)
        return ops
    assert SCH[0][0] == "s0"
    SCH[0] = SCH[0][1:]
    for f in S_ops(0): f()
    srd(40, 18, 1792*2)
    e(f"v_lshlrev_b32 v{h+3}, 2, v{V_LANE}")
    e("s_lshl_b32 s71, s53, 8")
    e(f"buffer_load_dword v{h+10}, v{h+3}, s[40:43], s71 offen"); VQ.append(("st", 0))
    for f in sched(0): f()
    stamp(1)
    srd(36, 28, WS_SIZE)
    srd(48, 20, 1792*512*2)
    e("s_min_u32 s65, s2, 223")
    e("s_lshr_b32 s66, s65, 3")
    e("s_lshl_b32 s66, s66, 1")
    e("s_lshr_b32 s67, s55, 1")
    e("s_add_u32 s66, s66, s67")
    e("s_and_b32 s67, s65, 7")
    e("s_lshl_b32 s67, s67, 1")
    e("s_and_b32 s65, s55, 1")
    e("s_add_u32 s67, s67, s65")
    e("s_lshl_b32 s67, s67, 1")
    e(f"s_mul_i32 s71, s67, {TILE_B}")
    e("s_lshl_b32 s65, s66, 10")
    e("s_add_u32 s71, s71, s65")
    e(f"s_add_u32 s71, s71, {WS_W2:#x}")
    e("s_lshl_b32 s68, s66, 15")
    e("s_lshl_b32 s69, s67, 5")
    e("s_add_u32 s68, s68, s69")
    e(f"v_and_b32 v{h+1}, 3, v{V_LANE}")
    e(f"v_lshlrev_b32 v{h+1}, 4, v{h+1}")
    e(f"v_lshrrev_b32 v{h+2}, 2, v{V_LANE}")
    e(f"v_lshl_add_u32 v{V_TO}, v{h+2}, 10, v{h+1}")
    for k in range(4): e(f"v_mov_b32 v{V_ONES+k}, 0x3f803f80")
    e(f"v_and_b32 v{h+1}, 3, v{V_I}")
    e(f"v_lshlrev_b32 v{h+5}, 3, v{V_LANE}")
    e(f"v_add_u32 v{h+5}, {K1_Z}, v{h+5}")
    e(f"v_lshrrev_b32 v{h+2}, 2, v{V_I}")
    e(f"v_lshl_add_u32 v{h+2}, v{V_G}, 2, v{h+2}")
    e(f"v_lshlrev_b32 v{h+2}, 6, v{h+2}")
    e(f"v_lshl_add_u32 v{h+2}, v{h+1}, 3, v{h+2}")
    e(f"s_add_u32 s64, s57, {K1_TR}")
    e(f"v_add_u32 v{V_TA}, s64, v{h+2}")
    xa_setup()
    wa_setup((0, 1, 2, 3), K1_SP)
    for k in range(8):
        if k == 3 or k == 5:
            op = "v_add_u32" if k == 3 else "v_subrev_u32"
            for r_ in (V_XA, V_XA+1): e(f"{op} v{r_}, {K1_WB}, v{r_}")
        if k: stamp(k, 2)
        vwait(("st", k))
        if k: stamp(k, 1)
        if k == 0:
            e(f"v_lshlrev_b32 v{h+6}, 16, v{h+10}")
            e(f"v_and_b32 v{h+7}, 0xffff0000, v{h+10}")
            e(f"ds_write_b64 v{h+5}, {vr(h+6,2)} offset:1536")
            e(f"v_mov_b32 v{h+8}, 0"); e(f"v_mov_b32 v{h+9}, 0")
            e(f"ds_write_b64 v{h+5}, {vr(h+8,2)}")
        e("s_barrier")
        if k == 0: stamp(2)
        if k == 7: stamp(3)
        dm = sched(k + 1)
        for f in dm[:1]: f()
        for kk in range(2):
            for T in range(2):
                e(f"ds_read_b128 {vr(xreg(2*k+kk,T),4)}, v{V_XA+kk} offset:{soff(k) + T*2048}")
        for f in dm[1:]: f()
        e("s_waitcnt lgkmcnt(0)")
    out_setup(2)
    for q in range(4): e(f"v_xor_b32 v{V_XO+q}, 0x1000, v{V_WA+q}")
    vwait(("wb", NP1 - 1))
    stamp(4)
    e("s_barrier")
    if opt("hprio", 1): e(f"s_setprio {opt('hp2', 0)}")
    e("s_cmp_lt_u32 s53, 14")
    e("s_cbranch_scc1 K1_PB_F")
    e("s_branch K1_PB_D")
    VQ_B8 = list(VQ)

    lab("K1_CONS")
    C_RING = 32; CNR = 8; C_X = 64; C_GEN = 88; C_CS = 152; G = 164; C_WA1 = 160
    e(f"v_lshl_add_u32 v{t}, s53, 4, v{V_I}")
    e(f"v_cmp_eq_u32 vcc, 0, v{t}")
    e(f"v_mov_b32 v{t+1}, 0x100")
    e(f"v_mov_b32 v{t+3}, 0xbe800000")
    e(f"v_cndmask_b32 v{t}, v{t}, v{t+1}, vcc")
    e(f"v_cndmask_b32 v{t+3}, 0, v{t+3}, vcc")
    e(f"v_cvt_f32_u32 v{t}, v{t}")
    e(f"v_mul_f32 v{t}, 0x3b000000, v{t}")
    e("s_and_b32 s65, s55, 1")
    e("s_lshl_b32 s64, s73, 1")
    e("s_add_u32 s64, s64, s65")
    e("s_lshl_b32 s64, s64, 5")
    e("s_cmp_eq_u32 s65, 0")
    e("s_cselect_b32 s65, 1.0, -1.0")
    e("s_cselect_b32 s66, 1.0, 0x40400000")
    e(f"v_lshl_add_u32 v{t+1}, v{V_G}, 3, s64")
    e(f"v_cvt_f32_u32 v{t+1}, v{t+1}")
    e(f"v_fma_f32 v{G}, v{t+1}, v{t}, v{t+3}")
    e(f"v_fract_f32 v{G}, v{G}")
    for k in range(1, 8): e(f"v_add_f32 v{G+k}, v{G+k-1}, v{t}")
    e(f"v_mul_f32 v{t}, 0x42000000, v{t}")
    e(f"v_fract_f32 v{t}, v{t}")
    e(f"v_mul_f32 v{t+1}, s66, v{t}")
    e(f"v_mul_f32 v{t}, s65, v{t}")
    for ks in range(16):
        for k in range(8):
            e(f"v_sin_f32 v{G+8+k}, -v{G+k}")
            if ks < 15: e(f"v_add_f32 v{G+k}, v{G+k}, v{t+(ks&1)}")
        if ks == 15: e("s_nop 0")
        for k in range(4): e(f"v_cvt_pk_bf16_f32 v{C_GEN+4*ks+k}, v{G+8+2*k}, v{G+8+2*k+1}")
    wa_setup((0, 1, 2, 3), 0)
    for q in range(4): e(f"v_xor_b32 v{C_WA1+q}, 0x1000, v{V_WA+q}")
    xa_setup()
    for k in range(4): e(f"v_mov_b32 v{V_E+k}, 0x3f803f80")
    out_setup(0)
    e("s_waitcnt lgkmcnt(0)")
    srd(36, 28, WS_SIZE)
    e("s_cmp_lt_u32 s53, 14")
    e("s_cbranch_scc0 K1_VAR_D")

    def acc(j, T):
        if j < 4: return V_ACC + (j*2+T)*4
        if j == 8: return V_ACC + 32 + T*4
        return V_ACC + ((j-4)*2+T)*4
    def variant(tag, ffn):
        lab(f"K1_VAR_{tag}")
        Q = []; pend = []
        def need(tags):
            assert not any(tg in tags for tg, _ in pend), (tags, pend)
            idx = max([i for i, x in enumerate(Q) if x in tags], default=-1)
            if idx >= 0:
                e(f"s_waitcnt lgkmcnt({len(Q)-1-idx})")
                del Q[:idx+1]
        def pop(n):
            for _ in range(min(n, len(pend))):
                tg, ins = pend.pop(0); e(ins); Q.append(tg)
            assert len(Q) <= 15
        def mm(ins):
            e(ins); pop(2 if len(pend) > 2 else 1)
        def mfma(j, ks, slot, xr):
            for T in range(2):
                a_ = acc(j, T); xf = vr(xr(ks, T), 4); c_ = "0" if ks == 0 else vr(a_, 4)
                if ffn and j < 8: mm(f"v_mfma_f32_16x16x32_bf16 {vr(a_,4)}, {vr(slot,4)}, {xf}, {c_}")
                else: mm(f"v_mfma_f32_16x16x32_bf16 {vr(a_,4)}, {xf}, {vr(slot,4)}, {c_}")
        def cs_mma(jj, ks, slot, cs, ones):
            if jj < 2 and ks % 2 == 0:
                mm(f"v_mfma_f32_16x16x32_bf16 {vr(cs+4*jj,4)}, {vr(ones,4)}, {vr(slot,4)}, {'0' if ks == 0 else vr(cs+4*jj,4)}")
        PF = opt("pf", 5)
        def cx(ks, T): return C_X + ((ks % 3)*2 + T)*4
        def rdA(m):
            ks, jj = divmod(m, 4); st, kk = divmod(ks, 2)
            slot = C_RING + (m % CNR)*4
            off = soff(st); ad = (C_WA1 if kk else V_WA) + jj
            pend.append((("w", m), f"ds_read_b64_tr_b16 {vr(slot,2)}, v{ad} offset:{off}"))
            pend.append((("w", m), f"ds_read_b64_tr_b16 {vr(slot+2,2)}, v{ad} offset:{off+512}"))
        def rdX(ks):
            st, kk = divmod(ks, 2)
            for T in range(2):
                pend.append((("x", ks), f"ds_read_b128 {vr(cx(ks,T),4)}, v{V_XA+kk} offset:{soff(st) + T*2048}"))
        def issue(m):
            if m >= 64: return
            if m % 8 == 0:
                pop(99)
                if m in (24, 40):
                    op = "v_add_u32" if m == 24 else "v_subrev_u32"
                    for r_ in [V_WA+q for q in range(6)] + [C_WA1+q for q in range(4)]: e(f"{op} v{r_}, {K1_WB}, v{r_}")
                if m: stamp(m // 8, 1)
                e("s_barrier")
                if m: stamp(m // 8, 2)
            if m % 4 == 0: rdX(m // 4)
            rdA(m)
        ST = V_ACC + 40
        for m in range(PF): issue(m); pop(99)
        stamp(2)
        for m in range(64):
            ks, jj = divmod(m, 4)
            issue(m + PF)
            need([("w", m), ("x", ks)])
            slot = C_RING + (m % CNR)*4
            mfma(jj, ks, slot, cx)
            cs_mma(jj, ks, slot, C_CS, V_E)
            if jj in (2, 3):
                T = jj & 1; xf = vr(cx(ks, T), 4)
                for a_, o1 in ((ST + 4*T, vr(V_E, 4)), (ST + 8 + 4*T, xf)):
                    mm(f"v_mfma_f32_16x16x32_bf16 {vr(a_,4)}, {o1}, {xf}, {'0' if ks == 0 else vr(a_,4)}")
            if jj == 1: mfma(8, ks, C_GEN + 4*ks, cx)
        assert not pend
        stamp(3)
        e(f"v_add_u32 v{t+1}, s63, v15")
        cs_add(C_CS, 0)
        nop(6)
        for q in range(1, 4):
            e(f"s_mov_b32 s68, {0x11111111 << q:#x}"); e(f"s_mov_b32 s69, {0x11111111 << q:#x}")
            for T in range(2): e(f"v_cndmask_b32 v{ST+8+4*T}, v{ST+8+4*T}, v{ST+8+4*T+q}, s[68:69]")
        def both(f):
            for T in range(2): e(f(ST+4*T, ST+8+4*T, ST+4*T+1))
        both(lambda vS, vQ, tmp: f"v_mul_f32 v{vS}, 0x3b000000, v{vS}")
        both(lambda vS, vQ, tmp: f"v_mul_f32 v{vQ}, 0x3b000000, v{vQ}")
        both(lambda vS, vQ, tmp: f"v_fma_f32 v{vQ}, -v{vS}, v{vS}, v{vQ}")
        both(lambda vS, vQ, tmp: f"v_max_f32 v{vQ}, 0, v{vQ}")
        both(lambda vS, vQ, tmp: f"v_cvt_pk_bf16_f32 v{tmp}, v{vS}, v{vQ}")
        both(lambda vS, vQ, tmp: f"v_lshlrev_b32 v{vS}, 16, v{tmp}")
        both(lambda vS, vQ, tmp: f"v_and_b32 v{vQ}, 0xffff0000, v{tmp}")
        both(lambda vS, vQ, tmp: f"v_add_f32 v{vQ}, 0x3727c5ac, v{vQ}")
        both(lambda vS, vQ, tmp: f"v_cvt_pk_bf16_f32 v{tmp}, v{vQ}, v{vQ}")
        both(lambda vS, vQ, tmp: f"v_lshlrev_b32 v{vQ}, 16, v{tmp}")
        both(lambda vS, vQ, tmp: f"v_sqrt_f32 v{vQ}, v{vQ}")
        e("s_nop 0")
        both(lambda vS, vQ, tmp: f"v_cvt_pk_bf16_f32 v{tmp}, v{vQ}, v{vQ}")
        both(lambda vS, vQ, tmp: f"v_lshlrev_b32 v{vQ}, 16, v{tmp}")
        both(lambda vS, vQ, tmp: f"v_rcp_f32 v{vQ}, v{vQ}")
        e("s_mov_b32 exec_lo, 0x00f0000f"); e("s_mov_b32 exec_hi, 0xf0000f00")
        for T in range(2):
            e(f"ds_write_b32 v{t+1}, v{ST+4*T} offset:{512+64*T}")
            e(f"ds_write_b32 v{t+1}, v{ST+8+4*T} offset:{1024+64*T}")
        e("s_mov_b64 exec, -1")
        e("s_waitcnt lgkmcnt(0)")
        e("s_barrier")
        stamp(1)
        def rd_S(S, mean=True):
            r = [f"v_add_u32 v{t+4}, s63, v{V_ZG}"]
            for T in range(2):
                if mean: r.append(f"ds_read_b128 {vr(S+8*T,4)}, v{t+4} offset:{512+64*T}")
                r.append(f"ds_read_b128 {vr(S+8*T+4,4)}, v{t+4} offset:{1024+64*T}")
            return r
        def rd_R():
            return [f"v_add_u32 v{t+1}, s63, v15"] + [f"ds_read_b32 v{R+2*q}, v{t+1} offset:{512*(1+(q&1)) + 64*(q>>1)}" for q in range(4)]
        def rd_cb(jp, CB):
            base = t + 6 + (jp & 1)
            r = [f"v_xor_b32 v{t+7}, 0x80, v{t+6}" if jp & 1 else f"v_xor_b32 v{t+6}, s79, v{V_ZG}"]
            for hh in range(2):
                r.append(f"ds_read_b128 {vr(CB+4*hh,4)}, v{base} offset:{64*(2*(jp&2)+hh)}")
                r.append(f"ds_read_b128 {vr(CB+8+4*hh,4)}, v{base} offset:{1536+64*(2*(jp&2)+hh)}")
            return r
        def rd_cs(off):
            r = [f"v_xor_b32 v{t+7}, 0x80, v10"]
            return r + [f"ds_read_b32 v{R+j}, v{t+7 if j > 1 else 10} offset:{off + 64*(j&1)}" for j in range(4)]
        def ffn_pair(j0, so, CB, O):
            if so: e("s_add_u32 s60, s60, s65"); e("s_add_u32 s61, s61, s65")
            for T in range(2):
                o = O + T*12
                for hh in range(2):
                    for k in range(2):
                        e(f"v_pk_fma_f32 {vr(o+4*hh+2*k,2)}, {vr(R+4*T,2)}, {vr(CB+4*hh+2*k,2)}, {vr(CB+8+4*hh+2*k,2)} op_sel_hi:[0,1,1] neg_lo:[1,0,0] neg_hi:[1,0,0]")
                for hh in range(2):
                    for k in range(2):
                        e(f"v_pk_fma_f32 {vr(o+4*hh+2*k,2)}, {vr(R+4*T+2,2)}, {vr(acc(j0+hh,T)+2*k,2)}, {vr(o+4*hh+2*k,2)} op_sel_hi:[0,1,1]")
                for k in range(8): e(f"v_mul_f32 v{o+k}, v{o+k}, |v{o+k}|")
                for k in range(4): e(f"v_cvt_pk_bf16_f32 v{o+8+k}, v{o+2*k}, v{o+2*k+1}")
                for k in range(4): e(f"v_pk_max_i16 v{o+8+k}, v{o+8+k}, 0")
                e(f"buffer_store_dwordx4 {vr(o+8,4)}, v{V_L16}, s[36:39], s{60+T} offen{fl(ST_H2)}")
        def xstore(tagj, vaddr, vdata):
            e("s_cmp_eq_u32 s76, 0")
            e(f"s_cbranch_scc1 K1_NOX_{tagj}")
            e("s_mov_b64 exec, s[76:77]")
            e(f"buffer_store_dword v{vdata}, v{vaddr}, s[36:39], 0 offen")
            e("s_mov_b64 exec, -1")
            lab(f"K1_NOX_{tagj}")
        def transpose4(o):
            nop(2)
            e(f"v_permlane32_swap_b32 v{o}, v{o+2}")
            e(f"v_permlane32_swap_b32 v{o+1}, v{o+3}")
            nop(2)
            e(f"v_permlane16_swap_b32 v{o}, v{o+1}")
            e(f"v_permlane16_swap_b32 v{o+2}, v{o+3}")
        def dft_pair(j0, S, CS, W):
            PL = W; MI = W + 2; VV = W + 4; o = W + 12
            for hh in range(2):
                j = j0 + hh
                for T in range(2):
                    a_ = acc(j, T)
                    for k in range(4): e(f"v_fma_f32 v{VV+k}, -v{S+8*T+k}, v{CS+hh}, v{a_+k}")
                    for k in range(4): e(f"v_mul_f32 v{VV+k}, v{VV+k}, v{S+8*T+4+k}")
                    e(f"v_add_f32 v{VV+4}, v{VV}, v{VV+1}")
                    e(f"v_add_f32 v{VV+5}, v{VV+2}, v{VV+3}")
                    e(f"v_add_f32 v{PL+T}, v{VV+4}, v{VV+5}")
                    e(f"v_sub_f32 v{MI+T}, v{VV+4}, v{VV+5}")
                    if T == 0:
                        e(f"v_sub_f32 v{VV+6}, v{VV}, v{VV+1}")
                        e(f"v_cndmask_b32 v{PL}, v{PL}, v{VV+4}, s[76:77]")
                        e(f"v_cndmask_b32 v{MI}, v{MI}, v{VV+6}, s[76:77]")
                        xstore(f"{tag}_{j}", 14, VV+5)
                        e(f"v_add_u32 v14, 64, v14")
                e(f"v_cvt_pk_bf16_f32 v{o+2*hh}, v{PL}, v{PL+1}")
                e(f"v_cvt_pk_bf16_f32 v{o+2*hh+1}, v{MI}, v{MI+1}")
            transpose4(o)
            e(f"buffer_store_dwordx4 {vr(o,4)}, v{V_ATO}, s[36:39], s67 offen{fl(ST_AT)}")
            e("s_lshl_b32 s66, s65, 5")
            e("s_add_u32 s67, s67, s66")
        def gen_tile(S, W):
            PL = W; MI = W + 2; VV = W + 4; o = W + 12
            e(f"v_lshl_add_u32 v{t}, s53, 4, v{V_I}")
            e(f"v_cmp_eq_u32 vcc, 0, v{t}")
            e("s_lshl_b32 s66, s53, 14")
            e(f"s_add_u32 s66, s66, {3*ASTR:#x}")
            e(f"v_mov_b32 v{t+2}, {ASTR:#x}")
            e(f"v_mul_lo_u32 v{t+2}, v{t+2}, v{V_G}")
            e(f"v_sub_u32 v{t+1}, s66, v{t+2}")
            e(f"v_add_u32 v{t+2}, {16*16384:#x}, v{t+2}")
            e(f"v_cndmask_b32 v{t+1}, v{t+1}, v{t+2}, vcc")
            e(f"v_lshl_add_u32 v{t+1}, v{V_I}, 4, v{t+1}")
            e(f"v_mov_b32 v{t+2}, -1.0")
            e(f"v_cndmask_b32 v{t+2}, v{t+2}, 1.0, vcc")
            e(f"v_add_u32 v{t+6}, 288, v{t}")
            e(f"v_mov_b32 v{t+7}, 0x100")
            e(f"v_cndmask_b32 v{t+6}, v{t+6}, v{t+7}, vcc")
            e(f"v_lshlrev_b32 v{t+6}, 2, v{t+6}")
            e(f"v_add_u32 v{t+6}, {WS_X512:#x}, v{t+6}")
            for T in range(2):
                a_ = acc(8, T)
                for k in range(4): e(f"v_mul_f32 v{VV+k}, v{a_+k}, v{S+8*T+4+k}")
                e(f"v_fma_f32 v{VV+4}, v{t+2}, v{VV+1}, v{VV}")
                e(f"v_fma_f32 v{VV+5}, v{t+2}, v{VV+3}, v{VV+2}")
                e(f"v_add_f32 v{PL+T}, v{VV+4}, v{VV+5}")
                e(f"v_sub_f32 v{MI+T}, v{VV+4}, v{VV+5}")
                if T == 0:
                    e(f"v_sub_f32 v{VV+6}, v{VV}, v{VV+1}")
                    e(f"v_cndmask_b32 v{VV+6}, 0, v{VV+6}, vcc")
                    e(f"v_cndmask_b32 v{VV+7}, 0, v{VV+4}, vcc")
                    e(f"v_cndmask_b32 v{PL}, v{PL}, v{VV+7}, s[76:77]")
                    e(f"v_cndmask_b32 v{MI}, v{MI}, v{VV+6}, s[76:77]")
                    xstore(f"{tag}_g", t+6, VV+5)
            e(f"v_cvt_pk_bf16_f32 v{o}, v{PL}, v{PL+1}")
            e(f"v_cvt_pk_bf16_f32 v{o+1}, v{MI}, v{MI+1}")
            transpose4(o)
            e("s_mov_b32 exec_hi, 0")
            e(f"buffer_store_dwordx4 {vr(o,4)}, v{t+1}, s[36:39], s64 offen{fl(ST_AT)}")
            e("s_mov_b32 exec_hi, -1")
        B1 = V_ACC + 40
        B9 = opt("b9", 2)
        def b9(pos):
            if pos == B9: e("s_barrier")
        if ffn:
            for x in rd_R()[1:] + rd_cb(0, V_E) + rd_cb(1, B1) + rd_S(C_GEN, mean=False): e(x)
            e("s_waitcnt lgkmcnt(6)")
            e(f"v_mul_f32 v{R}, v{R}, v{R+2}")
            e(f"v_mul_f32 v{R+4}, v{R+4}, v{R+6}")
            ffn_pair(0, 0, V_E, V_RING)
            e("s_waitcnt lgkmcnt(0)")
            b9(1)
            ffn_pair(2, 1024, B1, C_X)
            b9(2)
            gen_tile(C_GEN, C_GEN + 16)
        else:
            for x in rd_S(V_E): e(x)
            for x in rd_cs(0): e(x)
            e("s_waitcnt lgkmcnt(0)")
            dft_pair(0, V_E, R, V_RING)
            b9(1)
            dft_pair(2, V_E, R+2, B1)
            b9(2)
            gen_tile(V_E, C_GEN)
        b9(3)
        stamp(4)
        if PROF: e("s_waitcnt vmcnt(0)")
        stamp(7)
        e("s_barrier")
        prof_end(0, 1)
        e("s_endpgm")
        lab(f"K1_PB_{tag}")
        VQ[:] = VQ_B8
        def rdB(m):
            ks, jj = divmod(m, 4)
            slot = V_RING + (m % NR)*4
            off = ((ks >> 1) % 4)*8192; ad = (V_XO if ks & 1 else V_WA) + jj
            pend.append((("w", m), f"ds_read_b64_tr_b16 {vr(slot,2)}, v{ad} offset:{off}"))
            pend.append((("w", m), f"ds_read_b64_tr_b16 {vr(slot+2,2)}, v{ad} offset:{off+512}"))
        def issueB(m):
            if m >= 64: return
            if m == 32:
                pop(99)
                for r_ in [V_WA+q for q in range(4)] + [V_XO+q for q in range(4)]: e(f"v_subrev_u32 v{r_}, {K1_SP - K1_WB}, v{r_}")
            if m == 8*NP1:
                pop(99)
                vwait(("wb", 7))
                stamp(5)
                e("s_barrier")
            rdB(m)
        Q.clear()
        PB = 5
        for m in range(PB): issueB(m)
        pop(99)
        for m in range(64):
            ks, jj = divmod(m, 4)
            issueB(m + PB)
            need([("w", m)])
            slot = V_RING + (m % NR)*4
            mfma(4 + jj, ks, slot, xreg)
            cs_mma(jj, ks, slot, V_CS, V_ONES)
        assert not pend
        stamp(6)
        cs_add(V_CS, 256)
        T_op()
        ep = (rd_R() if ffn else rd_S(V_E))
        for x in ep: e(x)
        e("s_waitcnt lgkmcnt(0)")
        e("s_barrier")
        if ffn:
            for x in rd_cb(2, V_E) + rd_cb(3, V_X): e(x)
            U_op()
            e(f"v_mul_f32 v{R}, v{R}, v{R+2}")
            e(f"v_mul_f32 v{R+4}, v{R+4}, v{R+6}")
            e("s_waitcnt lgkmcnt(4)")
            ffn_pair(4, 0, V_E, V_X + 16)
            e("s_waitcnt lgkmcnt(0)")
            ffn_pair(6, 1024, V_X, V_X + 40)
        else:
            for x in rd_cs(256): e(x)
            U_op()
            e("s_waitcnt lgkmcnt(0)")
            dft_pair(4, V_E, R, V_X)
            dft_pair(6, V_E, R+2, V_X + 16)
        if PROF: e("s_waitcnt vmcnt(0)")
        stamp(7)
        prof_end(0, 1)
        e("s_endpgm")
    variant("F", True)
    variant("D", False)
    lab("K1_END")
    e("s_endpgm")

PP = 272
K2_F = 0
K2_D = 3 * 64 * PP
DP = 208
DARR = 17 * DP
K2_LDS = K2_D + 4 * DARR

def gen_k2():
    DEPTH = opt("depth", 8); DD = opt("ddepth", 8)
    lab("k2_kernel")
    e("s_cmp_ge_u32 s2, 256")
    e("s_cbranch_scc1 K2_END")
    prof_begin(); stamp(0)
    load_ptrs()
    e("s_and_b32 s56, s2, 1")
    e("s_and_b32 s52, s2, 6")
    e("s_lshl_b32 s52, s52, 1")
    e("s_bfe_u32 s55, s2, 0x20003")
    e("s_add_u32 s52, s52, s55")
    e("s_lshr_b32 s53, s2, 5")
    e("s_lshl_b32 s57, s52, 5")
    e("s_add_u32 s57, s57, s56")
    V_LANE, V_I, V_G = 1, 2, 3
    V_L16 = 4
    V_XO = 5
    V_XV = 6
    V_B2 = 14
    V_OA = 22
    t = 30
    V_ACC = 48
    V_ST = 120
    e("v_lshrrev_b32 v1, 6, v0")
    e("v_and_b32 v2, 15, v0")
    e("v_readfirstlane_b32 s54, v1")
    e(f"v_and_b32 v{V_LANE}, 63, v0")
    e(f"v_lshrrev_b32 v{V_G}, 4, v{V_LANE}")
    e(f"v_lshlrev_b32 v{V_L16}, 4, v{V_LANE}")
    e("s_waitcnt lgkmcnt(0)")
    srd(36, 28, WS_SIZE)
    e("s_cmp_eq_u32 s54, 3")
    e("s_cbranch_scc1 K2_DFT")
    e("s_lshl_b32 s60, s52, 1")
    e("s_add_u32 s60, s60, s56")
    e(f"s_mul_i32 s60, s60, {4*TILE_B}")
    for n in range(4):
        e(f"s_add_u32 s61, s60, {n*TILE_B}")
        e(f"v_add_u32 v{V_OA+4+n}, s61, v{V_L16}")
    e(f"s_mul_i32 s62, s53, {2*TILE_B}")
    e(f"s_add_u32 s61, s62, {WS_W2:#x}")
    e(f"v_add_u32 v{V_OA}, s61, v{V_L16}")
    e(f"v_add_u32 v{V_OA+1}, {TILE_B:#x}, v{V_OA}")
    e(f"s_sub_u32 s61, {WS_W2 + 30*TILE_B:#x}, s62")
    e(f"v_add_u32 v{V_OA+2}, s61, v{V_L16}")
    e(f"v_add_u32 v{V_OA+3}, {TILE_B:#x}, v{V_OA+2}")
    e("s_mul_i32 s68, s54, 19456")
    KR = opt("kr", 0)
    if KR:
        if KR == 1: e("s_and_b32 s69, s2, 7")
        elif KR == 2: e("s_lshr_b32 s69, s2, 5")
        elif KR == 3: e("s_lshr_b32 s69, s2, 5"); e("s_add_u32 s69, s69, s2"); e("s_and_b32 s69, s69, 7")
        elif KR == 4: e("s_lshr_b32 s69, s2, 3"); e("s_add_u32 s69, s69, s2"); e("s_and_b32 s69, s69, 7")
        e(f"s_mul_i32 s69, s69, {opt('krm', 7)*1024}")
        e("s_add_u32 s68, s68, s69")
        e("s_sub_u32 s68, s68, 0x400")
    NS = 19
    def st(s, q):
        k = s % DEPTH
        return vr(V_ST + k*32 + q*4, 4) if k < 4 else ar((k-4)*32 + q*4, 4)
    def ld(s):
        if KR:
            e("s_add_u32 s68, s68, 0x400")
            e(f"s_sub_u32 s69, s68, {56*1024}")
            e(f"s_cmp_ge_u32 s68, {56*1024}")
            e("s_cselect_b32 s68, s69, s68")
        elif s and s % 4 == 0: e("s_add_u32 s68, s68, 0x1000")
        io = 0 if KR else 1024*(s%4)
        for m in range(4):
            e(f"buffer_load_dwordx4 {st(s,m)}, v{V_OA+m}, s[36:39], s68 offen offset:{io}")
            e(f"buffer_load_dwordx4 {st(s,4+m)}, v{V_OA+4+m}, s[36:39], s68 offen offset:{io}")
    def acc(m, n): return V_ACC + (m*4+n)*4
    def mm(s):
        for m in range(4):
            for n in range(4):
                c_ = "0" if s == 0 else vr(acc(m,n),4)
                e(f"v_mfma_f32_16x16x32_bf16 {vr(acc(m,n),4)}, {st(s,m)}, {st(s,4+n)}, {c_}")
    def fin_loads():
        srd(32, 4, 2048*512*2)
        srd(40, 22, 512*2)
        srd(60, 24, 2048*512*2)
        e(f"v_bfe_u32 v{t}, v{V_LANE}, 2, 2")
        quad_consts(t, t+1, t+2, t+3, t+4)
        e("s_lshl_b32 s66, s54, 3")
        e("s_add_u32 s66, s66, s57")
        e(f"v_lshl_add_u32 v{t+4}, v{V_G}, 1, s66")
        e(f"v_mad_i32_i24 v{t+5}, v{t+2}, v{t+4}, v{t+1}")
        e(f"v_cmp_eq_u32 vcc, 0, v{t+4}")
        e(f"v_and_b32 v{t+6}, 3, v{V_LANE}")
        e(f"v_lshlrev_b32 v{t+6}, 4, v{t+6}")
        e(f"v_cndmask_b32 v{t+5}, v{t+5}, v{t+3}, vcc")
        e(f"v_lshl_add_u32 v{V_XO}, v{t+5}, 10, v{t+6}")
        e("s_lshl_b32 s64, s53, 6")
        e(f"s_sub_u32 s65, {480*2}, s64")
        e(f"buffer_load_dwordx4 {vr(V_XV,4)}, v{V_XO}, s[32:35], s64 offen")
        e(f"buffer_load_dwordx4 {vr(V_XV+4,4)}, v{V_XO}, s[32:35], s65 offen")
        e(f"buffer_load_dwordx4 {vr(V_B2,4)}, v{t+6}, s[40:43], s64 offen")
        e(f"buffer_load_dwordx4 {vr(V_B2+4,4)}, v{t+6}, s[40:43], s65 offen")
    for s in range(DEPTH - 1):
        ld(s)
        if s == 1: fin_loads()
    stamp(1)
    for s in range(NS):
        if s == 1: stamp(2)
        if s == 8: stamp(3)
        nl = s + DEPTH - 1
        extra = 4 if s < 2 else 0
        if nl < NS - 1:
            ld(nl); e(f"s_waitcnt vmcnt({min(63, 8*(DEPTH-1) + extra)})")
        elif nl == NS - 1:
            e("s_cmp_eq_u32 s54, 2")
            e("s_cbranch_scc1 K2_W2TAIL")
            ld(nl); e(f"s_waitcnt vmcnt({8*(DEPTH-1)})")
        else:
            e(f"s_waitcnt vmcnt({8*(NS-1-s)})")
        mm(s)
    e("s_branch K2_FFN_DONE")
    lab("K2_W2TAIL")
    for s in range(NS - DEPTH, NS - 1):
        e(f"s_waitcnt vmcnt({8*(NS-2-s)})")
        mm(s)
    lab("K2_FFN_DONE")
    stamp(4)
    e(f"s_mul_i32 s66, s54, {64*PP}")
    e(f"v_mul_u32_u24 v{t}, {PP}, v{V_I}")
    e(f"v_lshl_add_u32 v{t}, v{V_G}, 4, v{t}")
    e(f"v_add_u32 v{t}, s66, v{t}")
    nop(6)
    for m in range(4):
        for n in range(4):
            e(f"ds_write_b128 v{t}, {vr(acc(m,n),4)} offset:{n*16*PP + m*64}")
    e("s_branch K2_FINAL")
    lab("K2_DFT")
    e(f"s_mul_i32 s68, s56, {ASTR:#x}")
    e("s_lshl_b32 s69, s53, 15")
    e("s_add_u32 s68, s68, s69")
    e(f"s_add_u32 s68, s68, {WS_AT:#x}")
    e(f"s_add_u32 s69, s68, {2*ASTR:#x}")
    e(f"v_add_u32 v{V_OA+1}, 0x4000, v{V_L16}")
    e(f"v_lshlrev_b32 v{V_OA+2}, 8, v{V_G}")
    e(f"v_add_u32 v{V_OA+2}, 0x8000, v{V_OA+2}")
    OFF = [V_L16, V_OA+1, V_OA+2]
    def dst(s, q):
        return ar((s % DD)*24 + q*4, 4)
    def dld(s):
        if s and s % 4 == 0:
            e("s_add_u32 s68, s68, 0x1000"); e("s_add_u32 s69, s69, 0x1000")
        for m in range(3):
            e(f"buffer_load_dwordx4 {dst(s,m)}, v{OFF[m]}, s[36:39], s68 offen offset:{1024*(s%4)}")
            e(f"buffer_load_dwordx4 {dst(s,3+m)}, v{OFF[m]}, s[36:39], s69 offen offset:{1024*(s%4)}")
    XA = V_ST; XB = XA + 12; CF = XB + 12
    XR = CF + 4
    TG = XR + 8
    FR = TG + 16
    for s in range(2): dld(s)
    e("s_lshl_b32 s70, s53, 7")
    e(f"s_add_u32 s70, s70, {WS_X512:#x}")
    e(f"v_lshlrev_b32 v{t+7}, 4, v{V_G}")
    for m in range(3):
        e(f"buffer_load_dwordx4 {vr(XA+4*m,4)}, v{t+7}, s[36:39], s70 offen offset:{64*m}")
        e(f"buffer_load_dwordx4 {vr(XB+4*m,4)}, v{t+7}, s[36:39], s70 offen offset:{288*4+64*m}")
    fin_loads()
    for s in range(2, DD - 1): dld(s)
    stamp(1)
    VT = t + 10; VINC = t + 11; VT1 = t + 12; CRE = t + 13; CIM = t + 14
    e(f"v_lshl_add_u32 v{VT}, v{V_I}, 1, s57")
    e(f"v_cvt_f32_u32 v{VT}, v{VT}")
    e(f"v_mul_f32 v{VINC}, 0x3d000000, v{VT}")
    e(f"v_mul_f32 v{VT1}, 0x3a000000, v{VT}")
    e(f"v_mul_f32 v{CRE}, 0x3e800000, v{VT}")
    e(f"v_sin_f32 v{CIM}, -v{CRE}")
    e(f"v_cos_f32 v{CRE}, v{CRE}")
    e(f"v_lshlrev_b32 v{t+8}, 4, v{V_G}")
    def init_args(sp):
        for k in range(8):
            e(f"v_add_u32 v{t+9}, {2*(k>>1) + 8*(k&1) + sp}, v{t+8}")
            e(f"v_cvt_f32_u32 v{t+9}, v{t+9}")
            e(f"v_mul_f32 v{XR+k}, v{t+9}, v{VT1}")
    for k in range(4): e(f"v_mov_b32 v{CF+k}, {'0xbf80bf80' if k & 1 else '0x3f803f80'}")
    def gen(s):
        if s % 8 == 0: init_args(s // 8)
        else:
            for k in range(8): e(f"v_add_f32 v{XR+k}, v{XR+k}, v{VINC}")
        for k in range(8):
            e(f"v_cos_f32 v{TG+k}, v{XR+k}")
            e(f"v_sin_f32 v{TG+8+k}, -v{XR+k}")
        e("s_nop 0")
        f = FR + (s % 2)*8
        for k in range(8): e(f"v_cvt_pk_bf16_f32 v{f+k}, v{TG+2*k}, v{TG+2*k+1}")
    def pacc(ph, sp, m): return V_ACC + ((ph*2+sp)*3+m)*4
    def sacc(ph, m): return V_ACC + 48 + (ph*3+m)*4
    def dmm(s):
        sp, h = divmod(s, 8); f = FR + (s % 2)*8
        for ph in range(2):
            for m in range(3):
                a_ = pacc(ph, sp, m); c_ = "0" if h == 0 else vr(a_, 4)
                e(f"v_mfma_f32_16x16x32_bf16 {vr(a_,4)}, {dst(s,3*ph+m)}, {vr(f+4*ph,4)}, {c_}")
        for m in range(3):
            a_ = sacc(sp, m); c_ = "0" if h == 0 else vr(a_, 4)
            e(f"v_mfma_f32_16x16x32_bf16 {vr(a_,4)}, {dst(s,3*sp+m)}, {vr(CF,4)}, {c_}")
    ND = 16
    gen(0)
    for s in range(ND):
        if s == 1: stamp(2)
        if s == 8: stamp(3)
        nl = s + DD - 1
        if nl < ND: dld(nl)
        if s + 1 < ND: gen(s + 1)
        else: nop(2)
        extra = 10 if s < 2 else 0
        e(f"s_waitcnt vmcnt({min(63, 6*(min(nl, ND-1) - s) + extra)})")
        dmm(s)
    stamp(4)
    e("s_cmp_eq_u32 s53, 0")
    e("s_cselect_b32 s72, 0xffff, 0")
    e("s_mov_b32 s73, 0")
    e("s_cmp_eq_u32 s53, 7")
    e("s_cselect_b32 s74, 0xffff, 0")
    e("s_mov_b32 s75, 0")
    e(f"v_mul_u32_u24 v{t}, {DP}, v{V_I}")
    e(f"v_add3_u32 v{t}, v{t}, v{t+7}, 0")
    e(f"v_add_u32 v{t}, {K2_D}, v{t}")
    nop(6)
    O = TG
    for m in range(3):
        EP, OP, EQ, OQ = pacc(0,0,m), pacc(0,1,m), pacc(1,0,m), pacc(1,1,m)
        o = O + (m % 2)*16
        for k in range(4):
            e(f"v_fma_f32 v{EP+k}, v{CRE}, v{XA+4*m+k}, v{EP+k}")
            e(f"v_fma_f32 v{EQ+k}, v{CIM}, v{XB+4*m+k}, v{EQ+k}")
        if m != 1:
            msk = "s[72:73]" if m == 0 else "s[74:75]"
            e(f"v_cndmask_b32 v{EQ}, v{EQ}, 0, {msk}")
            e(f"v_cndmask_b32 v{OQ}, v{OQ}, 0, {msk}")
            e(f"v_cndmask_b32 v{sacc(1,m)}, v{sacc(1,m)}, 0, {msk}")
        for k in range(4):
            e(f"v_add_f32 v{o+k}, v{EP+k}, v{OP+k}")
            e(f"v_sub_f32 v{o+8+k}, v{EP+k}, v{OP+k}")
            e(f"v_add_f32 v{EP+k}, v{EQ+k}, v{OQ+k}")
            e(f"v_sub_f32 v{OP+k}, v{OQ+k}, v{EQ+k}")
        for k in range(4):
            e(f"v_add_f32 v{o+4+k}, v{o+k}, v{EP+k}")
            e(f"v_sub_f32 v{o+k}, v{o+k}, v{EP+k}")
            e(f"v_add_f32 v{o+12+k}, v{o+8+k}, v{OP+k}")
            e(f"v_sub_f32 v{o+8+k}, v{o+8+k}, v{OP+k}")
        for a in range(4):
            e(f"ds_write_b128 v{t}, {vr(o+4*a,4)} offset:{a*DARR + m*64}")
    for m in range(3):
        for k in range(4):
            e(f"v_add_f32 v{sacc(0,m)+k}, v{sacc(0,m)+k}, v{XA+4*m+k}")
            e(f"v_sub_f32 v{XA+4*m+k}, v{sacc(0,m)+k}, v{sacc(1,m)+k}")
            e(f"v_add_f32 v{sacc(0,m)+k}, v{sacc(0,m)+k}, v{sacc(1,m)+k}")
    e(f"v_cmp_eq_u32 vcc, 0, v{V_I}")
    e("s_and_saveexec_b64 s[76:77], vcc")
    for m in range(3):
        e(f"ds_write_b128 v{t}, {vr(sacc(0,m),4)} offset:{16*DP + m*64}")
        e(f"ds_write_b128 v{t}, {vr(XA+4*m,4)} offset:{DARR + 16*DP + m*64}")
    e("s_mov_b64 exec, s[76:77]")
    lab("K2_FINAL")
    e(f"v_lshrrev_b32 v{t+1}, 2, v{V_LANE}")
    e("s_lshl_b32 s66, s54, 4")
    e(f"v_add_u32 v{t+2}, s66, v{t+1}")
    e(f"v_mul_u32_u24 v{t+2}, {PP}, v{t+2}")
    e(f"v_and_b32 v{t+3}, 3, v{V_LANE}")
    e(f"v_lshl_add_u32 v{t+2}, v{t+3}, 5, v{t+2}")
    e(f"v_and_b32 v{t+4}, 3, v{t+1}")
    e("s_lshl_b32 s66, s54, 2")
    e(f"v_add_u32 v{t+5}, s66, v{V_G}")
    e(f"v_or_b32 v{t+6}, s57, v{t+5}")
    e(f"v_cmp_eq_u32 vcc, 0, v{t+6}")
    e(f"v_lshlrev_b32 v{t+8}, 1, v{t+4}")
    e(f"v_mov_b32 v{t+9}, 0x48")
    e(f"v_lshrrev_b32 v{t+9}, v{t+8}, v{t+9}")
    e(f"v_and_b32 v{t+9}, 3, v{t+9}")
    e(f"v_and_b32 v{t+8}, 2, v{t+4}")
    e(f"v_lshlrev_b32 v{t+8}, 3, v{t+8}")
    e(f"v_cndmask_b32 v{t+4}, v{t+4}, v{t+9}, vcc")
    e(f"v_cndmask_b32 v{t+5}, v{t+5}, v{t+8}, vcc")
    e(f"v_mul_u32_u24 v{t+5}, {DP}, v{t+5}")
    e(f"v_add_u32 v{t+5}, {K2_D}, v{t+5}")
    e(f"v_mov_b32 v{t+8}, {DARR}")
    e(f"v_mad_u32_u24 v{t+6}, v{t+4}, v{t+8}, v{t+5}")
    e(f"v_lshl_add_u32 v{t+6}, v{t+3}, 5, v{t+6}")
    e(f"v_xor_b32 v{t+4}, 1, v{t+4}")
    e(f"v_mad_u32_u24 v{t+5}, v{t+4}, v{t+8}, v{t+5}")
    e(f"v_lshlrev_b32 v{t+3}, 5, v{t+3}")
    e(f"v_sub_u32 v{t+5}, v{t+5}, v{t+3}")
    e("s_waitcnt vmcnt(0) lgkmcnt(0)")
    stamp(5)
    e("s_barrier")
    stamp(6)
    R = V_ACC
    Y = V_ST
    for b in range(2):
        for w in range(3):
            for hh in range(2):
                e(f"ds_read_b128 {vr(R+(b*3+w)*8+4*hh,4)}, v{t+2} offset:{w*64*PP + b*128 + hh*16}")
        if b == 0:
            e(f"ds_read_b128 {vr(Y,4)}, v{t+6}")
            e(f"ds_read_b128 {vr(Y+4,4)}, v{t+6} offset:16")
    e("s_waitcnt lgkmcnt(6)")
    for k in range(8):
        e(f"ds_read_b32 v{Y+8+k}, v{t+5} offset:{(32-k)*4}")
    U = V_ST + 16
    for b in range(2):
        u = U + b*32; p0 = R + b*24
        for k in range(4):
            e(f"v_lshlrev_b32 v{u+2*k}, 16, v{V_B2+4*b+k}")
            e(f"v_and_b32 v{u+2*k+1}, 0xffff0000, v{V_B2+4*b+k}")
        if b == 1: e("s_waitcnt lgkmcnt(8)")
        for k in range(4):
            e(f"v_pk_add_f32 {vr(p0+2*k,2)}, {vr(p0+2*k,2)}, {vr(p0+8+2*k,2)}")
            e(f"v_pk_add_f32 {vr(u+2*k,2)}, {vr(u+2*k,2)}, {vr(p0+16+2*k,2)}")
        for k in range(4):
            e(f"v_pk_add_f32 {vr(u+2*k,2)}, {vr(u+2*k,2)}, {vr(p0+2*k,2)}")
        for k in range(8): e(f"v_mul_f32 v{u+8+k}, 0xbfb8aa3b, v{u+k}")
        for k in range(8): e(f"v_exp_f32 v{u+8+k}, v{u+8+k}")
        for k in range(4):
            e(f"v_lshlrev_b32 v{u+16+2*k}, 16, v{V_XV+4*b+k}")
            e(f"v_and_b32 v{u+16+2*k+1}, 0xffff0000, v{V_XV+4*b+k}")
        for k in range(8): e(f"v_add_f32 v{u+8+k}, 1.0, v{u+8+k}")
        for k in range(8): e(f"v_rcp_f32 v{u+8+k}, v{u+8+k}")
        if b == 1: e("s_waitcnt lgkmcnt(0)")
        else: e("s_nop 0")
        for k in range(4):
            e(f"v_pk_mul_f32 {vr(u+2*k,2)}, {vr(u+2*k,2)}, {vr(u+8+2*k,2)}")
        for k in range(4):
            e(f"v_pk_fma_f32 {vr(u+2*k,2)}, {vr(Y+8*b+2*k,2)}, {vr(u+2*k,2)}, {vr(u+16+2*k,2)}")
        for k in range(4):
            e(f"v_cvt_pk_bf16_f32 v{u+24+k}, v{u+2*k}, v{u+2*k+1}")
        e(f"buffer_store_dwordx4 {vr(u+24,4)}, v{V_XO}, s[60:63], s{64+b} offen{fl(ST_OUT)}")
    if PROF: e("s_waitcnt vmcnt(0)")
    stamp(7)
    prof_end(1, 1)
    lab("K2_END")
    e("s_endpgm")

def kd(name, nvgpr, acc_off):
    return f""".amdhsa_kernel {name}
  .amdhsa_next_free_vgpr {nvgpr}
  .amdhsa_next_free_sgpr 102
  .amdhsa_accum_offset {acc_off}
  .amdhsa_group_segment_fixed_size 0
  .amdhsa_kernarg_size 104
  .amdhsa_user_sgpr_count 2
  .amdhsa_user_sgpr_kernarg_segment_ptr 1
  .amdhsa_system_sgpr_workgroup_id_x 1
.end_amdhsa_kernel
"""

def main(out):
    hdr = f"""; FNet (folded real 2-D DFT) * silu(squared-relu FFN) + residual, two launches.
; @launch kernel=k1_kernel grid=(256,1,1) block=(512,1,1) lds={K1_LDS}
; @launch kernel=k2_kernel grid=(256,1,1) block=(256,1,1) lds={K2_LDS}
.amdgcn_target "amdgcn-amd-amdhsa--gfx950"
.text
"""
    body = []
    for nm, fn in (("k1_kernel", gen_k1), ("k2_kernel", gen_k2)):
        L.clear()
        fn()
        body.append(f".globl {nm}\n.p2align 8\n.type {nm},@function\n" + "\n".join(L) + "\n")
    txt = hdr + "".join(body) + '.section .rodata,"a"\n.p2align 6\n' + kd("k1_kernel", 256, 256) + ".p2align 6\n" + kd("k2_kernel", 256+192, 256)
    open(out, "w").write(txt)

if __name__ == "__main__":
    main(sys.argv[1] if len(sys.argv) > 1 else f"cdna_kernels/{NAME}.s")
```

```python
import sys, os
NAME = "recurrent_scan__spectral_fnet__dense_activation_squared_relu__prompt"
L = []
def e(s): L.append("    " + s)
def lab(s): L.append(s + ":")
def nop(n):
    while n > 0:
        k = min(n, 16); e(f"s_nop {k-1}"); n -= k
def vr(b, n): return f"v[{b}:{b+n-1}]" if n > 1 else f"v{b}"
def ar(b, n): return f"a[{b}:{b+n-1}]" if n > 1 else f"a{b}"

PROF = int(os.environ.get("PROF", "0"))
OPT = dict(kv.split("=") for kv in os.environ.get("OPT", "").split(",") if kv)
def opt(k, d): return type(d)(OPT.get(k, d))
def stamp(k):
    if PROF: e(f"s_memtime s[{80+2*k}:{81+2*k}]")
def prof_begin():
    if PROF: e("s_memrealtime s[96:97]")
def prof_end(kidx, tmp):
    if not PROF: return
    e("s_memrealtime s[98:99]")
    e("s_waitcnt lgkmcnt(0)")
    e("s_mov_b32 s76, s26"); e("s_and_b32 s77, s27, 0xffff"); e("s_mov_b32 s78, 0x40000"); e("s_mov_b32 s79, 0x00020000")
    e("s_lshl_b32 s30, s2, 3"); e("s_add_u32 s30, s30, s54"); e("s_lshl_b32 s30, s30, 6"); e(f"s_add_u32 s30, s30, {kidx*131072}")
    e("s_mov_b64 exec, 1")
    e(f"v_mov_b32 v{tmp}, 0")
    for k in range(10):
        e(f"v_mov_b32 v{tmp+1}, s{80+2*k}")
        e(f"buffer_store_dword v{tmp+1}, v{tmp}, s[76:79], s30 offen offset:{4*k}")
        e("s_nop 1")

TILE_B = opt('tk', 57) * 1024
WS_H2 = 0
WS_W2 = 0x800000
WS_AT = 0xA00000
ASTR = 17 * 16384
WS_X512 = WS_AT + 4 * ASTR
WS_CNT = WS_X512 + 4096
WS_SIZE = WS_CNT + 4096

def load_ptrs():
    e("s_load_dwordx16 s[4:19], s[0:1], 0")
    e("s_load_dwordx8 s[20:27], s[0:1], 64")
    e("s_load_dwordx2 s[28:29], s[0:1], 96")
def srd(d, p, nbytes):
    e(f"s_mov_b32 s{d}, s{p}")
    e(f"s_and_b32 s{d+1}, s{p+1}, 0xffff")
    e(f"s_mov_b32 s{d+2}, {nbytes:#x}")
    e(f"s_mov_b32 s{d+3}, 0x00020000")

def quad_consts(vmem, vbase, vsgn, vspec, tmp):
    e(f"v_mov_b32 v{vbase}, 0x400")
    e(f"v_cmp_eq_u32 vcc, 0, v{vmem}")
    e(f"v_add_u32 v{tmp}, 1, v{vmem}")
    e(f"v_and_b32 v{tmp}, 2, v{tmp}")
    e(f"v_cndmask_b32 v{vbase}, v{vbase}, 0, vcc")
    e(f"v_sub_u32 v{vsgn}, 1, v{tmp}")
    e(f"v_cmp_eq_u32 vcc, 1, v{vmem}")
    e(f"v_mov_b32 v{tmp}, 0x800")
    e(f"v_and_b32 v{vspec}, 1, v{vmem}")
    e(f"v_cndmask_b32 v{vbase}, v{vbase}, v{tmp}, vcc")
    e(f"v_lshlrev_b32 v{vspec}, 10, v{vspec}")
    e(f"v_lshrrev_b32 v{tmp}, 1, v{vmem}")
    e(f"v_lshl_add_u32 v{vspec}, v{tmp}, 9, v{vspec}")

ST_H2 = opt("sth2", "sc1")
ST_W2 = opt("stw2", "sc1")
ST_AT = opt("stat", "sc1")
ST_OUT = opt("stout", "")
def fl(s): return (" " + s.replace("+", " ")) if s else ""

SLOT = 24576
NSL = 5
K1_WB = 3 * SLOT
K1_TR = K1_WB + 57344
K1_GEN = K1_WB + 65536
K1_Z = K1_GEN + 16384
K1_LDS = K1_Z + 2048

def gen_k1():
    SCH = [x.split(".") if x else [] for x in opt("sch", "s0.s1.s2/s3.s4/s5.t/s6/s7.b6/b0.b1.b2/b3.b4.b5.T.b7.U//").split("/")]
    assert len(SCH) == 9
    for k, l in enumerate(SCH):
        for x in l:
            if x[0] == "s": assert int(x[1]) < 5 or k >= int(x[1]) - 3
            if x[0] == "b": assert k >= {0:5,1:5,2:5,3:6,4:6,5:6,6:0,7:0}[int(x[1])]
    flat = sum(SCH, []); assert flat.index("t") < flat.index("T") < flat.index("b7") and flat[-1] == "U"
    lab("k1_kernel")
    e("s_cmp_ge_u32 s2, 256")
    e("s_cbranch_scc1 K1_END")
    prof_begin(); stamp(0)
    load_ptrs()
    e("s_and_b32 s78, s2, 1")
    e("s_and_b32 s52, s2, 6")
    e("s_bfe_u32 s55, s2, 0x10003")
    e("s_add_u32 s52, s52, s55")
    e("s_lshr_b32 s53, s2, 4")
    e("s_lshl_b32 s73, s52, 1")
    e("s_add_u32 s73, s73, s78")
    e("s_add_u32 s73, s73, s53")
    e("s_and_b32 s73, s73, 7")
    V_LANE, V_I, V_G = 1, 2, 3
    V_WA = 4
    V_XA = 8
    V_GA = 10
    V_L16 = 11
    V_ZG = 12
    V_ATO = 13
    t = 16
    R = 24
    V_RING = 32
    V_X = 56
    V_ACC = 184
    V_E = 240
    NR = 6; PF = 4
    def xreg(ks, T): return V_X + (ks*2+T)*4
    def soff(st): return (st % NSL)*SLOT - (K1_WB if st in (3, 4) else 0)
    e("v_lshrrev_b32 v1, 6, v0")
    e("v_and_b32 v2, 15, v0")
    e("v_readfirstlane_b32 s54, v1")
    e(f"v_and_b32 v{V_LANE}, 63, v0")
    e(f"v_lshrrev_b32 v{V_G}, 4, v{V_LANE}")
    e("s_and_b32 s55, s54, 3")
    e("s_lshl_b32 s62, s55, 12")
    e("s_cmp_lt_u32 s54, 4")
    e("s_cbranch_scc1 K1_CONS")
    def xa_setup():
        e(f"v_lshrrev_b32 v{t}, 1, v{V_I}")
        e(f"v_xor_b32 v{t}, v{t}, v{V_G}")
        e(f"v_lshlrev_b32 v{t}, 4, v{t}")
        e(f"v_lshl_add_u32 v{t}, v{V_I}, 7, v{t}")
        e(f"v_add_u32 v{V_XA}, s62, v{t}")
        e(f"v_add_u32 v{V_XA}, 0x2000, v{V_XA}")
        e(f"v_xor_b32 v{V_XA+1}, 64, v{V_XA}")
    def wa_setup(js, add):
        e(f"v_lshrrev_b32 v{t}, 2, v{V_I}")
        e(f"v_and_b32 v{t+1}, 1, v{V_G}")
        e(f"v_lshrrev_b32 v{t+2}, 1, v{t}")
        e(f"v_lshl_add_u32 v{t+2}, v{t+1}, 1, v{t+2}")
        e(f"v_lshl_add_u32 v{t}, v{V_G}, 3, v{t}")
        e(f"v_lshlrev_b32 v{t}, 7, v{t}")
        e(f"v_lshl_add_u32 v{t}, v{t+2}, 5, v{t}")
        e(f"v_and_b32 v{t+1}, 3, v{V_I}")
        e(f"v_lshl_add_u32 v{t}, v{t+1}, 3, v{t}")
        if add: e(f"v_add_u32 v{t}, {add}, v{t}")
        for q, j in enumerate(js): e(f"v_xor_b32 v{V_WA+q}, {j<<5}, v{t}")
        e(f"v_lshlrev_b32 v{V_L16}, 4, v{V_LANE}")
        e(f"v_lshlrev_b32 v{V_ZG}, 4, v{V_G}")
        e(f"v_add_u32 v{V_ZG}, {K1_Z}, v{V_ZG}")
    def out_setup(jp0):
        e("s_lshl_b32 s60, s52, 4")
        e("s_lshr_b32 s61, s55, 1")
        e("s_lshl_b32 s61, s61, 3")
        e("s_add_u32 s60, s60, s61")
        e("s_lshl_b32 s61, s78, 2")
        e("s_add_u32 s60, s60, s61")
        e("s_and_b32 s61, s55, 1")
        e("s_lshl_b32 s61, s61, 1")
        e("s_add_u32 s60, s60, s61")
        e(f"s_mul_i32 s60, s60, {TILE_B}")
        e("s_lshl_b32 s61, s53, 12")
        e("s_add_u32 s60, s60, s61")
        if jp0: e(f"s_add_u32 s60, s60, {1024*jp0}")
        e(f"s_add_u32 s61, s60, {TILE_B}")
        e("s_or_b32 s63, s52, s55")
        e("s_or_b32 s63, s63, s78")
        e("s_cmp_eq_u32 s63, 0")
        e("s_cselect_b32 s76, 0xffff, 0")
        e("s_mov_b32 s77, 0")
        e("s_lshl_b32 s64, s78, 3")
        e("s_add_u32 s64, s64, s52")
        e("s_lshl_b32 s64, s64, 10")
        e("s_lshl_b32 s65, s55, 8")
        e("s_add_u32 s64, s64, s65")
        e(f"s_add_u32 s64, s64, {WS_AT:#x}")
        e("s_lshl_b32 s63, s55, 7")
        e("s_and_b32 s66, s53, 1")
        e("s_lshl_b32 s66, s66, 3")
        if jp0: e(f"s_add_u32 s66, s66, {2*jp0}")
        e("s_lshl_b32 s67, s66, 14")
        e("s_add_u32 s67, s67, s64")
        e("s_lshl_b32 s66, s66, 6")
        e(f"s_add_u32 s66, s66, {WS_X512:#x}")
        e(f"v_lshl_add_u32 v14, v{V_I}, 2, s66")
        e(f"v_and_b32 v{t+5}, 1, v{V_G}")
        e(f"v_mul_u32_u24 v{t+5}, {ASTR:#x}, v{t+5}")
        e(f"v_lshrrev_b32 v{t+6}, 1, v{V_G}")
        e(f"v_lshl_add_u32 v{t+5}, v{t+6}, 14, v{t+5}")
        e(f"v_lshl_add_u32 v{V_ATO}, v{V_I}, 4, v{t+5}")
        e(f"v_lshlrev_b32 v15, 2, v{V_I}")
        e(f"v_add_u32 v15, {K1_Z}, v15")
    if opt("hprio", 1): e("s_setprio 3")
    V_XO = 184; V_WO = 188; V_CA = 190; V_ZA = 191; V_ONES = 192; V_CS = 196; V_TO = 200; V_TA = 201
    h = 202
    V_TD = 216; V_D = 224
    e("s_lshl_b32 s56, s52, 6")
    e("s_add_u32 s56, s56, s78")
    e("s_lshl_b32 s57, s55, 4")
    e("s_add_u32 s56, s56, s57")
    e(f"v_bfe_u32 v{h}, v{V_LANE}, 3, 2")
    quad_consts(h, h+1, h+2, h+3, h+4)
    e(f"v_lshrrev_b32 v{h+4}, 5, v{V_LANE}")
    e(f"v_lshl_add_u32 v{h+4}, v{h+4}, 1, s56")
    e(f"v_and_b32 v{h+5}, 7, v{V_LANE}")
    e(f"v_xor_b32 v{h+5}, v{h+5}, v{V_G}")
    e(f"v_lshlrev_b32 v{h+5}, 4, v{h+5}")
    e(f"v_xor_b32 v{h+6}, 64, v{h+5}")
    for q in range(4):
        if q: e(f"v_add_u32 v{h+4}, 4, v{h+4}")
        e(f"v_mad_i32_i24 v{h+7}, v{h+2}, v{h+4}, v{h+1}")
        if q == 0:
            e(f"v_cmp_eq_u32 vcc, 0, v{h+4}")
            nop(2)
            e(f"v_cndmask_b32 v{h+7}, v{h+7}, v{h+3}, vcc")
        e(f"v_lshl_add_u32 v{V_XO+q}, v{h+7}, 10, v{h+5+(q&1)}")
    e(f"v_and_b32 v{h}, 7, v{V_LANE}")
    e(f"v_and_b32 v{h+1}, 1, v{V_G}")
    e(f"v_lshlrev_b32 v{h+1}, 1, v{h+1}")
    e(f"v_xor_b32 v{h}, v{h}, v{h+1}")
    e(f"v_lshlrev_b32 v{h}, 4, v{h}")
    e(f"v_xor_b32 v{h+1}, 64, v{h}")
    e(f"v_lshrrev_b32 v{h+2}, 3, v{V_LANE}")
    e("s_lshl_b32 s57, s55, 11")
    e("s_lshl_b32 s72, s73, 7")
    e("s_waitcnt lgkmcnt(0)")
    srd(32, 4, 2048*512*2)
    e("s_cmp_lt_u32 s53, 14")
    e("s_cbranch_scc0 K1_H_DSRC")
    srd(44, 16, 512*3584)
    e("s_mov_b32 s58, 3584")
    e("s_lshl_b32 s59, s53, 8")
    e("s_branch K1_H_SRC")
    lab("K1_H_DSRC")
    srd(44, 10, 512*1024)
    e("s_mov_b32 s58, 1024")
    e("s_sub_u32 s59, s53, 14")
    e("s_lshl_b32 s59, s59, 8")
    lab("K1_H_SRC")
    e(f"v_mad_u32_u24 v{V_WO}, v{h+2}, s58, v{h}")
    e(f"v_mad_u32_u24 v{V_WO+1}, v{h+2}, s58, v{h+1}")
    e("s_lshl_b32 s60, s55, 4")
    e("s_mul_i32 s60, s60, s58")
    e("s_add_u32 s60, s60, s59")
    e("s_add_u32 s61, s60, 128")
    e("s_lshl_b32 s63, s58, 3")
    e("s_lshr_b32 s59, s58, 1")
    VQ = []
    def vwait(tag):
        idx = max([i for i, x in enumerate(VQ) if x == tag], default=-1)
        if idx >= 0:
            e(f"s_waitcnt vmcnt({len(VQ) - 1 - idx})")
            del VQ[:idx+1]
    def S_ops(k):
        b = k % NSL
        def xop(q):
            def f():
                if q == 0:
                    e(f"s_add_u32 s74, s72, {k*128}")
                    e(f"s_and_b32 s74, s74, 1023")
                e(f"s_add_u32 m0, s62, {b*SLOT + 8192 + q*1024}")
                if q == 0: e("s_mul_i32 s75, s74, s59")
                elif q == 1: e("s_add_u32 s75, s75, s60")
                else: e("s_nop 0")
                e(f"buffer_load_dwordx4 v{V_XO+q}, s[32:35], s74 offen lds"); VQ.append(("st", k))
            return f
        def wop(q):
            def f():
                e(f"s_add_u32 m0, s57, {b*SLOT + q*1024}")
                e("s_nop 0" if q == 0 else "s_add_u32 s75, s75, s63")
                e(f"buffer_load_dwordx4 v{V_WO+q}, s[44:47], s75 offen lds"); VQ.append(("st", k))
            return f
        return [xop(0), xop(1), wop(0), xop(2), xop(3), wop(1)]
    def B_ops(g):
        ops = []
        for q in range(2):
            def f(g=g, q=q):
                if q == 0:
                    e(f"s_add_u32 s75, s72, {g*128}")
                    e(f"s_and_b32 s75, s75, 1023")
                    e("s_mul_i32 s75, s75, s59")
                e(f"s_add_u32 m0, s57, {K1_WB + g*8192 + q*1024}")
                e(f"s_add_u32 s75, s75, {'s61' if q == 0 else 's63'}")
                e(f"buffer_load_dwordx4 v{V_WO+q}, s[44:47], s75 offen lds"); VQ.append(("wb", 0))
            ops.append(f)
        return ops
    def t_ops():
        def f0():
            e(f"s_add_u32 m0, s57, {K1_TR}")
            e("s_add_u32 s70, s68, 16384")
            e(f"buffer_load_dwordx4 v{V_TO}, s[48:51], s68 offen lds"); VQ.append(("t", 0))
        def f1():
            e(f"s_add_u32 m0, s57, {K1_TR+1024}")
            e("s_nop 0")
            e(f"buffer_load_dwordx4 v{V_TO}, s[48:51], s70 offen lds"); VQ.append(("t", 0))
        return [f0, f1]
    def T_op():
        vwait(("t", 0))
        for m in range(2):
            for u in range(2):
                e(f"ds_read_b64_tr_b16 {vr(V_TD+4*m+2*u,2)}, v{V_TA} offset:{u*1024 + m*32}")
        e(f"s_add_u32 s70, s71, {TILE_B}")
        e("s_waitcnt lgkmcnt(0)")
    def U_op():
        e(f"v_lshlrev_b32 v{h+3}, 4, v{V_LANE}")
        e(f"buffer_store_dwordx4 {vr(V_TD,4)}, v{h+3}, s[36:39], s71 offen{fl(ST_W2)}"); VQ.append(("u", 0))
        e(f"buffer_store_dwordx4 {vr(V_TD+4,4)}, v{h+3}, s[36:39], s70 offen{fl(ST_W2)}"); VQ.append(("u", 0))
    def sched(k):
        ops = []
        for x in SCH[k]:
            if x[0] == "s": ops += S_ops(int(x[1]))
            elif x[0] == "b": ops += B_ops(int(x[1]))
            elif x == "t": ops += t_ops()
            elif x == "T": ops.append(T_op)
            else: ops.append(U_op)
        return ops
    assert SCH[0][0] == "s0"
    SCH[0] = SCH[0][1:]
    for f in S_ops(0): f()
    srd(40, 18, 1792*2)
    e(f"v_lshlrev_b32 v{h+3}, 2, v{V_LANE}")
    e("s_lshl_b32 s71, s53, 8")
    e(f"buffer_load_dword v{h+10}, v{h+3}, s[40:43], s71 offen"); VQ.append(("st", 0))
    for f in sched(0): f()
    stamp(1)
    srd(36, 28, WS_SIZE)
    srd(48, 20, 1792*512*2)
    e("s_min_u32 s65, s2, 223")
    e("s_lshr_b32 s66, s65, 3")
    e("s_lshl_b32 s66, s66, 1")
    e("s_lshr_b32 s67, s55, 1")
    e("s_add_u32 s66, s66, s67")
    e("s_and_b32 s67, s65, 7")
    e("s_lshl_b32 s67, s67, 1")
    e("s_and_b32 s65, s55, 1")
    e("s_add_u32 s67, s67, s65")
    e("s_lshl_b32 s67, s67, 1")
    e(f"s_mul_i32 s71, s67, {TILE_B}")
    e("s_lshl_b32 s65, s66, 10")
    e("s_add_u32 s71, s71, s65")
    e(f"s_add_u32 s71, s71, {WS_W2:#x}")
    e("s_lshl_b32 s68, s66, 15")
    e("s_lshl_b32 s69, s67, 5")
    e("s_add_u32 s68, s68, s69")
    e(f"v_and_b32 v{h+1}, 3, v{V_LANE}")
    e(f"v_lshlrev_b32 v{h+1}, 4, v{h+1}")
    e(f"v_lshrrev_b32 v{h+2}, 2, v{V_LANE}")
    e(f"v_lshl_add_u32 v{V_TO}, v{h+2}, 10, v{h+1}")
    for k in range(4): e(f"v_mov_b32 v{V_ONES+k}, 0x3f803f80")
    e(f"v_lshrrev_b32 v{h}, 2, v{V_I}")
    e(f"v_and_b32 v{h+1}, 1, v{V_G}")
    e(f"v_lshrrev_b32 v{h+2}, 1, v{h}")
    e(f"v_lshl_add_u32 v{h+2}, v{h+1}, 1, v{h+2}")
    e(f"v_xor_b32 v{h+2}, s55, v{h+2}")
    e(f"v_lshl_add_u32 v{h}, v{h+1}, 3, v{h}")
    e(f"v_lshrrev_b32 v{h+1}, 1, v{V_G}")
    e(f"v_lshl_add_u32 v{h}, v{h+1}, 2, v{h}")
    e(f"v_lshlrev_b32 v{h}, 7, v{h}")
    e(f"v_lshl_add_u32 v{h}, v{h+2}, 5, v{h}")
    e(f"v_and_b32 v{h+1}, 3, v{V_I}")
    e(f"v_lshl_add_u32 v{V_CA}, v{h+1}, 3, v{h}")
    e(f"v_lshlrev_b32 v{h+5}, 3, v{V_LANE}")
    e(f"v_add_u32 v{h+5}, {K1_Z}, v{h+5}")
    e("s_lshl_b32 s64, s55, 6")
    e(f"s_add_u32 s64, s64, {K1_Z}")
    e(f"v_lshl_add_u32 v{V_ZA}, v{V_G}, 4, s64")
    e(f"v_lshrrev_b32 v{h+2}, 2, v{V_I}")
    e(f"v_lshl_add_u32 v{h+2}, v{V_G}, 2, v{h+2}")
    e(f"v_lshlrev_b32 v{h+2}, 6, v{h+2}")
    e(f"v_lshl_add_u32 v{h+2}, v{h+1}, 3, v{h+2}")
    e(f"s_add_u32 s64, s57, {K1_TR}")
    e(f"v_add_u32 v{V_TA}, s64, v{h+2}")
    xa_setup()
    wa_setup((2, 3), K1_WB)
    def cs_write(off):
        e("s_mov_b32 exec_lo, 0x10001"); e("s_mov_b32 exec_hi, 0x10001")
        e(f"ds_write_b128 v{V_ZA}, {vr(V_CS,4)} offset:{off}")
        e("s_mov_b64 exec, -1")
    def cs_mma(src, first):
        e(f"v_mfma_f32_16x16x32_bf16 {vr(V_CS,4)}, {vr(src,4)}, {vr(V_ONES,4)}, {'0' if first else vr(V_CS,4)}")
    for k in range(8):
        if k == 3 or k == 5:
            op = "v_add_u32" if k == 3 else "v_subrev_u32"
            for r_ in (V_CA, V_XA, V_XA+1): e(f"{op} v{r_}, {K1_WB}, v{r_}")
        vwait(("st", k))
        if k == 0:
            e(f"v_lshlrev_b32 v{h+6}, 16, v{h+10}")
            e(f"v_and_b32 v{h+7}, 0xffff0000, v{h+10}")
            e(f"ds_write_b64 v{h+5}, {vr(h+6,2)} offset:1536")
        e("s_barrier")
        if k == 0: stamp(2)
        if k == 7: stamp(3)
        dm = sched(k + 1)
        for f in dm[:1]: f()
        for u in range(4):
            e(f"ds_read_b64_tr_b16 {vr(V_D+2*u,2)}, v{V_CA} offset:{soff(k) + u*2048}")
        for f in dm[1:2]: f()
        for kk in range(2):
            for T in range(2):
                e(f"ds_read_b128 {vr(xreg(2*k+kk,T),4)}, v{V_XA+kk} offset:{soff(k) + T*2048}")
        for f in dm[2:4]: f()
        e("s_waitcnt lgkmcnt(4)")
        cs_mma(V_D, k == 0); cs_mma(V_D+4, False)
        for f in dm[4:]: f()
        if k < 7: e("s_waitcnt lgkmcnt(0)")
    e(f"v_add_u32 v{V_CA}, {K1_WB}, v{V_CA}")
    out_setup(3)
    cs_write(0)
    vwait(("wb", 0))
    e("s_waitcnt lgkmcnt(0)")
    stamp(4)
    e("s_barrier")
    for c in range(4):
        if c > 1: e("s_waitcnt lgkmcnt(8)")
        if c > 1:
            for u in range(4): cs_mma(V_D+(c&1)*16+4*u, c == 2 and u == 0)
        for u in range(8):
            if c == 1 and u == 7: e("s_waitcnt lgkmcnt(10)")
            e(f"ds_read_b64_tr_b16 {vr(V_D+(c&1)*16+2*u,2)}, v{V_CA} offset:{(c*8+u)*2048}")
    for c in range(2):
        e(f"s_waitcnt lgkmcnt({8*(1-c)})")
        for u in range(4): cs_mma(V_D+c*16+4*u, False)
    e(f"v_add_u32 v{V_GA}, 384, v{V_ZG}")
    e(f"v_add_u32 v{t+7}, 384, v15")
    nop(8)
    cs_write(256)
    e("s_waitcnt lgkmcnt(0)")
    stamp(5)
    e("s_barrier")
    if opt("hprio", 1): e("s_setprio 0")
    e("s_cmp_lt_u32 s53, 14")
    e("s_cbranch_scc1 K1_PB_F")
    e("s_branch K1_PB_D")

    lab("K1_CONS")
    G = V_X
    e(f"v_lshl_add_u32 v{t}, s53, 4, v{V_I}")
    e(f"v_cmp_eq_u32 vcc, 0, v{t}")
    e(f"v_mov_b32 v{t+1}, 0x100")
    e(f"v_mov_b32 v{t+3}, 0xbe800000")
    e(f"v_cndmask_b32 v{t}, v{t}, v{t+1}, vcc")
    e(f"v_cndmask_b32 v{t+3}, 0, v{t+3}, vcc")
    e(f"v_cvt_f32_u32 v{t}, v{t}")
    e(f"v_mul_f32 v{t}, 0x3b000000, v{t}")
    e("s_lshl_b32 s64, s55, 7")
    e("s_lshl_b32 s65, s73, 6")
    e("s_add_u32 s64, s64, s65")
    e(f"v_lshl_add_u32 v{t+1}, v{V_G}, 3, s64")
    e(f"v_cvt_f32_u32 v{t+1}, v{t+1}")
    e(f"v_fma_f32 v{G}, v{t+1}, v{t}, v{t+3}")
    e(f"v_fract_f32 v{G}, v{G}")
    for k in range(1, 8): e(f"v_add_f32 v{G+k}, v{G+k-1}, v{t}")
    e(f"v_mul_f32 v{t}, 0x42000000, v{t}")
    e(f"v_lshlrev_b32 v{V_GA}, 4, v{V_LANE}")
    e(f"v_add_u32 v{V_GA}, {K1_GEN}, v{V_GA}")
    e(f"v_add_u32 v{t+4}, s62, v{V_GA}")
    for ks in range(4):
        for k in range(8):
            e(f"v_sin_f32 v{G+8+k}, -v{G+k}")
            if ks < 3: e(f"v_add_f32 v{G+k}, v{G+k}, v{t}")
        if ks == 3: e("s_nop 0")
        for k in range(4): e(f"v_cvt_pk_bf16_f32 v{G+16+4*ks+k}, v{G+8+2*k}, v{G+8+2*k+1}")
        e(f"ds_write_b128 v{t+4}, {vr(G+16+4*ks,4)} offset:{ks*1024}")
    wa_setup((0, 1, 2, 3), 0)
    xa_setup()
    for k in range(4): e(f"v_mov_b32 v{V_E+k}, 0x3f803f80")
    out_setup(0)
    e("s_waitcnt lgkmcnt(0)")
    srd(36, 28, WS_SIZE)
    e("s_or_b32 s68, s2, s54")
    e("s_cmp_eq_u32 s68, 0")
    e("s_cselect_b64 exec, 0xff, 0")
    e(f"v_lshlrev_b32 v{t}, 8, v{V_LANE}")
    e(f"v_mov_b32 v{t+1}, 0")
    e(f"v_add_u32 v{t}, {WS_CNT:#x}, v{t}")
    e(f"buffer_store_dword v{t+1}, v{t}, s[36:39], 0 offen sc1")
    e("s_mov_b64 exec, -1")
    e("s_cmp_lt_u32 s53, 14")
    e("s_cbranch_scc0 K1_VAR_D")

    def acc(j, T):
        if j < 4: return V_ACC + (j*2+T)*4
        if j == 8: return V_ACC + 32 + T*4
        return V_ACC + 40 + ((j-4)*2+T)*4
    def variant(tag, ffn):
        lab(f"K1_VAR_{tag}")
        Q = []; pend = []
        def need(tags):
            assert not any(tg in tags for tg, _ in pend), (tags, pend)
            idx = max([i for i, x in enumerate(Q) if x in tags], default=-1)
            if idx >= 0:
                e(f"s_waitcnt lgkmcnt({len(Q)-1-idx})")
                del Q[:idx+1]
        def pop(n):
            for _ in range(min(n, len(pend))):
                tg, ins = pend.pop(0); e(ins); Q.append(tg)
            assert len(Q) <= 15
        def mm(ins):
            e(ins); pop(2 if len(pend) > 2 else 1)
        def mfma(j, ks, slot):
            for T in range(2):
                a_ = acc(j, T); xf = vr(xreg(ks, T), 4); c_ = "0" if ks == 0 else vr(a_, 4)
                if ffn and j < 8: mm(f"v_mfma_f32_16x16x32_bf16 {vr(a_,4)}, {vr(slot,4)}, {xf}, {c_}")
                else: mm(f"v_mfma_f32_16x16x32_bf16 {vr(a_,4)}, {xf}, {vr(slot,4)}, {c_}")
        def rdA(n):
            ks, jj = divmod(n, 5); st, kk = divmod(ks, 2)
            slot = V_RING + (n % NR)*4
            if jj < 4:
                off = soff(st) + kk*4096
                pend.append((("w", n), f"ds_read_b64_tr_b16 {vr(slot,2)}, v{V_WA+jj} offset:{off}"))
                pend.append((("w", n), f"ds_read_b64_tr_b16 {vr(slot+2,2)}, v{V_WA+jj} offset:{off+512}"))
            else:
                pend.append((("w", n), f"ds_read_b128 {vr(slot,4)}, v{V_GA} offset:{ks*1024}"))
        def rdX(ks):
            st, kk = divmod(ks, 2)
            for T in range(2):
                pend.append((("x", ks), f"ds_read_b128 {vr(xreg(ks,T),4)}, v{V_XA+kk} offset:{soff(st) + T*2048}"))
        def stage_start(n0):
            if n0 in (30, 50):
                op = "v_add_u32" if n0 == 30 else "v_subrev_u32"
                for r_ in (V_WA, V_WA+1, V_WA+2, V_WA+3, V_XA, V_XA+1): e(f"{op} v{r_}, {K1_WB}, v{r_}")
            e("s_barrier")
            rdX(n0 // 5)
            for n in range(n0, n0+PF): rdA(n)
        ST = V_ACC + 40
        stage_start(0); pop(10)
        stamp(2)
        for n in range(80):
            rem = n % 10; ks, jj = divmod(n, 5)
            if rem == 0: rdX(ks + 1)
            if rem + PF < 10: rdA(n + PF)
            if rem == 8 and n < 70:
                pop(99)
                e("s_waitcnt lgkmcnt(0)"); Q.clear()
                stage_start(n + 2)
            need([("w", n), ("x", ks)])
            mfma(jj if jj < 4 else 8, ks, V_RING + (n % NR)*4)
            if jj in (1, 3):
                T = jj >> 1; xf = vr(xreg(ks, T), 4)
                for a_, o1 in ((ST + 4*T, vr(V_E, 4)), (ST + 8 + 4*T, xf)):
                    mm(f"v_mfma_f32_16x16x32_bf16 {vr(a_,4)}, {o1}, {xf}, {'0' if ks == 0 else vr(a_,4)}")
        stamp(3)
        for j in range(2): e(f"v_add_u32 v{V_WA+j}, {K1_WB}, v{V_WA+j}")
        e(f"v_add_u32 v{t+1}, s63, v15")
        e("s_nop 0")
        for q in range(1, 4):
            e(f"s_mov_b32 s68, {0x11111111 << q:#x}"); e(f"s_mov_b32 s69, {0x11111111 << q:#x}")
            for T in range(2): e(f"v_cndmask_b32 v{ST+8+4*T}, v{ST+8+4*T}, v{ST+8+4*T+q}, s[68:69]")
        def both(f):
            for T in range(2): e(f(ST+4*T, ST+8+4*T, ST+4*T+1))
        both(lambda vS, vQ, tmp: f"v_mul_f32 v{vS}, 0x3b000000, v{vS}")
        both(lambda vS, vQ, tmp: f"v_mul_f32 v{vQ}, 0x3b000000, v{vQ}")
        both(lambda vS, vQ, tmp: f"v_fma_f32 v{vQ}, -v{vS}, v{vS}, v{vQ}")
        both(lambda vS, vQ, tmp: f"v_max_f32 v{vQ}, 0, v{vQ}")
        both(lambda vS, vQ, tmp: f"v_cvt_pk_bf16_f32 v{tmp}, v{vS}, v{vQ}")
        both(lambda vS, vQ, tmp: f"v_lshlrev_b32 v{vS}, 16, v{tmp}")
        both(lambda vS, vQ, tmp: f"v_and_b32 v{vQ}, 0xffff0000, v{tmp}")
        both(lambda vS, vQ, tmp: f"v_add_f32 v{vQ}, 0x3727c5ac, v{vQ}")
        both(lambda vS, vQ, tmp: f"v_cvt_pk_bf16_f32 v{tmp}, v{vQ}, v{vQ}")
        both(lambda vS, vQ, tmp: f"v_lshlrev_b32 v{vQ}, 16, v{tmp}")
        both(lambda vS, vQ, tmp: f"v_sqrt_f32 v{vQ}, v{vQ}")
        e("s_nop 0")
        both(lambda vS, vQ, tmp: f"v_cvt_pk_bf16_f32 v{tmp}, v{vQ}, v{vQ}")
        both(lambda vS, vQ, tmp: f"v_lshlrev_b32 v{vQ}, 16, v{tmp}")
        both(lambda vS, vQ, tmp: f"v_rcp_f32 v{vQ}, v{vQ}")
        e("s_mov_b32 exec_lo, 0x00f0000f"); e("s_mov_b32 exec_hi, 0xf0000f00")
        for T in range(2):
            e(f"ds_write_b32 v{t+1}, v{ST+4*T} offset:{512+64*T}")
            e(f"ds_write_b32 v{t+1}, v{ST+8+4*T} offset:{1024+64*T}")
        e("s_mov_b64 exec, -1")
        e("s_waitcnt lgkmcnt(0)")
        e("s_barrier")
        stamp(1)
        def rd_S(S, mean=True):
            r = [f"v_add_u32 v{t+4}, s63, v{V_ZG}"]
            for T in range(2):
                if mean: r.append(f"ds_read_b128 {vr(S+8*T,4)}, v{t+4} offset:{512+64*T}")
                r.append(f"ds_read_b128 {vr(S+8*T+4,4)}, v{t+4} offset:{1024+64*T}")
            return r
        def rd_R():
            return [f"v_add_u32 v{t+1}, s63, v15"] + [f"ds_read_b32 v{R+2*q}, v{t+1} offset:{512*(1+(q&1)) + 64*(q>>1)}" for q in range(4)]
        def rd_cb(base, jp, CB):
            r = []
            for hh in range(2):
                r.append(f"ds_read_b128 {vr(CB+4*hh,4)}, v{base} offset:{64*(2*jp+hh)}")
                r.append(f"ds_read_b128 {vr(CB+8+4*hh,4)}, v{base} offset:{1536+64*(2*jp+hh)}")
            return r
        def ffn_pair(j0, so, CB, O):
            for T in range(2):
                o = O + T*12
                for hh in range(2):
                    for k in range(2):
                        e(f"v_pk_fma_f32 {vr(o+4*hh+2*k,2)}, {vr(R+4*T,2)}, {vr(CB+4*hh+2*k,2)}, {vr(CB+8+4*hh+2*k,2)} op_sel_hi:[0,1,1] neg_lo:[1,0,0] neg_hi:[1,0,0]")
                for hh in range(2):
                    for k in range(2):
                        e(f"v_pk_fma_f32 {vr(o+4*hh+2*k,2)}, {vr(R+4*T+2,2)}, {vr(acc(j0+hh,T)+2*k,2)}, {vr(o+4*hh+2*k,2)} op_sel_hi:[0,1,1]")
                for k in range(8): e(f"v_mul_f32 v{o+k}, v{o+k}, |v{o+k}|")
                for k in range(4): e(f"v_cvt_pk_bf16_f32 v{o+8+k}, v{o+2*k}, v{o+2*k+1}")
                for k in range(4): e(f"v_pk_max_i16 v{o+8+k}, v{o+8+k}, 0")
                e(f"buffer_store_dwordx4 {vr(o+8,4)}, v{V_L16}, s[36:39], s{60+T} offen offset:{so}{fl(ST_H2)}")
        def xstore(tagj, vaddr, vdata):
            e("s_cmp_eq_u32 s76, 0")
            e(f"s_cbranch_scc1 K1_NOX_{tagj}")
            e("s_mov_b64 exec, s[76:77]")
            e(f"buffer_store_dword v{vdata}, v{vaddr}, s[36:39], 0 offen")
            e("s_mov_b64 exec, -1")
            lab(f"K1_NOX_{tagj}")
        def transpose4(o):
            nop(2)
            e(f"v_permlane32_swap_b32 v{o}, v{o+2}")
            e(f"v_permlane32_swap_b32 v{o+1}, v{o+3}")
            nop(2)
            e(f"v_permlane16_swap_b32 v{o}, v{o+1}")
            e(f"v_permlane16_swap_b32 v{o+2}, v{o+3}")
        def dft_pair(j0, S, CS, W):
            PL = W; MI = W + 2; VV = W + 4; o = W + 12
            for hh in range(2):
                j = j0 + hh
                for T in range(2):
                    a_ = acc(j, T)
                    for k in range(4): e(f"v_fma_f32 v{VV+k}, -v{S+8*T+k}, v{CS+hh}, v{a_+k}")
                    for k in range(4): e(f"v_mul_f32 v{VV+k}, v{VV+k}, v{S+8*T+4+k}")
                    e(f"v_add_f32 v{VV+4}, v{VV}, v{VV+1}")
                    e(f"v_add_f32 v{VV+5}, v{VV+2}, v{VV+3}")
                    e(f"v_add_f32 v{PL+T}, v{VV+4}, v{VV+5}")
                    e(f"v_sub_f32 v{MI+T}, v{VV+4}, v{VV+5}")
                    if T == 0:
                        e(f"v_sub_f32 v{VV+6}, v{VV}, v{VV+1}")
                        e(f"v_cndmask_b32 v{PL}, v{PL}, v{VV+4}, s[76:77]")
                        e(f"v_cndmask_b32 v{MI}, v{MI}, v{VV+6}, s[76:77]")
                        xstore(f"{tag}_{j}", 14, VV+5)
                        e(f"v_add_u32 v14, 64, v14")
                e(f"v_cvt_pk_bf16_f32 v{o+2*hh}, v{PL}, v{PL+1}")
                e(f"v_cvt_pk_bf16_f32 v{o+2*hh+1}, v{MI}, v{MI+1}")
            transpose4(o)
            e(f"buffer_store_dwordx4 {vr(o,4)}, v{V_ATO}, s[36:39], s67 offen{fl(ST_AT)}")
            e("s_add_u32 s67, s67, 0x8000")
        def gen_tile(S, W):
            PL = W; MI = W + 2; VV = W + 4; o = W + 12
            e(f"v_lshl_add_u32 v{t}, s53, 4, v{V_I}")
            e(f"v_cmp_eq_u32 vcc, 0, v{t}")
            e("s_lshl_b32 s66, s53, 14")
            e(f"s_add_u32 s66, s66, {3*ASTR:#x}")
            e(f"v_mov_b32 v{t+2}, {ASTR:#x}")
            e(f"v_mul_lo_u32 v{t+2}, v{t+2}, v{V_G}")
            e(f"v_sub_u32 v{t+1}, s66, v{t+2}")
            e(f"v_add_u32 v{t+2}, {16*16384:#x}, v{t+2}")
            e(f"v_cndmask_b32 v{t+1}, v{t+1}, v{t+2}, vcc")
            e(f"v_lshl_add_u32 v{t+1}, v{V_I}, 4, v{t+1}")
            e(f"v_mov_b32 v{t+2}, -1.0")
            e(f"v_cndmask_b32 v{t+2}, v{t+2}, 1.0, vcc")
            e(f"v_add_u32 v{t+6}, 288, v{t}")
            e(f"v_mov_b32 v{t+7}, 0x100")
            e(f"v_cndmask_b32 v{t+6}, v{t+6}, v{t+7}, vcc")
            e(f"v_lshlrev_b32 v{t+6}, 2, v{t+6}")
            e(f"v_add_u32 v{t+6}, {WS_X512:#x}, v{t+6}")
            for T in range(2):
                a_ = acc(8, T)
                for k in range(4): e(f"v_mul_f32 v{VV+k}, v{a_+k}, v{S+8*T+4+k}")
                e(f"v_fma_f32 v{VV+4}, v{t+2}, v{VV+1}, v{VV}")
                e(f"v_fma_f32 v{VV+5}, v{t+2}, v{VV+3}, v{VV+2}")
                e(f"v_add_f32 v{PL+T}, v{VV+4}, v{VV+5}")
                e(f"v_sub_f32 v{MI+T}, v{VV+4}, v{VV+5}")
                if T == 0:
                    e(f"v_sub_f32 v{VV+6}, v{VV}, v{VV+1}")
                    e(f"v_cndmask_b32 v{VV+6}, 0, v{VV+6}, vcc")
                    e(f"v_cndmask_b32 v{VV+7}, 0, v{VV+4}, vcc")
                    e(f"v_cndmask_b32 v{PL}, v{PL}, v{VV+7}, s[76:77]")
                    e(f"v_cndmask_b32 v{MI}, v{MI}, v{VV+6}, s[76:77]")
                    xstore(f"{tag}_g", t+6, VV+5)
            e(f"v_cvt_pk_bf16_f32 v{o}, v{PL}, v{PL+1}")
            e(f"v_cvt_pk_bf16_f32 v{o+1}, v{MI}, v{MI+1}")
            transpose4(o)
            e("s_mov_b32 exec_hi, 0")
            e(f"buffer_store_dwordx4 {vr(o,4)}, v{t+1}, s[36:39], s64 offen{fl(ST_AT)}")
            e("s_mov_b32 exec_hi, -1")
        B1 = V_ACC + 40
        if ffn:
            for x in rd_R()[1:] + rd_cb(V_ZG, 0, V_E) + rd_cb(V_ZG, 1, B1): e(x)
            e("s_waitcnt lgkmcnt(4)")
            e(f"v_mul_f32 v{R}, v{R}, v{R+2}")
            e(f"v_mul_f32 v{R+4}, v{R+4}, v{R+6}")
            ffn_pair(0, 0, V_E, V_RING)
            for x in rd_S(V_E, mean=False): e(x)
            e("s_waitcnt lgkmcnt(0)")
            e("s_barrier")
            gen_tile(V_E, V_RING)
            ffn_pair(2, 1024, B1, V_ACC)
            e("s_add_u32 s60, s60, 0x800"); e("s_add_u32 s61, s61, 0x800")
        else:
            for x in rd_S(V_E): e(x)
            for j in range(4): e(f"ds_read_b32 v{R+j}, v15 offset:{64*j}")
            e("s_waitcnt lgkmcnt(0)")
            dft_pair(0, V_E, R, V_RING)
            e("s_barrier")
            dft_pair(2, V_E, R+2, B1)
            gen_tile(V_E, V_RING)
        e(f"v_add_u32 v{V_GA}, 256, v{V_ZG}")
        e(f"v_add_u32 v{t+7}, 256, v15")
        stamp(4)
        lab(f"K1_PB_{tag}")
        def rdB(n):
            ks, hh = divmod(n, 2)
            slot = V_RING + (n % NR)*4
            pend.append((("w", n), f"ds_read_b64_tr_b16 {vr(slot,2)}, v{V_WA+hh} offset:{ks*4096}"))
            pend.append((("w", n), f"ds_read_b64_tr_b16 {vr(slot+2,2)}, v{V_WA+hh} offset:{ks*4096+512}"))
        Q.clear()
        PB = 5
        for n in range(PB): rdB(n)
        pop(99)
        ep = (rd_R() + rd_cb(V_GA, 0, V_E)) if ffn else (rd_S(V_E) + [f"ds_read_b32 v{R+j}, v{t+7} offset:{64*j}" for j in range(2)])
        e(ep[0])
        for n in range(32):
            ks, hh = divmod(n, 2)
            if n + PB < 32: rdB(n + PB)
            if n + PB == 32: pend.extend((("c", 0), x) for x in ep[1:])
            need([("w", n)])
            mfma(4 + hh, ks, V_RING + (n % NR)*4)
        assert not pend
        stamp(6)
        e("s_waitcnt lgkmcnt(0)")
        if ffn:
            e(f"v_mul_f32 v{R}, v{R}, v{R+2}")
            e(f"v_mul_f32 v{R+4}, v{R+4}, v{R+6}")
            nop(2)
            ffn_pair(4, 0, V_E, V_RING)
        else:
            nop(8)
            dft_pair(4, V_E, R, V_RING)
        if PROF: e("s_waitcnt vmcnt(0)")
        stamp(7)
        prof_end(0, 1)
        e("s_endpgm")
    variant("F", True)
    variant("D", False)
    lab("K1_END")
    e("s_endpgm")

PP = 272
K2_F = 0
K2_D = 3 * 64 * PP
DP = 208
DARR = 17 * DP
K2_LDS = K2_D + 4 * DARR

def gen_k2():
    DEPTH = opt("depth", 8); DD = opt("ddepth", 8); MAP2 = opt("map2", 0)
    lab("k2_kernel")
    e("s_cmp_ge_u32 s2, 256")
    e("s_cbranch_scc1 K2_END")
    prof_begin(); stamp(0)
    load_ptrs()
    V_LANE, V_I, V_G = 1, 2, 3
    V_L16 = 4
    V_XO = 5
    V_XV = 6
    V_B2 = 14
    V_OA = 22
    t = 30
    V_ACC = 48
    V_ST = 120
    e("v_lshrrev_b32 v1, 6, v0")
    e("v_and_b32 v2, 15, v0")
    e("v_readfirstlane_b32 s54, v1")
    e(f"v_and_b32 v{V_LANE}, 63, v0")
    e(f"v_lshrrev_b32 v{V_G}, 4, v{V_LANE}")
    e(f"v_lshlrev_b32 v{V_L16}, 4, v{V_LANE}")
    e("s_waitcnt lgkmcnt(0)")
    srd(36, 28, WS_SIZE)
    if opt("dyn", 1):
        e(f"v_mov_b32 v{t+2}, 0")
        e("s_getreg_b32 s40, hwreg(HW_REG_XCC_ID)")
        e("s_cmp_eq_u32 s54, 0")
        e("s_cbranch_scc0 K2_TPRE")
        e("s_mov_b32 s41, 0")
        e("s_mov_b64 exec, 1")
        lab("K2_TLOOP")
        e("s_and_b32 s40, s40, 7")
        e("s_lshl_b32 s42, s40, 8")
        e(f"s_add_u32 s42, s42, {WS_CNT:#x}")
        e(f"v_mov_b32 v{t}, s42")
        e(f"v_mov_b32 v{t+1}, 1")
        e(f"buffer_atomic_add v{t+1}, v{t}, s[36:39], 0 offen sc0 sc1")
        e("s_waitcnt vmcnt(0)")
        e(f"v_readfirstlane_b32 s42, v{t+1}")
        e("s_lshl_b32 s43, s42, 3")
        e("s_or_b32 s43, s43, s40")
        e("s_cmp_lt_u32 s42, 32")
        e("s_cbranch_scc1 K2_TDONE")
        e("s_add_u32 s40, s40, 1")
        e("s_add_u32 s41, s41, 1")
        e("s_cmp_lt_u32 s41, 8")
        e("s_cbranch_scc1 K2_TLOOP")
        e("s_mov_b32 s43, 0x100")
        lab("K2_TDONE")
        e(f"v_mov_b32 v{t+1}, s43")
        e(f"ds_write_b32 v{t+2}, v{t+1}")
        e("s_mov_b64 exec, -1")
        e("s_waitcnt lgkmcnt(0)")
        e("s_branch K2_TWAIT")
        lab("K2_TPRE")
        NW, NH = opt("pw", 0), opt("ph", 0)
        e("s_sub_u32 s41, s54, 1")
        e("s_mul_i32 s41, s41, 19456")
        e("s_lshr_b32 s42, s2, 3")
        if MAP2 == 0:
            e("s_mov_b32 s43, s42")
            e("s_and_b32 s44, s40, 6"); e("s_lshl_b32 s44, s44, 4")
            e("s_bfe_u32 s45, s42, 0x20002"); e("s_lshl_b32 s45, s45, 3"); e("s_add_u32 s44, s44, s45")
            e("s_lshr_b32 s46, s42, 4")
            wh, hh = 0, 1
        else:
            e("s_and_b32 s43, s42, 7"); e("s_and_b32 s45, s40, 2"); e("s_lshl_b32 s45, s45, 2"); e("s_add_u32 s43, s43, s45")
            e("s_sub_u32 s45, 31, s43"); e("s_bitcmp1_b32 s42, 3"); e("s_cselect_b32 s43, s45, s43")
            e("s_and_b32 s44, s40, 4"); e("s_lshl_b32 s44, s44, 4")
            e("s_lshr_b32 s45, s42, 2"); e("s_lshl_b32 s45, s45, 3"); e("s_add_u32 s44, s44, s45")
            e("s_lshr_b32 s46, s42, 4")
            wh, hh = 1, 0
        e("s_and_b32 s45, s40, 1"); e("s_lshl_b32 s45, s45, 2"); e("s_add_u32 s44, s44, s45")
        e("s_and_b32 s45, s42, 3"); e("s_add_u32 s44, s44, s45")
        e(f"s_mul_i32 s43, s43, {TILE_B}"); e("s_add_u32 s43, s43, s41"); e(f"s_add_u32 s43, s43, {WS_W2:#x}")
        e(f"s_mul_i32 s44, s44, {TILE_B}"); e("s_add_u32 s44, s44, s41")
        if MAP2: NW, NH = NH, NW
        e(f"s_mul_i32 s46, s46, {1024*(NW if wh else NH)}")
        e(f"s_add_u32 s{43 if wh else 44}, s{43 if wh else 44}, s46")
        for q in range(max(NW, NH)):
            if q == 4 or q == 8: e("s_add_u32 s43, s43, 0x1000"); e("s_add_u32 s44, s44, 0x1000")
            if q < NW: e(f"buffer_load_dwordx4 {vr(V_ACC,4)}, v{V_L16}, s[36:39], s43 offen offset:{1024*(q%4)}")
            if q < NH: e(f"buffer_load_dwordx4 {vr(V_ACC+4,4)}, v{V_L16}, s[36:39], s44 offen offset:{1024*(q%4)}")
        lab("K2_TWAIT")
        e("s_barrier")
        e(f"ds_read_b32 v{t+1}, v{t+2}")
        e("s_waitcnt lgkmcnt(0)")
        e(f"v_readfirstlane_b32 s2, v{t+1}")
        e("s_cmp_ge_u32 s2, 256")
        e("s_cbranch_scc1 K2_END")
    e("s_and_b32 s56, s2, 1")
    if MAP2 == 0:
        e("s_and_b32 s52, s2, 6")
        e("s_lshl_b32 s52, s52, 1")
        e("s_bfe_u32 s55, s2, 0x20003")
        e("s_add_u32 s52, s52, s55")
        e("s_lshr_b32 s53, s2, 5")
    else:
        e("s_and_b32 s52, s2, 4")
        e("s_lshl_b32 s52, s52, 1")
        e("s_bfe_u32 s55, s2, 0x30003")
        e("s_add_u32 s52, s52, s55")
        e("s_and_b32 s53, s2, 2")
        e("s_lshl_b32 s53, s53, 1")
        e("s_lshr_b32 s55, s2, 6")
        e("s_add_u32 s53, s53, s55")
    e("s_lshl_b32 s57, s52, 5")
    e("s_add_u32 s57, s57, s56")
    e("s_cmp_eq_u32 s54, 3")
    e("s_cbranch_scc1 K2_DFT")
    e("s_lshl_b32 s60, s52, 1")
    e("s_add_u32 s60, s60, s56")
    e(f"s_mul_i32 s60, s60, {4*TILE_B}")
    for n in range(4):
        e(f"s_add_u32 s61, s60, {n*TILE_B}")
        e(f"v_add_u32 v{V_OA+4+n}, s61, v{V_L16}")
    e(f"s_mul_i32 s62, s53, {2*TILE_B}")
    e(f"s_add_u32 s61, s62, {WS_W2:#x}")
    e(f"v_add_u32 v{V_OA}, s61, v{V_L16}")
    e(f"v_add_u32 v{V_OA+1}, {TILE_B:#x}, v{V_OA}")
    e(f"s_sub_u32 s61, {WS_W2 + 30*TILE_B:#x}, s62")
    e(f"v_add_u32 v{V_OA+2}, s61, v{V_L16}")
    e(f"v_add_u32 v{V_OA+3}, {TILE_B:#x}, v{V_OA+2}")
    e("s_mul_i32 s68, s54, 19456")
    KR = opt("kr", 0)
    if KR:
        if KR == 1: e("s_and_b32 s69, s2, 7")
        elif KR == 2: e("s_lshr_b32 s69, s2, 5")
        elif KR == 3: e("s_lshr_b32 s69, s2, 5"); e("s_add_u32 s69, s69, s2"); e("s_and_b32 s69, s69, 7")
        elif KR == 4: e("s_lshr_b32 s69, s2, 3"); e("s_add_u32 s69, s69, s2"); e("s_and_b32 s69, s69, 7")
        e(f"s_mul_i32 s69, s69, {opt('krm', 7)*1024}")
        e("s_add_u32 s68, s68, s69")
        e("s_sub_u32 s68, s68, 0x400")
    NS = 19
    def st(s, q):
        k = s % DEPTH
        return vr(V_ST + k*32 + q*4, 4) if k < 4 else ar((k-4)*32 + q*4, 4)
    def ld(s):
        if KR:
            e("s_add_u32 s68, s68, 0x400")
            e(f"s_sub_u32 s69, s68, {56*1024}")
            e(f"s_cmp_ge_u32 s68, {56*1024}")
            e("s_cselect_b32 s68, s69, s68")
        elif s and s % 4 == 0: e("s_add_u32 s68, s68, 0x1000")
        io = 0 if KR else 1024*(s%4)
        for m in range(4):
            e(f"buffer_load_dwordx4 {st(s,m)}, v{V_OA+m}, s[36:39], s68 offen offset:{io}")
            e(f"buffer_load_dwordx4 {st(s,4+m)}, v{V_OA+4+m}, s[36:39], s68 offen offset:{io}")
    def acc(m, n): return V_ACC + (m*4+n)*4
    def mm(s):
        for m in range(4):
            for n in range(4):
                c_ = "0" if s == 0 else vr(acc(m,n),4)
                e(f"v_mfma_f32_16x16x32_bf16 {vr(acc(m,n),4)}, {st(s,m)}, {st(s,4+n)}, {c_}")
    def fin_loads():
        srd(32, 4, 2048*512*2)
        srd(40, 22, 512*2)
        srd(60, 24, 2048*512*2)
        e(f"v_bfe_u32 v{t}, v{V_LANE}, 2, 2")
        quad_consts(t, t+1, t+2, t+3, t+4)
        e("s_lshl_b32 s66, s54, 3")
        e("s_add_u32 s66, s66, s57")
        e(f"v_lshl_add_u32 v{t+4}, v{V_G}, 1, s66")
        e(f"v_mad_i32_i24 v{t+5}, v{t+2}, v{t+4}, v{t+1}")
        e(f"v_cmp_eq_u32 vcc, 0, v{t+4}")
        e(f"v_and_b32 v{t+6}, 3, v{V_LANE}")
        e(f"v_lshlrev_b32 v{t+6}, 4, v{t+6}")
        e(f"v_cndmask_b32 v{t+5}, v{t+5}, v{t+3}, vcc")
        e(f"v_lshl_add_u32 v{V_XO}, v{t+5}, 10, v{t+6}")
        e("s_lshl_b32 s64, s53, 6")
        e(f"s_sub_u32 s65, {480*2}, s64")
        e(f"buffer_load_dwordx4 {vr(V_XV,4)}, v{V_XO}, s[32:35], s64 offen")
        e(f"buffer_load_dwordx4 {vr(V_XV+4,4)}, v{V_XO}, s[32:35], s65 offen")
        e(f"buffer_load_dwordx4 {vr(V_B2,4)}, v{t+6}, s[40:43], s64 offen")
        e(f"buffer_load_dwordx4 {vr(V_B2+4,4)}, v{t+6}, s[40:43], s65 offen")
    for s in range(DEPTH - 1):
        ld(s)
        if s == 1: fin_loads()
    stamp(1)
    for s in range(NS):
        if s == 1: stamp(2)
        if s == 8: stamp(3)
        nl = s + DEPTH - 1
        extra = 4 if s < 2 else 0
        if nl < NS - 1:
            ld(nl); e(f"s_waitcnt vmcnt({min(63, 8*(DEPTH-1) + extra)})")
        elif nl == NS - 1:
            e("s_cmp_eq_u32 s54, 2")
            e("s_cbranch_scc1 K2_W2TAIL")
            ld(nl); e(f"s_waitcnt vmcnt({8*(DEPTH-1)})")
        else:
            e(f"s_waitcnt vmcnt({8*(NS-1-s)})")
        mm(s)
    e("s_branch K2_FFN_DONE")
    lab("K2_W2TAIL")
    for s in range(NS - DEPTH, NS - 1):
        e(f"s_waitcnt vmcnt({8*(NS-2-s)})")
        mm(s)
    lab("K2_FFN_DONE")
    stamp(4)
    e(f"s_mul_i32 s66, s54, {64*PP}")
    e(f"v_mul_u32_u24 v{t}, {PP}, v{V_I}")
    e(f"v_lshl_add_u32 v{t}, v{V_G}, 4, v{t}")
    e(f"v_add_u32 v{t}, s66, v{t}")
    nop(6)
    for m in range(4):
        for n in range(4):
            e(f"ds_write_b128 v{t}, {vr(acc(m,n),4)} offset:{n*16*PP + m*64}")
    e("s_branch K2_FINAL")
    lab("K2_DFT")
    e(f"s_mul_i32 s68, s56, {ASTR:#x}")
    e("s_lshl_b32 s69, s53, 15")
    e("s_add_u32 s68, s68, s69")
    e(f"s_add_u32 s68, s68, {WS_AT:#x}")
    e(f"s_add_u32 s69, s68, {2*ASTR:#x}")
    e(f"v_add_u32 v{V_OA+1}, 0x4000, v{V_L16}")
    e(f"v_lshlrev_b32 v{V_OA+2}, 8, v{V_G}")
    e(f"v_add_u32 v{V_OA+2}, 0x8000, v{V_OA+2}")
    OFF = [V_L16, V_OA+1, V_OA+2]
    def dst(s, q):
        return ar((s % DD)*24 + q*4, 4)
    def dld(s):
        if s and s % 4 == 0:
            e("s_add_u32 s68, s68, 0x1000"); e("s_add_u32 s69, s69, 0x1000")
        for m in range(3):
            e(f"buffer_load_dwordx4 {dst(s,m)}, v{OFF[m]}, s[36:39], s68 offen offset:{1024*(s%4)}")
            e(f"buffer_load_dwordx4 {dst(s,3+m)}, v{OFF[m]}, s[36:39], s69 offen offset:{1024*(s%4)}")
    XA = V_ST; XB = XA + 12; CF = XB + 12
    XR = CF + 4
    TG = XR + 8
    FR = TG + 16
    for s in range(2): dld(s)
    e("s_lshl_b32 s70, s53, 7")
    e(f"s_add_u32 s70, s70, {WS_X512:#x}")
    e(f"v_lshlrev_b32 v{t+7}, 4, v{V_G}")
    for m in range(3):
        e(f"buffer_load_dwordx4 {vr(XA+4*m,4)}, v{t+7}, s[36:39], s70 offen offset:{64*m}")
        e(f"buffer_load_dwordx4 {vr(XB+4*m,4)}, v{t+7}, s[36:39], s70 offen offset:{288*4+64*m}")
    fin_loads()
    for s in range(2, DD - 1): dld(s)
    stamp(1)
    VT = t + 10; VINC = t + 11; VT1 = t + 12; CRE = t + 13; CIM = t + 14
    e(f"v_lshl_add_u32 v{VT}, v{V_I}, 1, s57")
    e(f"v_cvt_f32_u32 v{VT}, v{VT}")
    e(f"v_mul_f32 v{VINC}, 0x3d000000, v{VT}")
    e(f"v_mul_f32 v{VT1}, 0x3a000000, v{VT}")
    e(f"v_mul_f32 v{CRE}, 0x3e800000, v{VT}")
    e(f"v_sin_f32 v{CIM}, -v{CRE}")
    e(f"v_cos_f32 v{CRE}, v{CRE}")
    e(f"v_lshlrev_b32 v{t+8}, 4, v{V_G}")
    def init_args(sp):
        for k in range(8):
            e(f"v_add_u32 v{t+9}, {2*(k>>1) + 8*(k&1) + sp}, v{t+8}")
            e(f"v_cvt_f32_u32 v{t+9}, v{t+9}")
            e(f"v_mul_f32 v{XR+k}, v{t+9}, v{VT1}")
    for k in range(4): e(f"v_mov_b32 v{CF+k}, {'0xbf80bf80' if k & 1 else '0x3f803f80'}")
    def gen(s):
        if s % 8 == 0: init_args(s // 8)
        else:
            for k in range(8): e(f"v_add_f32 v{XR+k}, v{XR+k}, v{VINC}")
        for k in range(8):
            e(f"v_cos_f32 v{TG+k}, v{XR+k}")
            e(f"v_sin_f32 v{TG+8+k}, -v{XR+k}")
        e("s_nop 0")
        f = FR + (s % 2)*8
        for k in range(8): e(f"v_cvt_pk_bf16_f32 v{f+k}, v{TG+2*k}, v{TG+2*k+1}")
    def pacc(ph, sp, m): return V_ACC + ((ph*2+sp)*3+m)*4
    def sacc(ph, m): return V_ACC + 48 + (ph*3+m)*4
    def dmm(s):
        sp, h = divmod(s, 8); f = FR + (s % 2)*8
        for ph in range(2):
            for m in range(3):
                a_ = pacc(ph, sp, m); c_ = "0" if h == 0 else vr(a_, 4)
                e(f"v_mfma_f32_16x16x32_bf16 {vr(a_,4)}, {dst(s,3*ph+m)}, {vr(f+4*ph,4)}, {c_}")
        for m in range(3):
            a_ = sacc(sp, m); c_ = "0" if h == 0 else vr(a_, 4)
            e(f"v_mfma_f32_16x16x32_bf16 {vr(a_,4)}, {dst(s,3*sp+m)}, {vr(CF,4)}, {c_}")
    ND = 16
    gen(0)
    for s in range(ND):
        if s == 1: stamp(2)
        if s == 8: stamp(3)
        nl = s + DD - 1
        if nl < ND: dld(nl)
        if s + 1 < ND: gen(s + 1)
        else: nop(2)
        extra = 10 if s < 2 else 0
        e(f"s_waitcnt vmcnt({min(63, 6*(min(nl, ND-1) - s) + extra)})")
        dmm(s)
    stamp(4)
    e("s_cmp_eq_u32 s53, 0")
    e("s_cselect_b32 s72, 0xffff, 0")
    e("s_mov_b32 s73, 0")
    e("s_cmp_eq_u32 s53, 7")
    e("s_cselect_b32 s74, 0xffff, 0")
    e("s_mov_b32 s75, 0")
    e(f"v_mul_u32_u24 v{t}, {DP}, v{V_I}")
    e(f"v_add3_u32 v{t}, v{t}, v{t+7}, 0")
    e(f"v_add_u32 v{t}, {K2_D}, v{t}")
    nop(6)
    O = TG
    for m in range(3):
        EP, OP, EQ, OQ = pacc(0,0,m), pacc(0,1,m), pacc(1,0,m), pacc(1,1,m)
        o = O + (m % 2)*16
        for k in range(4):
            e(f"v_fma_f32 v{EP+k}, v{CRE}, v{XA+4*m+k}, v{EP+k}")
            e(f"v_fma_f32 v{EQ+k}, v{CIM}, v{XB+4*m+k}, v{EQ+k}")
        if m != 1:
            msk = "s[72:73]" if m == 0 else "s[74:75]"
            e(f"v_cndmask_b32 v{EQ}, v{EQ}, 0, {msk}")
            e(f"v_cndmask_b32 v{OQ}, v{OQ}, 0, {msk}")
            e(f"v_cndmask_b32 v{sacc(1,m)}, v{sacc(1,m)}, 0, {msk}")
        for k in range(4):
            e(f"v_add_f32 v{o+k}, v{EP+k}, v{OP+k}")
            e(f"v_sub_f32 v{o+8+k}, v{EP+k}, v{OP+k}")
            e(f"v_add_f32 v{EP+k}, v{EQ+k}, v{OQ+k}")
            e(f"v_sub_f32 v{OP+k}, v{OQ+k}, v{EQ+k}")
        for k in range(4):
            e(f"v_add_f32 v{o+4+k}, v{o+k}, v{EP+k}")
            e(f"v_sub_f32 v{o+k}, v{o+k}, v{EP+k}")
            e(f"v_add_f32 v{o+12+k}, v{o+8+k}, v{OP+k}")
            e(f"v_sub_f32 v{o+8+k}, v{o+8+k}, v{OP+k}")
        for a in range(4):
            e(f"ds_write_b128 v{t}, {vr(o+4*a,4)} offset:{a*DARR + m*64}")
    for m in range(3):
        for k in range(4):
            e(f"v_add_f32 v{sacc(0,m)+k}, v{sacc(0,m)+k}, v{XA+4*m+k}")
            e(f"v_sub_f32 v{XA+4*m+k}, v{sacc(0,m)+k}, v{sacc(1,m)+k}")
            e(f"v_add_f32 v{sacc(0,m)+k}, v{sacc(0,m)+k}, v{sacc(1,m)+k}")
    e(f"v_cmp_eq_u32 vcc, 0, v{V_I}")
    e("s_and_saveexec_b64 s[76:77], vcc")
    for m in range(3):
        e(f"ds_write_b128 v{t}, {vr(sacc(0,m),4)} offset:{16*DP + m*64}")
        e(f"ds_write_b128 v{t}, {vr(XA+4*m,4)} offset:{DARR + 16*DP + m*64}")
    e("s_mov_b64 exec, s[76:77]")
    lab("K2_FINAL")
    e(f"v_lshrrev_b32 v{t+1}, 2, v{V_LANE}")
    e("s_lshl_b32 s66, s54, 4")
    e(f"v_add_u32 v{t+2}, s66, v{t+1}")
    e(f"v_mul_u32_u24 v{t+2}, {PP}, v{t+2}")
    e(f"v_and_b32 v{t+3}, 3, v{V_LANE}")
    e(f"v_lshl_add_u32 v{t+2}, v{t+3}, 5, v{t+2}")
    e(f"v_and_b32 v{t+4}, 3, v{t+1}")
    e("s_lshl_b32 s66, s54, 2")
    e(f"v_add_u32 v{t+5}, s66, v{V_G}")
    e(f"v_or_b32 v{t+6}, s57, v{t+5}")
    e(f"v_cmp_eq_u32 vcc, 0, v{t+6}")
    e(f"v_lshlrev_b32 v{t+8}, 1, v{t+4}")
    e(f"v_mov_b32 v{t+9}, 0x48")
    e(f"v_lshrrev_b32 v{t+9}, v{t+8}, v{t+9}")
    e(f"v_and_b32 v{t+9}, 3, v{t+9}")
    e(f"v_and_b32 v{t+8}, 2, v{t+4}")
    e(f"v_lshlrev_b32 v{t+8}, 3, v{t+8}")
    e(f"v_cndmask_b32 v{t+4}, v{t+4}, v{t+9}, vcc")
    e(f"v_cndmask_b32 v{t+5}, v{t+5}, v{t+8}, vcc")
    e(f"v_mul_u32_u24 v{t+5}, {DP}, v{t+5}")
    e(f"v_add_u32 v{t+5}, {K2_D}, v{t+5}")
    e(f"v_mov_b32 v{t+8}, {DARR}")
    e(f"v_mad_u32_u24 v{t+6}, v{t+4}, v{t+8}, v{t+5}")
    e(f"v_lshl_add_u32 v{t+6}, v{t+3}, 5, v{t+6}")
    e(f"v_xor_b32 v{t+4}, 1, v{t+4}")
    e(f"v_mad_u32_u24 v{t+5}, v{t+4}, v{t+8}, v{t+5}")
    e(f"v_lshlrev_b32 v{t+3}, 5, v{t+3}")
    e(f"v_sub_u32 v{t+5}, v{t+5}, v{t+3}")
    e("s_waitcnt vmcnt(0) lgkmcnt(0)")
    stamp(5)
    e("s_barrier")
    stamp(6)
    R = V_ACC
    Y = V_ST
    for b in range(2):
        for w in range(3):
            for hh in range(2):
                e(f"ds_read_b128 {vr(R+(b*3+w)*8+4*hh,4)}, v{t+2} offset:{w*64*PP + b*128 + hh*16}")
        if b == 0:
            e(f"ds_read_b128 {vr(Y,4)}, v{t+6}")
            e(f"ds_read_b128 {vr(Y+4,4)}, v{t+6} offset:16")
    e("s_waitcnt lgkmcnt(6)")
    for k in range(8):
        e(f"ds_read_b32 v{Y+8+k}, v{t+5} offset:{(32-k)*4}")
    U = V_ST + 16
    for b in range(2):
        u = U + b*32; p0 = R + b*24
        for k in range(4):
            e(f"v_lshlrev_b32 v{u+2*k}, 16, v{V_B2+4*b+k}")
            e(f"v_and_b32 v{u+2*k+1}, 0xffff0000, v{V_B2+4*b+k}")
        if b == 1: e("s_waitcnt lgkmcnt(8)")
        for k in range(4):
            e(f"v_pk_add_f32 {vr(p0+2*k,2)}, {vr(p0+2*k,2)}, {vr(p0+8+2*k,2)}")
            e(f"v_pk_add_f32 {vr(u+2*k,2)}, {vr(u+2*k,2)}, {vr(p0+16+2*k,2)}")
        for k in range(4):
            e(f"v_pk_add_f32 {vr(u+2*k,2)}, {vr(u+2*k,2)}, {vr(p0+2*k,2)}")
        for k in range(8): e(f"v_mul_f32 v{u+8+k}, 0xbfb8aa3b, v{u+k}")
        for k in range(8): e(f"v_exp_f32 v{u+8+k}, v{u+8+k}")
        for k in range(4):
            e(f"v_lshlrev_b32 v{u+16+2*k}, 16, v{V_XV+4*b+k}")
            e(f"v_and_b32 v{u+16+2*k+1}, 0xffff0000, v{V_XV+4*b+k}")
        for k in range(8): e(f"v_add_f32 v{u+8+k}, 1.0, v{u+8+k}")
        for k in range(8): e(f"v_rcp_f32 v{u+8+k}, v{u+8+k}")
        if b == 1: e("s_waitcnt lgkmcnt(0)")
        else: e("s_nop 0")
        for k in range(4):
            e(f"v_pk_mul_f32 {vr(u+2*k,2)}, {vr(u+2*k,2)}, {vr(u+8+2*k,2)}")
        for k in range(4):
            e(f"v_pk_fma_f32 {vr(u+2*k,2)}, {vr(Y+8*b+2*k,2)}, {vr(u+2*k,2)}, {vr(u+16+2*k,2)}")
        for k in range(4):
            e(f"v_cvt_pk_bf16_f32 v{u+24+k}, v{u+2*k}, v{u+2*k+1}")
        e(f"buffer_store_dwordx4 {vr(u+24,4)}, v{V_XO}, s[60:63], s{64+b} offen{fl(ST_OUT)}")
    if PROF: e("s_waitcnt vmcnt(0)")
    stamp(7)
    prof_end(1, 1)
    lab("K2_END")
    e("s_endpgm")

def kd(name, nvgpr, acc_off):
    return f""".amdhsa_kernel {name}
  .amdhsa_next_free_vgpr {nvgpr}
  .amdhsa_next_free_sgpr 102
  .amdhsa_accum_offset {acc_off}
  .amdhsa_group_segment_fixed_size 0
  .amdhsa_kernarg_size 104
  .amdhsa_user_sgpr_count 2
  .amdhsa_user_sgpr_kernarg_segment_ptr 1
  .amdhsa_system_sgpr_workgroup_id_x 1
.end_amdhsa_kernel
"""

def main(out):
    hdr = f"""; FNet (folded real 2-D DFT) * silu(squared-relu FFN) + residual, two launches.
; @launch kernel=k1_kernel grid=(256,1,1) block=(512,1,1) lds={K1_LDS}
; @launch kernel=k2_kernel grid=(256,1,1) block=(256,1,1) lds={K2_LDS}
.amdgcn_target "amdgcn-amd-amdhsa--gfx950"
.text
"""
    body = []
    for nm, fn in (("k1_kernel", gen_k1), ("k2_kernel", gen_k2)):
        L.clear()
        fn()
        body.append(f".globl {nm}\n.p2align 8\n.type {nm},@function\n" + "\n".join(L) + "\n")
    txt = hdr + "".join(body) + '.section .rodata,"a"\n.p2align 6\n' + kd("k1_kernel", 256, 256) + ".p2align 6\n" + kd("k2_kernel", 256+192, 256)
    open(out, "w").write(txt)

if __name__ == "__main__":
    main(sys.argv[1] if len(sys.argv) > 1 else f"cdna_kernels/{NAME}.s")
```

```python
import sys, os
NAME = "recurrent_scan__spectral_fnet__dense_activation_squared_relu__prompt"
L = []
def e(s): L.append("    " + s)
def lab(s): L.append(s + ":")
def nop(n):
    while n > 0:
        k = min(n, 16); e(f"s_nop {k-1}"); n -= k
def vr(b, n): return f"v[{b}:{b+n-1}]" if n > 1 else f"v{b}"
def ar(b, n): return f"a[{b}:{b+n-1}]" if n > 1 else f"a{b}"

PROF = int(os.environ.get("PROF", "0"))
OPT = dict(kv.split("=") for kv in os.environ.get("OPT", "").split(",") if kv)
def opt(k, d): return type(d)(OPT.get(k, d))
def stamp(k):
    if PROF: e(f"s_memtime s[{80+2*k}:{81+2*k}]")
def prof_begin():
    if PROF: e("s_memrealtime s[96:97]")
def prof_end(kidx, tmp):
    if not PROF: return
    e("s_memrealtime s[98:99]")
    e("s_waitcnt lgkmcnt(0)")
    e("s_mov_b32 s76, s26"); e("s_and_b32 s77, s27, 0xffff"); e("s_mov_b32 s78, 0x40000"); e("s_mov_b32 s79, 0x00020000")
    e("s_lshl_b32 s30, s2, 3"); e("s_add_u32 s30, s30, s54"); e("s_lshl_b32 s30, s30, 6"); e(f"s_add_u32 s30, s30, {kidx*131072}")
    e("s_mov_b64 exec, 1")
    e(f"v_mov_b32 v{tmp}, 0")
    for k in range(10):
        e(f"v_mov_b32 v{tmp+1}, s{80+2*k}")
        e(f"buffer_store_dword v{tmp+1}, v{tmp}, s[76:79], s30 offen offset:{4*k}")
        e("s_nop 1")

TILE_B = opt('tk', 57) * 1024
WS_H2 = 0
WS_W2 = 0x800000
WS_AT = 0xA00000
ASTR = 17 * 16384
WS_X512 = WS_AT + 4 * ASTR
WS_CNT = WS_X512 + 4096
WS_SIZE = WS_CNT + 4096

def code_warm(tag, rounds, tmp):
    if not opt("cw", 1): return
    e("s_getpc_b64 s[30:31]")
    lab(f"{tag}_PC")
    e(f"v_lshlrev_b32 v{tmp}, 7, v0")
    for r in range(rounds):
        if r: e(f"v_add_u32 v{tmp}, 0x8000, v{tmp}")
        e(f"v_min_u32 v{tmp+1}, CODE_END-{tag}_PC-4, v{tmp}")
        e(f"global_load_dword v0, v{tmp+1}, s[30:31]")
def load_ptrs():
    e("s_load_dwordx16 s[4:19], s[0:1], 0")
    e("s_load_dwordx8 s[20:27], s[0:1], 64")
    e("s_load_dwordx2 s[28:29], s[0:1], 96")
def srd(d, p, nbytes):
    e(f"s_mov_b32 s{d}, s{p}")
    e(f"s_and_b32 s{d+1}, s{p+1}, 0xffff")
    e(f"s_mov_b32 s{d+2}, {nbytes:#x}")
    e(f"s_mov_b32 s{d+3}, 0x00020000")

def quad_consts(vmem, vbase, vsgn, vspec, tmp):
    e(f"v_mov_b32 v{vbase}, 0x400")
    e(f"v_cmp_eq_u32 vcc, 0, v{vmem}")
    e(f"v_add_u32 v{tmp}, 1, v{vmem}")
    e(f"v_and_b32 v{tmp}, 2, v{tmp}")
    e(f"v_cndmask_b32 v{vbase}, v{vbase}, 0, vcc")
    e(f"v_sub_u32 v{vsgn}, 1, v{tmp}")
    e(f"v_cmp_eq_u32 vcc, 1, v{vmem}")
    e(f"v_mov_b32 v{tmp}, 0x800")
    e(f"v_and_b32 v{vspec}, 1, v{vmem}")
    e(f"v_cndmask_b32 v{vbase}, v{vbase}, v{tmp}, vcc")
    e(f"v_lshlrev_b32 v{vspec}, 10, v{vspec}")
    e(f"v_lshrrev_b32 v{tmp}, 1, v{vmem}")
    e(f"v_lshl_add_u32 v{vspec}, v{tmp}, 9, v{vspec}")

ST_H2 = opt("sth2", "sc1")
ST_W2 = opt("stw2", "sc1")
ST_AT = opt("stat", "sc1")
ST_OUT = opt("stout", "")
def fl(s): return (" " + s.replace("+", " ")) if s else ""

SLOT = 24576
NSL = 5
K1_WB = 3 * SLOT
K1_TR = K1_WB + 57344
K1_GEN = K1_WB + 65536
K1_Z = K1_GEN + 16384
K1_LDS = K1_Z + 2048

def gen_k1():
    SCH = [x.split(".") if x else [] for x in opt("sch", "s0.s1.s2/s3.s4/s5.t/s6/s7.b6/b0.b1.b2/b3.b4.b5.T.b7.U//").split("/")]
    assert len(SCH) == 9
    for k, l in enumerate(SCH):
        for x in l:
            if x[0] == "s": assert int(x[1]) < 5 or k >= int(x[1]) - 3
            if x[0] == "b": assert k >= {0:5,1:5,2:5,3:6,4:6,5:6,6:0,7:0}[int(x[1])]
    flat = sum(SCH, []); assert flat.index("t") < flat.index("T") < flat.index("b7") and flat[-1] == "U"
    lab("k1_kernel")
    e("s_cmp_ge_u32 s2, 256")
    e("s_cbranch_scc1 K1_END")
    prof_begin(); stamp(0)
    load_ptrs()
    e("s_and_b32 s78, s2, 1")
    e("s_and_b32 s52, s2, 6")
    e("s_bfe_u32 s55, s2, 0x10003")
    e("s_add_u32 s52, s52, s55")
    e("s_lshr_b32 s53, s2, 4")
    e("s_lshl_b32 s73, s52, 1")
    e("s_add_u32 s73, s73, s78")
    e("s_add_u32 s73, s73, s53")
    e("s_and_b32 s73, s73, 7")
    V_LANE, V_I, V_G = 1, 2, 3
    V_WA = 4
    V_XA = 8
    V_GA = 10
    V_L16 = 11
    V_ZG = 12
    V_ATO = 13
    t = 16
    R = 24
    V_RING = 32
    V_X = 56
    V_ACC = 184
    V_E = 240
    NR = 6; PF = 4
    def xreg(ks, T): return V_X + (ks*2+T)*4
    def soff(st): return (st % NSL)*SLOT - (K1_WB if st in (3, 4) else 0)
    e("v_lshrrev_b32 v1, 6, v0")
    e("v_and_b32 v2, 15, v0")
    e("v_readfirstlane_b32 s54, v1")
    e(f"v_and_b32 v{V_LANE}, 63, v0")
    code_warm("K1", 1, t)
    e(f"v_lshrrev_b32 v{V_G}, 4, v{V_LANE}")
    e("s_and_b32 s55, s54, 3")
    e("s_lshl_b32 s62, s55, 12")
    e("s_cmp_lt_u32 s54, 4")
    e("s_cbranch_scc1 K1_CONS")
    def xa_setup():
        e(f"v_lshrrev_b32 v{t}, 1, v{V_I}")
        e(f"v_xor_b32 v{t}, v{t}, v{V_G}")
        e(f"v_lshlrev_b32 v{t}, 4, v{t}")
        e(f"v_lshl_add_u32 v{t}, v{V_I}, 7, v{t}")
        e(f"v_add_u32 v{V_XA}, s62, v{t}")
        e(f"v_add_u32 v{V_XA}, 0x2000, v{V_XA}")
        e(f"v_xor_b32 v{V_XA+1}, 64, v{V_XA}")
    def wa_setup(js, add):
        e(f"v_lshrrev_b32 v{t}, 2, v{V_I}")
        e(f"v_and_b32 v{t+1}, 1, v{V_G}")
        e(f"v_lshrrev_b32 v{t+2}, 1, v{t}")
        e(f"v_lshl_add_u32 v{t+2}, v{t+1}, 1, v{t+2}")
        e(f"v_lshl_add_u32 v{t}, v{V_G}, 3, v{t}")
        e(f"v_lshlrev_b32 v{t}, 7, v{t}")
        e(f"v_lshl_add_u32 v{t}, v{t+2}, 5, v{t}")
        e(f"v_and_b32 v{t+1}, 3, v{V_I}")
        e(f"v_lshl_add_u32 v{t}, v{t+1}, 3, v{t}")
        if add: e(f"v_add_u32 v{t}, {add}, v{t}")
        for q, j in enumerate(js): e(f"v_xor_b32 v{V_WA+q}, {j<<5}, v{t}")
        e(f"v_lshlrev_b32 v{V_L16}, 4, v{V_LANE}")
        e(f"v_lshlrev_b32 v{V_ZG}, 4, v{V_G}")
        e(f"v_add_u32 v{V_ZG}, {K1_Z}, v{V_ZG}")
    def out_setup(jp0):
        e("s_lshl_b32 s60, s52, 4")
        e("s_lshr_b32 s61, s55, 1")
        e("s_lshl_b32 s61, s61, 3")
        e("s_add_u32 s60, s60, s61")
        e("s_lshl_b32 s61, s78, 2")
        e("s_add_u32 s60, s60, s61")
        e("s_and_b32 s61, s55, 1")
        e("s_lshl_b32 s61, s61, 1")
        e("s_add_u32 s60, s60, s61")
        e(f"s_mul_i32 s60, s60, {TILE_B}")
        e("s_lshl_b32 s61, s53, 12")
        e("s_add_u32 s60, s60, s61")
        if jp0: e(f"s_add_u32 s60, s60, {1024*jp0}")
        e(f"s_add_u32 s61, s60, {TILE_B}")
        e("s_or_b32 s63, s52, s55")
        e("s_or_b32 s63, s63, s78")
        e("s_cmp_eq_u32 s63, 0")
        e("s_cselect_b32 s76, 0xffff, 0")
        e("s_mov_b32 s77, 0")
        e("s_lshl_b32 s64, s78, 3")
        e("s_add_u32 s64, s64, s52")
        e("s_lshl_b32 s64, s64, 10")
        e("s_lshl_b32 s65, s55, 8")
        e("s_add_u32 s64, s64, s65")
        e(f"s_add_u32 s64, s64, {WS_AT:#x}")
        e("s_lshl_b32 s63, s55, 7")
        e("s_and_b32 s66, s53, 1")
        e("s_lshl_b32 s66, s66, 3")
        if jp0: e(f"s_add_u32 s66, s66, {2*jp0}")
        e("s_lshl_b32 s67, s66, 14")
        e("s_add_u32 s67, s67, s64")
        e("s_lshl_b32 s66, s66, 6")
        e(f"s_add_u32 s66, s66, {WS_X512:#x}")
        e(f"v_lshl_add_u32 v14, v{V_I}, 2, s66")
        e(f"v_and_b32 v{t+5}, 1, v{V_G}")
        e(f"v_mul_u32_u24 v{t+5}, {ASTR:#x}, v{t+5}")
        e(f"v_lshrrev_b32 v{t+6}, 1, v{V_G}")
        e(f"v_lshl_add_u32 v{t+5}, v{t+6}, 14, v{t+5}")
        e(f"v_lshl_add_u32 v{V_ATO}, v{V_I}, 4, v{t+5}")
        e(f"v_lshlrev_b32 v15, 2, v{V_I}")
        e(f"v_add_u32 v15, {K1_Z}, v15")
    if opt("hprio", 1): e("s_setprio 3")
    V_XO = 184; V_WO = 188; V_CA = 190; V_ZA = 191; V_ONES = 192; V_CS = 196; V_TO = 200; V_TA = 201
    h = 202
    V_TD = 216; V_D = 224
    e("s_lshl_b32 s56, s52, 6")
    e("s_add_u32 s56, s56, s78")
    e("s_lshl_b32 s57, s55, 4")
    e("s_add_u32 s56, s56, s57")
    e(f"v_bfe_u32 v{h}, v{V_LANE}, 3, 2")
    quad_consts(h, h+1, h+2, h+3, h+4)
    e(f"v_lshrrev_b32 v{h+4}, 5, v{V_LANE}")
    e(f"v_lshl_add_u32 v{h+4}, v{h+4}, 1, s56")
    e(f"v_and_b32 v{h+5}, 7, v{V_LANE}")
    e(f"v_xor_b32 v{h+5}, v{h+5}, v{V_G}")
    e(f"v_lshlrev_b32 v{h+5}, 4, v{h+5}")
    e(f"v_xor_b32 v{h+6}, 64, v{h+5}")
    for q in range(4):
        if q: e(f"v_add_u32 v{h+4}, 4, v{h+4}")
        e(f"v_mad_i32_i24 v{h+7}, v{h+2}, v{h+4}, v{h+1}")
        if q == 0:
            e(f"v_cmp_eq_u32 vcc, 0, v{h+4}")
            nop(2)
            e(f"v_cndmask_b32 v{h+7}, v{h+7}, v{h+3}, vcc")
        e(f"v_lshl_add_u32 v{V_XO+q}, v{h+7}, 10, v{h+5+(q&1)}")
    e(f"v_and_b32 v{h}, 7, v{V_LANE}")
    e(f"v_and_b32 v{h+1}, 1, v{V_G}")
    e(f"v_lshlrev_b32 v{h+1}, 1, v{h+1}")
    e(f"v_xor_b32 v{h}, v{h}, v{h+1}")
    e(f"v_lshlrev_b32 v{h}, 4, v{h}")
    e(f"v_xor_b32 v{h+1}, 64, v{h}")
    e(f"v_lshrrev_b32 v{h+2}, 3, v{V_LANE}")
    e("s_lshl_b32 s57, s55, 11")
    e("s_lshl_b32 s72, s73, 7")
    e("s_waitcnt lgkmcnt(0)")
    srd(32, 4, 2048*512*2)
    e("s_cmp_lt_u32 s53, 14")
    e("s_cbranch_scc0 K1_H_DSRC")
    srd(44, 16, 512*3584)
    e("s_mov_b32 s58, 3584")
    e("s_lshl_b32 s59, s53, 8")
    e("s_branch K1_H_SRC")
    lab("K1_H_DSRC")
    srd(44, 10, 512*1024)
    e("s_mov_b32 s58, 1024")
    e("s_sub_u32 s59, s53, 14")
    e("s_lshl_b32 s59, s59, 8")
    lab("K1_H_SRC")
    e(f"v_mad_u32_u24 v{V_WO}, v{h+2}, s58, v{h}")
    e(f"v_mad_u32_u24 v{V_WO+1}, v{h+2}, s58, v{h+1}")
    e("s_lshl_b32 s60, s55, 4")
    e("s_mul_i32 s60, s60, s58")
    e("s_add_u32 s60, s60, s59")
    e("s_add_u32 s61, s60, 128")
    e("s_lshl_b32 s63, s58, 3")
    e("s_lshr_b32 s59, s58, 1")
    VQ = []
    def vwait(tag):
        idx = max([i for i, x in enumerate(VQ) if x == tag], default=-1)
        if idx >= 0:
            e(f"s_waitcnt vmcnt({len(VQ) - 1 - idx})")
            del VQ[:idx+1]
    def S_ops(k):
        b = k % NSL
        def xop(q):
            def f():
                if q == 0:
                    e(f"s_add_u32 s74, s72, {k*128}")
                    e(f"s_and_b32 s74, s74, 1023")
                e(f"s_add_u32 m0, s62, {b*SLOT + 8192 + q*1024}")
                if q == 0: e("s_mul_i32 s75, s74, s59")
                elif q == 1: e("s_add_u32 s75, s75, s60")
                else: e("s_nop 0")
                e(f"buffer_load_dwordx4 v{V_XO+q}, s[32:35], s74 offen lds"); VQ.append(("st", k))
            return f
        def wop(q):
            def f():
                e(f"s_add_u32 m0, s57, {b*SLOT + q*1024}")
                e("s_nop 0" if q == 0 else "s_add_u32 s75, s75, s63")
                e(f"buffer_load_dwordx4 v{V_WO+q}, s[44:47], s75 offen lds"); VQ.append(("st", k))
            return f
        return [xop(0), xop(1), wop(0), xop(2), xop(3), wop(1)]
    def B_ops(g):
        ops = []
        for q in range(2):
            def f(g=g, q=q):
                if q == 0:
                    e(f"s_add_u32 s75, s72, {g*128}")
                    e(f"s_and_b32 s75, s75, 1023")
                    e("s_mul_i32 s75, s75, s59")
                e(f"s_add_u32 m0, s57, {K1_WB + g*8192 + q*1024}")
                e(f"s_add_u32 s75, s75, {'s61' if q == 0 else 's63'}")
                e(f"buffer_load_dwordx4 v{V_WO+q}, s[44:47], s75 offen lds"); VQ.append(("wb", 0))
            ops.append(f)
        return ops
    def t_ops():
        def f0():
            e(f"s_add_u32 m0, s57, {K1_TR}")
            e("s_add_u32 s70, s68, 16384")
            e(f"buffer_load_dwordx4 v{V_TO}, s[48:51], s68 offen lds"); VQ.append(("t", 0))
        def f1():
            e(f"s_add_u32 m0, s57, {K1_TR+1024}")
            e("s_nop 0")
            e(f"buffer_load_dwordx4 v{V_TO}, s[48:51], s70 offen lds"); VQ.append(("t", 0))
        return [f0, f1]
    def T_op():
        vwait(("t", 0))
        for m in range(2):
            for u in range(2):
                e(f"ds_read_b64_tr_b16 {vr(V_TD+4*m+2*u,2)}, v{V_TA} offset:{u*1024 + m*32}")
        e(f"s_add_u32 s70, s71, {TILE_B}")
        e("s_waitcnt lgkmcnt(0)")
    def U_op():
        e(f"v_lshlrev_b32 v{h+3}, 4, v{V_LANE}")
        e(f"buffer_store_dwordx4 {vr(V_TD,4)}, v{h+3}, s[36:39], s71 offen{fl(ST_W2)}"); VQ.append(("u", 0))
        e(f"buffer_store_dwordx4 {vr(V_TD+4,4)}, v{h+3}, s[36:39], s70 offen{fl(ST_W2)}"); VQ.append(("u", 0))
    def sched(k):
        ops = []
        for x in SCH[k]:
            if x[0] == "s": ops += S_ops(int(x[1]))
            elif x[0] == "b": ops += B_ops(int(x[1]))
            elif x == "t": ops += t_ops()
            elif x == "T": ops.append(T_op)
            else: ops.append(U_op)
        return ops
    assert SCH[0][0] == "s0"
    SCH[0] = SCH[0][1:]
    for f in S_ops(0): f()
    srd(40, 18, 1792*2)
    e(f"v_lshlrev_b32 v{h+3}, 2, v{V_LANE}")
    e("s_lshl_b32 s71, s53, 8")
    e(f"buffer_load_dword v{h+10}, v{h+3}, s[40:43], s71 offen"); VQ.append(("st", 0))
    for f in sched(0): f()
    stamp(1)
    srd(36, 28, WS_SIZE)
    srd(48, 20, 1792*512*2)
    e("s_min_u32 s65, s2, 223")
    e("s_lshr_b32 s66, s65, 3")
    e("s_lshl_b32 s66, s66, 1")
    e("s_lshr_b32 s67, s55, 1")
    e("s_add_u32 s66, s66, s67")
    e("s_and_b32 s67, s65, 7")
    e("s_lshl_b32 s67, s67, 1")
    e("s_and_b32 s65, s55, 1")
    e("s_add_u32 s67, s67, s65")
    e("s_lshl_b32 s67, s67, 1")
    e(f"s_mul_i32 s71, s67, {TILE_B}")
    e("s_lshl_b32 s65, s66, 10")
    e("s_add_u32 s71, s71, s65")
    e(f"s_add_u32 s71, s71, {WS_W2:#x}")
    e("s_lshl_b32 s68, s66, 15")
    e("s_lshl_b32 s69, s67, 5")
    e("s_add_u32 s68, s68, s69")
    e(f"v_and_b32 v{h+1}, 3, v{V_LANE}")
    e(f"v_lshlrev_b32 v{h+1}, 4, v{h+1}")
    e(f"v_lshrrev_b32 v{h+2}, 2, v{V_LANE}")
    e(f"v_lshl_add_u32 v{V_TO}, v{h+2}, 10, v{h+1}")
    for k in range(4): e(f"v_mov_b32 v{V_ONES+k}, 0x3f803f80")
    e(f"v_lshrrev_b32 v{h}, 2, v{V_I}")
    e(f"v_and_b32 v{h+1}, 1, v{V_G}")
    e(f"v_lshrrev_b32 v{h+2}, 1, v{h}")
    e(f"v_lshl_add_u32 v{h+2}, v{h+1}, 1, v{h+2}")
    e(f"v_xor_b32 v{h+2}, s55, v{h+2}")
    e(f"v_lshl_add_u32 v{h}, v{h+1}, 3, v{h}")
    e(f"v_lshrrev_b32 v{h+1}, 1, v{V_G}")
    e(f"v_lshl_add_u32 v{h}, v{h+1}, 2, v{h}")
    e(f"v_lshlrev_b32 v{h}, 7, v{h}")
    e(f"v_lshl_add_u32 v{h}, v{h+2}, 5, v{h}")
    e(f"v_and_b32 v{h+1}, 3, v{V_I}")
    e(f"v_lshl_add_u32 v{V_CA}, v{h+1}, 3, v{h}")
    e(f"v_lshlrev_b32 v{h+5}, 3, v{V_LANE}")
    e(f"v_add_u32 v{h+5}, {K1_Z}, v{h+5}")
    e("s_lshl_b32 s64, s55, 6")
    e(f"s_add_u32 s64, s64, {K1_Z}")
    e(f"v_lshl_add_u32 v{V_ZA}, v{V_G}, 4, s64")
    e(f"v_lshrrev_b32 v{h+2}, 2, v{V_I}")
    e(f"v_lshl_add_u32 v{h+2}, v{V_G}, 2, v{h+2}")
    e(f"v_lshlrev_b32 v{h+2}, 6, v{h+2}")
    e(f"v_lshl_add_u32 v{h+2}, v{h+1}, 3, v{h+2}")
    e(f"s_add_u32 s64, s57, {K1_TR}")
    e(f"v_add_u32 v{V_TA}, s64, v{h+2}")
    xa_setup()
    wa_setup((2, 3), K1_WB)
    def cs_write(off):
        e("s_mov_b32 exec_lo, 0x10001"); e("s_mov_b32 exec_hi, 0x10001")
        e(f"ds_write_b128 v{V_ZA}, {vr(V_CS,4)} offset:{off}")
        e("s_mov_b64 exec, -1")
    def cs_mma(src, first):
        e(f"v_mfma_f32_16x16x32_bf16 {vr(V_CS,4)}, {vr(src,4)}, {vr(V_ONES,4)}, {'0' if first else vr(V_CS,4)}")
    for k in range(8):
        if k == 3 or k == 5:
            op = "v_add_u32" if k == 3 else "v_subrev_u32"
            for r_ in (V_CA, V_XA, V_XA+1): e(f"{op} v{r_}, {K1_WB}, v{r_}")
        vwait(("st", k))
        if k == 0:
            e(f"v_lshlrev_b32 v{h+6}, 16, v{h+10}")
            e(f"v_and_b32 v{h+7}, 0xffff0000, v{h+10}")
            e(f"ds_write_b64 v{h+5}, {vr(h+6,2)} offset:1536")
        e("s_barrier")
        if k == 0: stamp(2)
        if k == 7: stamp(3)
        dm = sched(k + 1)
        for f in dm[:1]: f()
        for u in range(4):
            e(f"ds_read_b64_tr_b16 {vr(V_D+2*u,2)}, v{V_CA} offset:{soff(k) + u*2048}")
        for f in dm[1:2]: f()
        for kk in range(2):
            for T in range(2):
                e(f"ds_read_b128 {vr(xreg(2*k+kk,T),4)}, v{V_XA+kk} offset:{soff(k) + T*2048}")
        for f in dm[2:4]: f()
        e("s_waitcnt lgkmcnt(4)")
        cs_mma(V_D, k == 0); cs_mma(V_D+4, False)
        for f in dm[4:]: f()
        if k < 7: e("s_waitcnt lgkmcnt(0)")
    e(f"v_add_u32 v{V_CA}, {K1_WB}, v{V_CA}")
    out_setup(3)
    cs_write(0)
    vwait(("wb", 0))
    e("s_waitcnt lgkmcnt(0)")
    stamp(4)
    e("s_barrier")
    for c in range(4):
        if c > 1: e("s_waitcnt lgkmcnt(8)")
        if c > 1:
            for u in range(4): cs_mma(V_D+(c&1)*16+4*u, c == 2 and u == 0)
        for u in range(8):
            if c == 1 and u == 7: e("s_waitcnt lgkmcnt(10)")
            e(f"ds_read_b64_tr_b16 {vr(V_D+(c&1)*16+2*u,2)}, v{V_CA} offset:{(c*8+u)*2048}")
    for c in range(2):
        e(f"s_waitcnt lgkmcnt({8*(1-c)})")
        for u in range(4): cs_mma(V_D+c*16+4*u, False)
    e(f"v_add_u32 v{V_GA}, 384, v{V_ZG}")
    e(f"v_add_u32 v{t+7}, 384, v15")
    nop(8)
    cs_write(256)
    e("s_waitcnt lgkmcnt(0)")
    stamp(5)
    e("s_barrier")
    if opt("hprio", 1): e("s_setprio 0")
    e("s_cmp_lt_u32 s53, 14")
    e("s_cbranch_scc1 K1_PB_F")
    e("s_branch K1_PB_D")

    lab("K1_CONS")
    G = V_X
    e(f"v_lshl_add_u32 v{t}, s53, 4, v{V_I}")
    e(f"v_cmp_eq_u32 vcc, 0, v{t}")
    e(f"v_mov_b32 v{t+1}, 0x100")
    e(f"v_mov_b32 v{t+3}, 0xbe800000")
    e(f"v_cndmask_b32 v{t}, v{t}, v{t+1}, vcc")
    e(f"v_cndmask_b32 v{t+3}, 0, v{t+3}, vcc")
    e(f"v_cvt_f32_u32 v{t}, v{t}")
    e(f"v_mul_f32 v{t}, 0x3b000000, v{t}")
    e("s_lshl_b32 s64, s55, 7")
    e("s_lshl_b32 s65, s73, 6")
    e("s_add_u32 s64, s64, s65")
    e(f"v_lshl_add_u32 v{t+1}, v{V_G}, 3, s64")
    e(f"v_cvt_f32_u32 v{t+1}, v{t+1}")
    e(f"v_fma_f32 v{G}, v{t+1}, v{t}, v{t+3}")
    e(f"v_fract_f32 v{G}, v{G}")
    for k in range(1, 8): e(f"v_add_f32 v{G+k}, v{G+k-1}, v{t}")
    e(f"v_mul_f32 v{t}, 0x42000000, v{t}")
    e(f"v_lshlrev_b32 v{V_GA}, 4, v{V_LANE}")
    e(f"v_add_u32 v{V_GA}, {K1_GEN}, v{V_GA}")
    e(f"v_add_u32 v{t+4}, s62, v{V_GA}")
    for ks in range(4):
        for k in range(8):
            e(f"v_sin_f32 v{G+8+k}, -v{G+k}")
            if ks < 3: e(f"v_add_f32 v{G+k}, v{G+k}, v{t}")
        if ks == 3: e("s_nop 0")
        for k in range(4): e(f"v_cvt_pk_bf16_f32 v{G+16+4*ks+k}, v{G+8+2*k}, v{G+8+2*k+1}")
        e(f"ds_write_b128 v{t+4}, {vr(G+16+4*ks,4)} offset:{ks*1024}")
    wa_setup((0, 1, 2, 3), 0)
    xa_setup()
    for k in range(4): e(f"v_mov_b32 v{V_E+k}, 0x3f803f80")
    out_setup(0)
    e("s_waitcnt lgkmcnt(0)")
    srd(36, 28, WS_SIZE)
    e("s_or_b32 s68, s2, s54")
    e("s_cmp_eq_u32 s68, 0")
    e("s_cselect_b64 exec, 0xff, 0")
    e(f"v_lshlrev_b32 v{t}, 8, v{V_LANE}")
    e(f"v_mov_b32 v{t+1}, 0")
    e(f"v_add_u32 v{t}, {WS_CNT:#x}, v{t}")
    e(f"buffer_store_dword v{t+1}, v{t}, s[36:39], 0 offen sc1")
    e("s_mov_b64 exec, -1")
    e("s_cmp_lt_u32 s53, 14")
    e("s_cbranch_scc0 K1_VAR_D")

    def acc(j, T):
        if j < 4: return V_ACC + (j*2+T)*4
        if j == 8: return V_ACC + 32 + T*4
        return V_ACC + 40 + ((j-4)*2+T)*4
    def variant(tag, ffn):
        lab(f"K1_VAR_{tag}")
        Q = []; pend = []
        def need(tags):
            assert not any(tg in tags for tg, _ in pend), (tags, pend)
            idx = max([i for i, x in enumerate(Q) if x in tags], default=-1)
            if idx >= 0:
                e(f"s_waitcnt lgkmcnt({len(Q)-1-idx})")
                del Q[:idx+1]
        def pop(n):
            for _ in range(min(n, len(pend))):
                tg, ins = pend.pop(0); e(ins); Q.append(tg)
            assert len(Q) <= 15
        def mm(ins):
            e(ins); pop(2 if len(pend) > 2 else 1)
        def mfma(j, ks, slot):
            for T in range(2):
                a_ = acc(j, T); xf = vr(xreg(ks, T), 4); c_ = "0" if ks == 0 else vr(a_, 4)
                if ffn and j < 8: mm(f"v_mfma_f32_16x16x32_bf16 {vr(a_,4)}, {vr(slot,4)}, {xf}, {c_}")
                else: mm(f"v_mfma_f32_16x16x32_bf16 {vr(a_,4)}, {xf}, {vr(slot,4)}, {c_}")
        def rdA(n):
            ks, jj = divmod(n, 5); st, kk = divmod(ks, 2)
            slot = V_RING + (n % NR)*4
            if jj < 4:
                off = soff(st) + kk*4096
                pend.append((("w", n), f"ds_read_b64_tr_b16 {vr(slot,2)}, v{V_WA+jj} offset:{off}"))
                pend.append((("w", n), f"ds_read_b64_tr_b16 {vr(slot+2,2)}, v{V_WA+jj} offset:{off+512}"))
            else:
                pend.append((("w", n), f"ds_read_b128 {vr(slot,4)}, v{V_GA} offset:{ks*1024}"))
        def rdX(ks):
            st, kk = divmod(ks, 2)
            for T in range(2):
                pend.append((("x", ks), f"ds_read_b128 {vr(xreg(ks,T),4)}, v{V_XA+kk} offset:{soff(st) + T*2048}"))
        def stage_start(n0):
            if n0 in (30, 50):
                op = "v_add_u32" if n0 == 30 else "v_subrev_u32"
                for r_ in (V_WA, V_WA+1, V_WA+2, V_WA+3, V_XA, V_XA+1): e(f"{op} v{r_}, {K1_WB}, v{r_}")
            e("s_barrier")
            rdX(n0 // 5)
            for n in range(n0, n0+PF): rdA(n)
        ST = V_ACC + 40
        stage_start(0); pop(10)
        stamp(2)
        for n in range(80):
            rem = n % 10; ks, jj = divmod(n, 5)
            if rem == 0: rdX(ks + 1)
            if rem + PF < 10: rdA(n + PF)
            if rem == 8 and n < 70:
                pop(99)
                e("s_waitcnt lgkmcnt(0)"); Q.clear()
                stage_start(n + 2)
            need([("w", n), ("x", ks)])
            mfma(jj if jj < 4 else 8, ks, V_RING + (n % NR)*4)
            if jj in (1, 3):
                T = jj >> 1; xf = vr(xreg(ks, T), 4)
                for a_, o1 in ((ST + 4*T, vr(V_E, 4)), (ST + 8 + 4*T, xf)):
                    mm(f"v_mfma_f32_16x16x32_bf16 {vr(a_,4)}, {o1}, {xf}, {'0' if ks == 0 else vr(a_,4)}")
        stamp(3)
        for j in range(2): e(f"v_add_u32 v{V_WA+j}, {K1_WB}, v{V_WA+j}")
        e(f"v_add_u32 v{t+1}, s63, v15")
        e("s_nop 0")
        for q in range(1, 4):
            e(f"s_mov_b32 s68, {0x11111111 << q:#x}"); e(f"s_mov_b32 s69, {0x11111111 << q:#x}")
            for T in range(2): e(f"v_cndmask_b32 v{ST+8+4*T}, v{ST+8+4*T}, v{ST+8+4*T+q}, s[68:69]")
        def both(f):
            for T in range(2): e(f(ST+4*T, ST+8+4*T, ST+4*T+1))
        both(lambda vS, vQ, tmp: f"v_mul_f32 v{vS}, 0x3b000000, v{vS}")
        both(lambda vS, vQ, tmp: f"v_mul_f32 v{vQ}, 0x3b000000, v{vQ}")
        both(lambda vS, vQ, tmp: f"v_fma_f32 v{vQ}, -v{vS}, v{vS}, v{vQ}")
        both(lambda vS, vQ, tmp: f"v_max_f32 v{vQ}, 0, v{vQ}")
        both(lambda vS, vQ, tmp: f"v_cvt_pk_bf16_f32 v{tmp}, v{vS}, v{vQ}")
        both(lambda vS, vQ, tmp: f"v_lshlrev_b32 v{vS}, 16, v{tmp}")
        both(lambda vS, vQ, tmp: f"v_and_b32 v{vQ}, 0xffff0000, v{tmp}")
        both(lambda vS, vQ, tmp: f"v_add_f32 v{vQ}, 0x3727c5ac, v{vQ}")
        both(lambda vS, vQ, tmp: f"v_cvt_pk_bf16_f32 v{tmp}, v{vQ}, v{vQ}")
        both(lambda vS, vQ, tmp: f"v_lshlrev_b32 v{vQ}, 16, v{tmp}")
        both(lambda vS, vQ, tmp: f"v_sqrt_f32 v{vQ}, v{vQ}")
        e("s_nop 0")
        both(lambda vS, vQ, tmp: f"v_cvt_pk_bf16_f32 v{tmp}, v{vQ}, v{vQ}")
        both(lambda vS, vQ, tmp: f"v_lshlrev_b32 v{vQ}, 16, v{tmp}")
        both(lambda vS, vQ, tmp: f"v_rcp_f32 v{vQ}, v{vQ}")
        e("s_mov_b32 exec_lo, 0x00f0000f"); e("s_mov_b32 exec_hi, 0xf0000f00")
        for T in range(2):
            e(f"ds_write_b32 v{t+1}, v{ST+4*T} offset:{512+64*T}")
            e(f"ds_write_b32 v{t+1}, v{ST+8+4*T} offset:{1024+64*T}")
        e("s_mov_b64 exec, -1")
        e("s_waitcnt lgkmcnt(0)")
        e("s_barrier")
        stamp(1)
        def rd_S(S, mean=True):
            r = [f"v_add_u32 v{t+4}, s63, v{V_ZG}"]
            for T in range(2):
                if mean: r.append(f"ds_read_b128 {vr(S+8*T,4)}, v{t+4} offset:{512+64*T}")
                r.append(f"ds_read_b128 {vr(S+8*T+4,4)}, v{t+4} offset:{1024+64*T}")
            return r
        def rd_R():
            return [f"v_add_u32 v{t+1}, s63, v15"] + [f"ds_read_b32 v{R+2*q}, v{t+1} offset:{512*(1+(q&1)) + 64*(q>>1)}" for q in range(4)]
        def rd_cb(base, jp, CB):
            r = []
            for hh in range(2):
                r.append(f"ds_read_b128 {vr(CB+4*hh,4)}, v{base} offset:{64*(2*jp+hh)}")
                r.append(f"ds_read_b128 {vr(CB+8+4*hh,4)}, v{base} offset:{1536+64*(2*jp+hh)}")
            return r
        def ffn_pair(j0, so, CB, O):
            for T in range(2):
                o = O + T*12
                for hh in range(2):
                    for k in range(2):
                        e(f"v_pk_fma_f32 {vr(o+4*hh+2*k,2)}, {vr(R+4*T,2)}, {vr(CB+4*hh+2*k,2)}, {vr(CB+8+4*hh+2*k,2)} op_sel_hi:[0,1,1] neg_lo:[1,0,0] neg_hi:[1,0,0]")
                for hh in range(2):
                    for k in range(2):
                        e(f"v_pk_fma_f32 {vr(o+4*hh+2*k,2)}, {vr(R+4*T+2,2)}, {vr(acc(j0+hh,T)+2*k,2)}, {vr(o+4*hh+2*k,2)} op_sel_hi:[0,1,1]")
                for k in range(8): e(f"v_mul_f32 v{o+k}, v{o+k}, |v{o+k}|")
                for k in range(4): e(f"v_cvt_pk_bf16_f32 v{o+8+k}, v{o+2*k}, v{o+2*k+1}")
                for k in range(4): e(f"v_pk_max_i16 v{o+8+k}, v{o+8+k}, 0")
                e(f"buffer_store_dwordx4 {vr(o+8,4)}, v{V_L16}, s[36:39], s{60+T} offen offset:{so}{fl(ST_H2)}")
        def xstore(tagj, vaddr, vdata):
            e("s_cmp_eq_u32 s76, 0")
            e(f"s_cbranch_scc1 K1_NOX_{tagj}")
            e("s_mov_b64 exec, s[76:77]")
            e(f"buffer_store_dword v{vdata}, v{vaddr}, s[36:39], 0 offen")
            e("s_mov_b64 exec, -1")
            lab(f"K1_NOX_{tagj}")
        def transpose4(o):
            nop(2)
            e(f"v_permlane32_swap_b32 v{o}, v{o+2}")
            e(f"v_permlane32_swap_b32 v{o+1}, v{o+3}")
            nop(2)
            e(f"v_permlane16_swap_b32 v{o}, v{o+1}")
            e(f"v_permlane16_swap_b32 v{o+2}, v{o+3}")
        def dft_pair(j0, S, CS, W):
            PL = W; MI = W + 2; VV = W + 4; o = W + 12
            for hh in range(2):
                j = j0 + hh
                for T in range(2):
                    a_ = acc(j, T)
                    for k in range(4): e(f"v_fma_f32 v{VV+k}, -v{S+8*T+k}, v{CS+hh}, v{a_+k}")
                    for k in range(4): e(f"v_mul_f32 v{VV+k}, v{VV+k}, v{S+8*T+4+k}")
                    e(f"v_add_f32 v{VV+4}, v{VV}, v{VV+1}")
                    e(f"v_add_f32 v{VV+5}, v{VV+2}, v{VV+3}")
                    e(f"v_add_f32 v{PL+T}, v{VV+4}, v{VV+5}")
                    e(f"v_sub_f32 v{MI+T}, v{VV+4}, v{VV+5}")
                    if T == 0:
                        e(f"v_sub_f32 v{VV+6}, v{VV}, v{VV+1}")
                        e(f"v_cndmask_b32 v{PL}, v{PL}, v{VV+4}, s[76:77]")
                        e(f"v_cndmask_b32 v{MI}, v{MI}, v{VV+6}, s[76:77]")
                        xstore(f"{tag}_{j}", 14, VV+5)
                        e(f"v_add_u32 v14, 64, v14")
                e(f"v_cvt_pk_bf16_f32 v{o+2*hh}, v{PL}, v{PL+1}")
                e(f"v_cvt_pk_bf16_f32 v{o+2*hh+1}, v{MI}, v{MI+1}")
            transpose4(o)
            e(f"buffer_store_dwordx4 {vr(o,4)}, v{V_ATO}, s[36:39], s67 offen{fl(ST_AT)}")
            e("s_add_u32 s67, s67, 0x8000")
        def gen_tile(S, W):
            PL = W; MI = W + 2; VV = W + 4; o = W + 12
            e(f"v_lshl_add_u32 v{t}, s53, 4, v{V_I}")
            e(f"v_cmp_eq_u32 vcc, 0, v{t}")
            e("s_lshl_b32 s66, s53, 14")
            e(f"s_add_u32 s66, s66, {3*ASTR:#x}")
            e(f"v_mov_b32 v{t+2}, {ASTR:#x}")
            e(f"v_mul_lo_u32 v{t+2}, v{t+2}, v{V_G}")
            e(f"v_sub_u32 v{t+1}, s66, v{t+2}")
            e(f"v_add_u32 v{t+2}, {16*16384:#x}, v{t+2}")
            e(f"v_cndmask_b32 v{t+1}, v{t+1}, v{t+2}, vcc")
            e(f"v_lshl_add_u32 v{t+1}, v{V_I}, 4, v{t+1}")
            e(f"v_mov_b32 v{t+2}, -1.0")
            e(f"v_cndmask_b32 v{t+2}, v{t+2}, 1.0, vcc")
            e(f"v_add_u32 v{t+6}, 288, v{t}")
            e(f"v_mov_b32 v{t+7}, 0x100")
            e(f"v_cndmask_b32 v{t+6}, v{t+6}, v{t+7}, vcc")
            e(f"v_lshlrev_b32 v{t+6}, 2, v{t+6}")
            e(f"v_add_u32 v{t+6}, {WS_X512:#x}, v{t+6}")
            for T in range(2):
                a_ = acc(8, T)
                for k in range(4): e(f"v_mul_f32 v{VV+k}, v{a_+k}, v{S+8*T+4+k}")
                e(f"v_fma_f32 v{VV+4}, v{t+2}, v{VV+1}, v{VV}")
                e(f"v_fma_f32 v{VV+5}, v{t+2}, v{VV+3}, v{VV+2}")
                e(f"v_add_f32 v{PL+T}, v{VV+4}, v{VV+5}")
                e(f"v_sub_f32 v{MI+T}, v{VV+4}, v{VV+5}")
                if T == 0:
                    e(f"v_sub_f32 v{VV+6}, v{VV}, v{VV+1}")
                    e(f"v_cndmask_b32 v{VV+6}, 0, v{VV+6}, vcc")
                    e(f"v_cndmask_b32 v{VV+7}, 0, v{VV+4}, vcc")
                    e(f"v_cndmask_b32 v{PL}, v{PL}, v{VV+7}, s[76:77]")
                    e(f"v_cndmask_b32 v{MI}, v{MI}, v{VV+6}, s[76:77]")
                    xstore(f"{tag}_g", t+6, VV+5)
            e(f"v_cvt_pk_bf16_f32 v{o}, v{PL}, v{PL+1}")
            e(f"v_cvt_pk_bf16_f32 v{o+1}, v{MI}, v{MI+1}")
            transpose4(o)
            e("s_mov_b32 exec_hi, 0")
            e(f"buffer_store_dwordx4 {vr(o,4)}, v{t+1}, s[36:39], s64 offen{fl(ST_AT)}")
            e("s_mov_b32 exec_hi, -1")
        B1 = V_ACC + 40
        if ffn:
            for x in rd_R()[1:] + rd_cb(V_ZG, 0, V_E) + rd_cb(V_ZG, 1, B1): e(x)
            e("s_waitcnt lgkmcnt(4)")
            e(f"v_mul_f32 v{R}, v{R}, v{R+2}")
            e(f"v_mul_f32 v{R+4}, v{R+4}, v{R+6}")
            ffn_pair(0, 0, V_E, V_RING)
            for x in rd_S(V_E, mean=False): e(x)
            e("s_waitcnt lgkmcnt(0)")
            e("s_barrier")
            gen_tile(V_E, V_RING)
            ffn_pair(2, 1024, B1, V_ACC)
            e("s_add_u32 s60, s60, 0x800"); e("s_add_u32 s61, s61, 0x800")
        else:
            for x in rd_S(V_E): e(x)
            for j in range(4): e(f"ds_read_b32 v{R+j}, v15 offset:{64*j}")
            e("s_waitcnt lgkmcnt(0)")
            dft_pair(0, V_E, R, V_RING)
            e("s_barrier")
            dft_pair(2, V_E, R+2, B1)
            gen_tile(V_E, V_RING)
        e(f"v_add_u32 v{V_GA}, 256, v{V_ZG}")
        e(f"v_add_u32 v{t+7}, 256, v15")
        stamp(4)
        lab(f"K1_PB_{tag}")
        def rdB(n):
            ks, hh = divmod(n, 2)
            slot = V_RING + (n % NR)*4
            pend.append((("w", n), f"ds_read_b64_tr_b16 {vr(slot,2)}, v{V_WA+hh} offset:{ks*4096}"))
            pend.append((("w", n), f"ds_read_b64_tr_b16 {vr(slot+2,2)}, v{V_WA+hh} offset:{ks*4096+512}"))
        Q.clear()
        PB = 5
        for n in range(PB): rdB(n)
        pop(99)
        ep = (rd_R() + rd_cb(V_GA, 0, V_E)) if ffn else (rd_S(V_E) + [f"ds_read_b32 v{R+j}, v{t+7} offset:{64*j}" for j in range(2)])
        e(ep[0])
        for n in range(32):
            ks, hh = divmod(n, 2)
            if n + PB < 32: rdB(n + PB)
            if n + PB == 32: pend.extend((("c", 0), x) for x in ep[1:])
            need([("w", n)])
            mfma(4 + hh, ks, V_RING + (n % NR)*4)
        assert not pend
        stamp(6)
        e("s_waitcnt lgkmcnt(0)")
        if ffn:
            e(f"v_mul_f32 v{R}, v{R}, v{R+2}")
            e(f"v_mul_f32 v{R+4}, v{R+4}, v{R+6}")
            nop(2)
            ffn_pair(4, 0, V_E, V_RING)
        else:
            nop(8)
            dft_pair(4, V_E, R, V_RING)
        if PROF: e("s_waitcnt vmcnt(0)")
        stamp(7)
        prof_end(0, 1)
        e("s_endpgm")
    variant("F", True)
    variant("D", False)
    lab("K1_END")
    e("s_endpgm")

PP = 272
K2_F = 0
K2_D = 3 * 64 * PP
DP = 208
DARR = 17 * DP
K2_LDS = K2_D + 4 * DARR

def gen_k2():
    DEPTH = opt("depth", 8); DD = opt("ddepth", 8); MAP2 = opt("map2", 0)
    lab("k2_kernel")
    e("s_cmp_ge_u32 s2, 256")
    e("s_cbranch_scc1 K2_END")
    prof_begin(); stamp(0)
    load_ptrs()
    V_LANE, V_I, V_G = 1, 2, 3
    V_L16 = 4
    V_XO = 5
    V_XV = 6
    V_B2 = 14
    V_OA = 22
    t = 30
    V_ACC = 48
    V_ST = 120
    e("v_lshrrev_b32 v1, 6, v0")
    e("v_and_b32 v2, 15, v0")
    e("v_readfirstlane_b32 s54, v1")
    e(f"v_and_b32 v{V_LANE}, 63, v0")
    e(f"v_lshrrev_b32 v{V_G}, 4, v{V_LANE}")
    e(f"v_lshlrev_b32 v{V_L16}, 4, v{V_LANE}")
    code_warm("K2", 1, t)
    e("s_waitcnt lgkmcnt(0)")
    srd(36, 28, WS_SIZE)
    if opt("dyn", 0):
        e(f"v_mov_b32 v{t+2}, 0")
        e("s_getreg_b32 s40, hwreg(HW_REG_XCC_ID)")
        e("s_cmp_eq_u32 s54, 0")
        e("s_cbranch_scc0 K2_TPRE")
        e("s_mov_b32 s41, 0")
        e("s_mov_b64 exec, 1")
        lab("K2_TLOOP")
        e("s_and_b32 s40, s40, 7")
        e("s_lshl_b32 s42, s40, 8")
        e(f"s_add_u32 s42, s42, {WS_CNT:#x}")
        e(f"v_mov_b32 v{t}, s42")
        e(f"v_mov_b32 v{t+1}, 1")
        e(f"buffer_atomic_add v{t+1}, v{t}, s[36:39], 0 offen sc0 sc1")
        e("s_waitcnt vmcnt(0)")
        e(f"v_readfirstlane_b32 s42, v{t+1}")
        e("s_lshl_b32 s43, s42, 3")
        e("s_or_b32 s43, s43, s40")
        e("s_cmp_lt_u32 s42, 32")
        e("s_cbranch_scc1 K2_TDONE")
        e("s_add_u32 s40, s40, 1")
        e("s_add_u32 s41, s41, 1")
        e("s_cmp_lt_u32 s41, 8")
        e("s_cbranch_scc1 K2_TLOOP")
        e("s_mov_b32 s43, 0x100")
        lab("K2_TDONE")
        e(f"v_mov_b32 v{t+1}, s43")
        e(f"ds_write_b32 v{t+2}, v{t+1}")
        e("s_mov_b64 exec, -1")
        e("s_waitcnt lgkmcnt(0)")
        e("s_branch K2_TWAIT")
        lab("K2_TPRE")
        NW, NH = opt("pw", 0), opt("ph", 0)
        e("s_sub_u32 s41, s54, 1")
        e("s_mul_i32 s41, s41, 19456")
        e("s_lshr_b32 s42, s2, 3")
        if MAP2 == 0:
            e("s_mov_b32 s43, s42")
            e("s_and_b32 s44, s40, 6"); e("s_lshl_b32 s44, s44, 4")
            e("s_bfe_u32 s45, s42, 0x20002"); e("s_lshl_b32 s45, s45, 3"); e("s_add_u32 s44, s44, s45")
            e("s_lshr_b32 s46, s42, 4")
            wh, hh = 0, 1
        else:
            e("s_and_b32 s43, s42, 7"); e("s_and_b32 s45, s40, 2"); e("s_lshl_b32 s45, s45, 2"); e("s_add_u32 s43, s43, s45")
            e("s_sub_u32 s45, 31, s43"); e("s_bitcmp1_b32 s42, 3"); e("s_cselect_b32 s43, s45, s43")
            e("s_and_b32 s44, s40, 4"); e("s_lshl_b32 s44, s44, 4")
            e("s_lshr_b32 s45, s42, 2"); e("s_lshl_b32 s45, s45, 3"); e("s_add_u32 s44, s44, s45")
            e("s_lshr_b32 s46, s42, 4")
            wh, hh = 1, 0
        e("s_and_b32 s45, s40, 1"); e("s_lshl_b32 s45, s45, 2"); e("s_add_u32 s44, s44, s45")
        e("s_and_b32 s45, s42, 3"); e("s_add_u32 s44, s44, s45")
        e(f"s_mul_i32 s43, s43, {TILE_B}"); e("s_add_u32 s43, s43, s41"); e(f"s_add_u32 s43, s43, {WS_W2:#x}")
        e(f"s_mul_i32 s44, s44, {TILE_B}"); e("s_add_u32 s44, s44, s41")
        if MAP2: NW, NH = NH, NW
        e(f"s_mul_i32 s46, s46, {1024*(NW if wh else NH)}")
        e(f"s_add_u32 s{43 if wh else 44}, s{43 if wh else 44}, s46")
        for q in range(max(NW, NH)):
            if q == 4 or q == 8: e("s_add_u32 s43, s43, 0x1000"); e("s_add_u32 s44, s44, 0x1000")
            if q < NW: e(f"buffer_load_dwordx4 {vr(V_ACC,4)}, v{V_L16}, s[36:39], s43 offen offset:{1024*(q%4)}")
            if q < NH: e(f"buffer_load_dwordx4 {vr(V_ACC+4,4)}, v{V_L16}, s[36:39], s44 offen offset:{1024*(q%4)}")
        lab("K2_TWAIT")
        e("s_barrier")
        e(f"ds_read_b32 v{t+1}, v{t+2}")
        e("s_waitcnt lgkmcnt(0)")
        e(f"v_readfirstlane_b32 s2, v{t+1}")
        e("s_cmp_ge_u32 s2, 256")
        e("s_cbranch_scc1 K2_END")
    e("s_and_b32 s56, s2, 1")
    if MAP2 == 0:
        e("s_and_b32 s52, s2, 6")
        e("s_lshl_b32 s52, s52, 1")
        e("s_bfe_u32 s55, s2, 0x20003")
        e("s_add_u32 s52, s52, s55")
        e("s_lshr_b32 s53, s2, 5")
    else:
        e("s_and_b32 s52, s2, 4")
        e("s_lshl_b32 s52, s52, 1")
        e("s_bfe_u32 s55, s2, 0x30003")
        e("s_add_u32 s52, s52, s55")
        e("s_and_b32 s53, s2, 2")
        e("s_lshl_b32 s53, s53, 1")
        e("s_lshr_b32 s55, s2, 6")
        e("s_add_u32 s53, s53, s55")
    e("s_lshl_b32 s57, s52, 5")
    e("s_add_u32 s57, s57, s56")
    e("s_cmp_eq_u32 s54, 3")
    e("s_cbranch_scc1 K2_DFT")
    e("s_lshl_b32 s60, s52, 1")
    e("s_add_u32 s60, s60, s56")
    e(f"s_mul_i32 s60, s60, {4*TILE_B}")
    for n in range(4):
        e(f"s_add_u32 s61, s60, {n*TILE_B}")
        e(f"v_add_u32 v{V_OA+4+n}, s61, v{V_L16}")
    e(f"s_mul_i32 s62, s53, {2*TILE_B}")
    e(f"s_add_u32 s61, s62, {WS_W2:#x}")
    e(f"v_add_u32 v{V_OA}, s61, v{V_L16}")
    e(f"v_add_u32 v{V_OA+1}, {TILE_B:#x}, v{V_OA}")
    e(f"s_sub_u32 s61, {WS_W2 + 30*TILE_B:#x}, s62")
    e(f"v_add_u32 v{V_OA+2}, s61, v{V_L16}")
    e(f"v_add_u32 v{V_OA+3}, {TILE_B:#x}, v{V_OA+2}")
    e("s_mul_i32 s68, s54, 19456")
    KR = opt("kr", 1)
    if KR:
        if KR == 1: e("s_and_b32 s69, s2, 7")
        elif KR == 2: e("s_lshr_b32 s69, s2, 5")
        elif KR == 3: e("s_lshr_b32 s69, s2, 5"); e("s_add_u32 s69, s69, s2"); e("s_and_b32 s69, s69, 7")
        elif KR == 4: e("s_lshr_b32 s69, s2, 3"); e("s_add_u32 s69, s69, s2"); e("s_and_b32 s69, s69, 7")
        e(f"s_mul_i32 s69, s69, {opt('krm', 7)*1024}")
        e("s_add_u32 s68, s68, s69")
        e("s_sub_u32 s68, s68, 0x400")
    NS = 19
    def st(s, q):
        k = s % DEPTH
        return vr(V_ST + k*32 + q*4, 4) if k < 4 else ar((k-4)*32 + q*4, 4)
    def ld(s):
        if KR:
            e("s_add_u32 s68, s68, 0x400")
            e(f"s_sub_u32 s69, s68, {56*1024}")
            e(f"s_cmp_ge_u32 s68, {56*1024}")
            e("s_cselect_b32 s68, s69, s68")
        elif s and s % 4 == 0: e("s_add_u32 s68, s68, 0x1000")
        io = 0 if KR else 1024*(s%4)
        for m in range(4):
            e(f"buffer_load_dwordx4 {st(s,m)}, v{V_OA+m}, s[36:39], s68 offen offset:{io}")
            e(f"buffer_load_dwordx4 {st(s,4+m)}, v{V_OA+4+m}, s[36:39], s68 offen offset:{io}")
    def acc(m, n): return V_ACC + (m*4+n)*4
    def mm(s):
        for m in range(4):
            for n in range(4):
                c_ = "0" if s == 0 else vr(acc(m,n),4)
                e(f"v_mfma_f32_16x16x32_bf16 {vr(acc(m,n),4)}, {st(s,m)}, {st(s,4+n)}, {c_}")
    def fin_loads():
        srd(32, 4, 2048*512*2)
        srd(40, 22, 512*2)
        srd(60, 24, 2048*512*2)
        e(f"v_bfe_u32 v{t}, v{V_LANE}, 2, 2")
        quad_consts(t, t+1, t+2, t+3, t+4)
        e("s_lshl_b32 s66, s54, 3")
        e("s_add_u32 s66, s66, s57")
        e(f"v_lshl_add_u32 v{t+4}, v{V_G}, 1, s66")
        e(f"v_mad_i32_i24 v{t+5}, v{t+2}, v{t+4}, v{t+1}")
        e(f"v_cmp_eq_u32 vcc, 0, v{t+4}")
        e(f"v_and_b32 v{t+6}, 3, v{V_LANE}")
        e(f"v_lshlrev_b32 v{t+6}, 4, v{t+6}")
        e(f"v_cndmask_b32 v{t+5}, v{t+5}, v{t+3}, vcc")
        e(f"v_lshl_add_u32 v{V_XO}, v{t+5}, 10, v{t+6}")
        e("s_lshl_b32 s64, s53, 6")
        e(f"s_sub_u32 s65, {480*2}, s64")
        e(f"buffer_load_dwordx4 {vr(V_XV,4)}, v{V_XO}, s[32:35], s64 offen")
        e(f"buffer_load_dwordx4 {vr(V_XV+4,4)}, v{V_XO}, s[32:35], s65 offen")
        e(f"buffer_load_dwordx4 {vr(V_B2,4)}, v{t+6}, s[40:43], s64 offen")
        e(f"buffer_load_dwordx4 {vr(V_B2+4,4)}, v{t+6}, s[40:43], s65 offen")
    for s in range(DEPTH - 1):
        ld(s)
        if s == 1: fin_loads()
    stamp(1)
    for s in range(NS):
        if s == 1: stamp(2)
        if s == 8: stamp(3)
        nl = s + DEPTH - 1
        extra = 4 if s < 2 else 0
        if nl < NS - 1:
            ld(nl); e(f"s_waitcnt vmcnt({min(63, 8*(DEPTH-1) + extra)})")
        elif nl == NS - 1:
            e("s_cmp_eq_u32 s54, 2")
            e("s_cbranch_scc1 K2_W2TAIL")
            ld(nl); e(f"s_waitcnt vmcnt({8*(DEPTH-1)})")
        else:
            e(f"s_waitcnt vmcnt({8*(NS-1-s)})")
        mm(s)
    e("s_branch K2_FFN_DONE")
    lab("K2_W2TAIL")
    for s in range(NS - DEPTH, NS - 1):
        e(f"s_waitcnt vmcnt({8*(NS-2-s)})")
        mm(s)
    lab("K2_FFN_DONE")
    stamp(4)
    e(f"s_mul_i32 s66, s54, {64*PP}")
    e(f"v_mul_u32_u24 v{t}, {PP}, v{V_I}")
    e(f"v_lshl_add_u32 v{t}, v{V_G}, 4, v{t}")
    e(f"v_add_u32 v{t}, s66, v{t}")
    nop(6)
    for m in range(4):
        for n in range(4):
            e(f"ds_write_b128 v{t}, {vr(acc(m,n),4)} offset:{n*16*PP + m*64}")
    e("s_branch K2_FINAL")
    lab("K2_DFT")
    e(f"s_mul_i32 s68, s56, {ASTR:#x}")
    e("s_lshl_b32 s69, s53, 15")
    e("s_add_u32 s68, s68, s69")
    e(f"s_add_u32 s68, s68, {WS_AT:#x}")
    e(f"s_add_u32 s69, s68, {2*ASTR:#x}")
    e(f"v_add_u32 v{V_OA+1}, 0x4000, v{V_L16}")
    e(f"v_lshlrev_b32 v{V_OA+2}, 8, v{V_G}")
    e(f"v_add_u32 v{V_OA+2}, 0x8000, v{V_OA+2}")
    OFF = [V_L16, V_OA+1, V_OA+2]
    def dst(s, q):
        return ar((s % DD)*24 + q*4, 4)
    def dld(s):
        if s and s % 4 == 0:
            e("s_add_u32 s68, s68, 0x1000"); e("s_add_u32 s69, s69, 0x1000")
        for m in range(3):
            e(f"buffer_load_dwordx4 {dst(s,m)}, v{OFF[m]}, s[36:39], s68 offen offset:{1024*(s%4)}")
            e(f"buffer_load_dwordx4 {dst(s,3+m)}, v{OFF[m]}, s[36:39], s69 offen offset:{1024*(s%4)}")
    XA = V_ST; XB = XA + 12; CF = XB + 12
    XR = CF + 4
    TG = XR + 8
    FR = TG + 16
    for s in range(2): dld(s)
    e("s_lshl_b32 s70, s53, 7")
    e(f"s_add_u32 s70, s70, {WS_X512:#x}")
    e(f"v_lshlrev_b32 v{t+7}, 4, v{V_G}")
    for m in range(3):
        e(f"buffer_load_dwordx4 {vr(XA+4*m,4)}, v{t+7}, s[36:39], s70 offen offset:{64*m}")
        e(f"buffer_load_dwordx4 {vr(XB+4*m,4)}, v{t+7}, s[36:39], s70 offen offset:{288*4+64*m}")
    fin_loads()
    for s in range(2, DD - 1): dld(s)
    stamp(1)
    VT = t + 10; VINC = t + 11; VT1 = t + 12; CRE = t + 13; CIM = t + 14
    e(f"v_lshl_add_u32 v{VT}, v{V_I}, 1, s57")
    e(f"v_cvt_f32_u32 v{VT}, v{VT}")
    e(f"v_mul_f32 v{VINC}, 0x3d000000, v{VT}")
    e(f"v_mul_f32 v{VT1}, 0x3a000000, v{VT}")
    e(f"v_mul_f32 v{CRE}, 0x3e800000, v{VT}")
    e(f"v_sin_f32 v{CIM}, -v{CRE}")
    e(f"v_cos_f32 v{CRE}, v{CRE}")
    e(f"v_lshlrev_b32 v{t+8}, 4, v{V_G}")
    def init_args(sp):
        for k in range(8):
            e(f"v_add_u32 v{t+9}, {2*(k>>1) + 8*(k&1) + sp}, v{t+8}")
            e(f"v_cvt_f32_u32 v{t+9}, v{t+9}")
            e(f"v_mul_f32 v{XR+k}, v{t+9}, v{VT1}")
    for k in range(4): e(f"v_mov_b32 v{CF+k}, {'0xbf80bf80' if k & 1 else '0x3f803f80'}")
    def gen(s):
        if s % 8 == 0: init_args(s // 8)
        else:
            for k in range(8): e(f"v_add_f32 v{XR+k}, v{XR+k}, v{VINC}")
        for k in range(8):
            e(f"v_cos_f32 v{TG+k}, v{XR+k}")
            e(f"v_sin_f32 v{TG+8+k}, -v{XR+k}")
        e("s_nop 0")
        f = FR + (s % 2)*8
        for k in range(8): e(f"v_cvt_pk_bf16_f32 v{f+k}, v{TG+2*k}, v{TG+2*k+1}")
    def pacc(ph, sp, m): return V_ACC + ((ph*2+sp)*3+m)*4
    def sacc(ph, m): return V_ACC + 48 + (ph*3+m)*4
    def dmm(s):
        sp, h = divmod(s, 8); f = FR + (s % 2)*8
        for ph in range(2):
            for m in range(3):
                a_ = pacc(ph, sp, m); c_ = "0" if h == 0 else vr(a_, 4)
                e(f"v_mfma_f32_16x16x32_bf16 {vr(a_,4)}, {dst(s,3*ph+m)}, {vr(f+4*ph,4)}, {c_}")
        for m in range(3):
            a_ = sacc(sp, m); c_ = "0" if h == 0 else vr(a_, 4)
            e(f"v_mfma_f32_16x16x32_bf16 {vr(a_,4)}, {dst(s,3*sp+m)}, {vr(CF,4)}, {c_}")
    ND = 16
    gen(0)
    for s in range(ND):
        if s == 1: stamp(2)
        if s == 8: stamp(3)
        nl = s + DD - 1
        if nl < ND: dld(nl)
        if s + 1 < ND: gen(s + 1)
        else: nop(2)
        extra = 10 if s < 2 else 0
        e(f"s_waitcnt vmcnt({min(63, 6*(min(nl, ND-1) - s) + extra)})")
        dmm(s)
    stamp(4)
    e("s_cmp_eq_u32 s53, 0")
    e("s_cselect_b32 s72, 0xffff, 0")
    e("s_mov_b32 s73, 0")
    e("s_cmp_eq_u32 s53, 7")
    e("s_cselect_b32 s74, 0xffff, 0")
    e("s_mov_b32 s75, 0")
    e(f"v_mul_u32_u24 v{t}, {DP}, v{V_I}")
    e(f"v_add3_u32 v{t}, v{t}, v{t+7}, 0")
    e(f"v_add_u32 v{t}, {K2_D}, v{t}")
    nop(6)
    O = TG
    for m in range(3):
        EP, OP, EQ, OQ = pacc(0,0,m), pacc(0,1,m), pacc(1,0,m), pacc(1,1,m)
        o = O + (m % 2)*16
        for k in range(4):
            e(f"v_fma_f32 v{EP+k}, v{CRE}, v{XA+4*m+k}, v{EP+k}")
            e(f"v_fma_f32 v{EQ+k}, v{CIM}, v{XB+4*m+k}, v{EQ+k}")
        if m != 1:
            msk = "s[72:73]" if m == 0 else "s[74:75]"
            e(f"v_cndmask_b32 v{EQ}, v{EQ}, 0, {msk}")
            e(f"v_cndmask_b32 v{OQ}, v{OQ}, 0, {msk}")
            e(f"v_cndmask_b32 v{sacc(1,m)}, v{sacc(1,m)}, 0, {msk}")
        for k in range(4):
            e(f"v_add_f32 v{o+k}, v{EP+k}, v{OP+k}")
            e(f"v_sub_f32 v{o+8+k}, v{EP+k}, v{OP+k}")
            e(f"v_add_f32 v{EP+k}, v{EQ+k}, v{OQ+k}")
            e(f"v_sub_f32 v{OP+k}, v{OQ+k}, v{EQ+k}")
        for k in range(4):
            e(f"v_add_f32 v{o+4+k}, v{o+k}, v{EP+k}")
            e(f"v_sub_f32 v{o+k}, v{o+k}, v{EP+k}")
            e(f"v_add_f32 v{o+12+k}, v{o+8+k}, v{OP+k}")
            e(f"v_sub_f32 v{o+8+k}, v{o+8+k}, v{OP+k}")
        for a in range(4):
            e(f"ds_write_b128 v{t}, {vr(o+4*a,4)} offset:{a*DARR + m*64}")
    for m in range(3):
        for k in range(4):
            e(f"v_add_f32 v{sacc(0,m)+k}, v{sacc(0,m)+k}, v{XA+4*m+k}")
            e(f"v_sub_f32 v{XA+4*m+k}, v{sacc(0,m)+k}, v{sacc(1,m)+k}")
            e(f"v_add_f32 v{sacc(0,m)+k}, v{sacc(0,m)+k}, v{sacc(1,m)+k}")
    e(f"v_cmp_eq_u32 vcc, 0, v{V_I}")
    e("s_and_saveexec_b64 s[76:77], vcc")
    for m in range(3):
        e(f"ds_write_b128 v{t}, {vr(sacc(0,m),4)} offset:{16*DP + m*64}")
        e(f"ds_write_b128 v{t}, {vr(XA+4*m,4)} offset:{DARR + 16*DP + m*64}")
    e("s_mov_b64 exec, s[76:77]")
    lab("K2_FINAL")
    e(f"v_lshrrev_b32 v{t+1}, 2, v{V_LANE}")
    e("s_lshl_b32 s66, s54, 4")
    e(f"v_add_u32 v{t+2}, s66, v{t+1}")
    e(f"v_mul_u32_u24 v{t+2}, {PP}, v{t+2}")
    e(f"v_and_b32 v{t+3}, 3, v{V_LANE}")
    e(f"v_lshl_add_u32 v{t+2}, v{t+3}, 5, v{t+2}")
    e(f"v_and_b32 v{t+4}, 3, v{t+1}")
    e("s_lshl_b32 s66, s54, 2")
    e(f"v_add_u32 v{t+5}, s66, v{V_G}")
    e(f"v_or_b32 v{t+6}, s57, v{t+5}")
    e(f"v_cmp_eq_u32 vcc, 0, v{t+6}")
    e(f"v_lshlrev_b32 v{t+8}, 1, v{t+4}")
    e(f"v_mov_b32 v{t+9}, 0x48")
    e(f"v_lshrrev_b32 v{t+9}, v{t+8}, v{t+9}")
    e(f"v_and_b32 v{t+9}, 3, v{t+9}")
    e(f"v_and_b32 v{t+8}, 2, v{t+4}")
    e(f"v_lshlrev_b32 v{t+8}, 3, v{t+8}")
    e(f"v_cndmask_b32 v{t+4}, v{t+4}, v{t+9}, vcc")
    e(f"v_cndmask_b32 v{t+5}, v{t+5}, v{t+8}, vcc")
    e(f"v_mul_u32_u24 v{t+5}, {DP}, v{t+5}")
    e(f"v_add_u32 v{t+5}, {K2_D}, v{t+5}")
    e(f"v_mov_b32 v{t+8}, {DARR}")
    e(f"v_mad_u32_u24 v{t+6}, v{t+4}, v{t+8}, v{t+5}")
    e(f"v_lshl_add_u32 v{t+6}, v{t+3}, 5, v{t+6}")
    e(f"v_xor_b32 v{t+4}, 1, v{t+4}")
    e(f"v_mad_u32_u24 v{t+5}, v{t+4}, v{t+8}, v{t+5}")
    e(f"v_lshlrev_b32 v{t+3}, 5, v{t+3}")
    e(f"v_sub_u32 v{t+5}, v{t+5}, v{t+3}")
    e("s_waitcnt vmcnt(0) lgkmcnt(0)")
    stamp(5)
    e("s_barrier")
    stamp(6)
    R = V_ACC
    Y = V_ST
    for b in range(2):
        for w in range(3):
            for hh in range(2):
                e(f"ds_read_b128 {vr(R+(b*3+w)*8+4*hh,4)}, v{t+2} offset:{w*64*PP + b*128 + hh*16}")
        if b == 0:
            e(f"ds_read_b128 {vr(Y,4)}, v{t+6}")
            e(f"ds_read_b128 {vr(Y+4,4)}, v{t+6} offset:16")
    e("s_waitcnt lgkmcnt(6)")
    for k in range(8):
        e(f"ds_read_b32 v{Y+8+k}, v{t+5} offset:{(32-k)*4}")
    U = V_ST + 16
    for b in range(2):
        u = U + b*32; p0 = R + b*24
        for k in range(4):
            e(f"v_lshlrev_b32 v{u+2*k}, 16, v{V_B2+4*b+k}")
            e(f"v_and_b32 v{u+2*k+1}, 0xffff0000, v{V_B2+4*b+k}")
        if b == 1: e("s_waitcnt lgkmcnt(8)")
        for k in range(4):
            e(f"v_pk_add_f32 {vr(p0+2*k,2)}, {vr(p0+2*k,2)}, {vr(p0+8+2*k,2)}")
            e(f"v_pk_add_f32 {vr(u+2*k,2)}, {vr(u+2*k,2)}, {vr(p0+16+2*k,2)}")
        for k in range(4):
            e(f"v_pk_add_f32 {vr(u+2*k,2)}, {vr(u+2*k,2)}, {vr(p0+2*k,2)}")
        for k in range(8): e(f"v_mul_f32 v{u+8+k}, 0xbfb8aa3b, v{u+k}")
        for k in range(8): e(f"v_exp_f32 v{u+8+k}, v{u+8+k}")
        for k in range(4):
            e(f"v_lshlrev_b32 v{u+16+2*k}, 16, v{V_XV+4*b+k}")
            e(f"v_and_b32 v{u+16+2*k+1}, 0xffff0000, v{V_XV+4*b+k}")
        for k in range(8): e(f"v_add_f32 v{u+8+k}, 1.0, v{u+8+k}")
        for k in range(8): e(f"v_rcp_f32 v{u+8+k}, v{u+8+k}")
        if b == 1: e("s_waitcnt lgkmcnt(0)")
        else: e("s_nop 0")
        for k in range(4):
            e(f"v_pk_mul_f32 {vr(u+2*k,2)}, {vr(u+2*k,2)}, {vr(u+8+2*k,2)}")
        for k in range(4):
            e(f"v_pk_fma_f32 {vr(u+2*k,2)}, {vr(Y+8*b+2*k,2)}, {vr(u+2*k,2)}, {vr(u+16+2*k,2)}")
        for k in range(4):
            e(f"v_cvt_pk_bf16_f32 v{u+24+k}, v{u+2*k}, v{u+2*k+1}")
        e(f"buffer_store_dwordx4 {vr(u+24,4)}, v{V_XO}, s[60:63], s{64+b} offen{fl(ST_OUT)}")
    if PROF: e("s_waitcnt vmcnt(0)")
    stamp(7)
    prof_end(1, 1)
    lab("K2_END")
    e("s_endpgm")
    lab("CODE_END")

def kd(name, nvgpr, acc_off):
    return f""".amdhsa_kernel {name}
  .amdhsa_next_free_vgpr {nvgpr}
  .amdhsa_next_free_sgpr 102
  .amdhsa_accum_offset {acc_off}
  .amdhsa_group_segment_fixed_size 0
  .amdhsa_kernarg_size 104
  .amdhsa_user_sgpr_count 2
  .amdhsa_user_sgpr_kernarg_segment_ptr 1
  .amdhsa_system_sgpr_workgroup_id_x 1
.end_amdhsa_kernel
"""

def main(out):
    hdr = f"""; FNet (folded real 2-D DFT) * silu(squared-relu FFN) + residual, two launches.
; @launch kernel=k1_kernel grid=(256,1,1) block=(512,1,1) lds={K1_LDS}
; @launch kernel=k2_kernel grid=(256,1,1) block=(256,1,1) lds={K2_LDS}
.amdgcn_target "amdgcn-amd-amdhsa--gfx950"
.text
"""
    body = []
    for nm, fn in (("k1_kernel", gen_k1), ("k2_kernel", gen_k2)):
        L.clear()
        fn()
        body.append(f".globl {nm}\n.p2align 8\n.type {nm},@function\n" + "\n".join(L) + "\n")
    txt = hdr + "".join(body) + '.section .rodata,"a"\n.p2align 6\n' + kd("k1_kernel", 256, 256) + ".p2align 6\n" + kd("k2_kernel", 256+192, 256)
    open(out, "w").write(txt)

if __name__ == "__main__":
    main(sys.argv[1] if len(sys.argv) > 1 else f"cdna_kernels/{NAME}.s")
```

```python
import sys, os
NAME = "recurrent_scan__spectral_fnet__dense_activation_squared_relu__prompt"
L = []
def e(s): L.append("    " + s)
def lab(s): L.append(s + ":")
def nop(n):
    while n > 0:
        k = min(n, 16); e(f"s_nop {k-1}"); n -= k
def vr(b, n): return f"v[{b}:{b+n-1}]" if n > 1 else f"v{b}"
def ar(b, n): return f"a[{b}:{b+n-1}]" if n > 1 else f"a{b}"

PROF = int(os.environ.get("PROF", "0"))
OPT = dict(kv.split("=") for kv in os.environ.get("OPT", "").split(",") if kv)
def opt(k, d): return type(d)(OPT.get(k, d))
def stamp(k):
    if PROF: e(f"s_memtime s[{80+2*k}:{81+2*k}]")
def prof_begin():
    if PROF: e("s_memrealtime s[96:97]")
def prof_end(kidx, tmp):
    if not PROF: return
    e("s_memrealtime s[98:99]")
    e("s_waitcnt lgkmcnt(0)")
    e("s_mov_b32 s76, s26"); e("s_and_b32 s77, s27, 0xffff"); e("s_mov_b32 s78, 0x40000"); e("s_mov_b32 s79, 0x00020000")
    e("s_lshl_b32 s30, s2, 3"); e("s_add_u32 s30, s30, s54"); e("s_lshl_b32 s30, s30, 6"); e(f"s_add_u32 s30, s30, {kidx*131072}")
    e("s_mov_b64 exec, 1")
    e(f"v_mov_b32 v{tmp}, 0")
    for k in range(10):
        e(f"v_mov_b32 v{tmp+1}, s{80+2*k}")
        e(f"buffer_store_dword v{tmp+1}, v{tmp}, s[76:79], s30 offen offset:{4*k}")
        e("s_nop 1")

TILE_B = opt('tk', 57) * 1024
WS_H2 = 0
WS_W2 = 0x800000
WS_AT = 0xA00000
ASTR = 17 * 16384
WS_X512 = WS_AT + 4 * ASTR
WS_CNT = WS_X512 + 4096
WS_SIZE = WS_CNT + 4096

def code_warm(tag, rounds, tmp):
    if not opt("cw", 1): return
    e("s_getpc_b64 s[30:31]")
    lab(f"{tag}_PC")
    e(f"v_lshlrev_b32 v{tmp}, 7, v0")
    for r in range(rounds):
        if r: e(f"v_add_u32 v{tmp}, 0x8000, v{tmp}")
        e(f"v_min_u32 v{tmp+1}, CODE_END-{tag}_PC-4, v{tmp}")
        e(f"global_load_dword v0, v{tmp+1}, s[30:31]")
def load_ptrs():
    e("s_load_dwordx16 s[4:19], s[0:1], 0")
    e("s_load_dwordx8 s[20:27], s[0:1], 64")
    e("s_load_dwordx2 s[28:29], s[0:1], 96")
def srd(d, p, nbytes):
    e(f"s_mov_b32 s{d}, s{p}")
    e(f"s_and_b32 s{d+1}, s{p+1}, 0xffff")
    e(f"s_mov_b32 s{d+2}, {nbytes:#x}")
    e(f"s_mov_b32 s{d+3}, 0x00020000")

def quad_consts(vmem, vbase, vsgn, vspec, tmp):
    e(f"v_mov_b32 v{vbase}, 0x400")
    e(f"v_cmp_eq_u32 vcc, 0, v{vmem}")
    e(f"v_add_u32 v{tmp}, 1, v{vmem}")
    e(f"v_and_b32 v{tmp}, 2, v{tmp}")
    e(f"v_cndmask_b32 v{vbase}, v{vbase}, 0, vcc")
    e(f"v_sub_u32 v{vsgn}, 1, v{tmp}")
    e(f"v_cmp_eq_u32 vcc, 1, v{vmem}")
    e(f"v_mov_b32 v{tmp}, 0x800")
    e(f"v_and_b32 v{vspec}, 1, v{vmem}")
    e(f"v_cndmask_b32 v{vbase}, v{vbase}, v{tmp}, vcc")
    e(f"v_lshlrev_b32 v{vspec}, 10, v{vspec}")
    e(f"v_lshrrev_b32 v{tmp}, 1, v{vmem}")
    e(f"v_lshl_add_u32 v{vspec}, v{tmp}, 9, v{vspec}")

ST_H2 = opt("sth2", "sc1")
ST_W2 = opt("stw2", "sc1")
ST_AT = opt("stat", "sc1")
ST_OUT = opt("stout", "")
def fl(s): return (" " + s.replace("+", " ")) if s else ""

SLOT = 24576
NSL = 5
K1_WB = 3 * SLOT
K1_TR = K1_WB + 57344
K1_GEN = K1_WB + 65536
K1_Z = K1_GEN + 16384
K1_LDS = K1_Z + 2048

def gen_k1():
    SCH = [x.split(".") if x else [] for x in opt("sch", "s0.s1.s2/s3.s4/s5.t/s6/s7.b6/b0.b1.b2/b3.b4.b5.T.b7.U//").split("/")]
    assert len(SCH) == 9
    for k, l in enumerate(SCH):
        for x in l:
            if x[0] == "s": assert int(x[1]) < 5 or k >= int(x[1]) - 3
            if x[0] == "b": assert k >= {0:5,1:5,2:5,3:6,4:6,5:6,6:0,7:0}[int(x[1])]
    flat = sum(SCH, []); assert flat.index("t") < flat.index("T") < flat.index("b7") and flat[-1] == "U"
    lab("k1_kernel")
    e("s_cmp_ge_u32 s2, 256")
    e("s_cbranch_scc1 K1_END")
    prof_begin(); stamp(0)
    load_ptrs()
    e("s_and_b32 s78, s2, 1")
    e("s_and_b32 s52, s2, 6")
    e("s_bfe_u32 s55, s2, 0x10003")
    e("s_add_u32 s52, s52, s55")
    e("s_lshr_b32 s53, s2, 4")
    e("s_lshl_b32 s73, s52, 1")
    e("s_add_u32 s73, s73, s78")
    e("s_add_u32 s73, s73, s53")
    e("s_and_b32 s73, s73, 7")
    V_LANE, V_I, V_G = 1, 2, 3
    V_WA = 4
    V_XA = 8
    V_GA = 10
    V_L16 = 11
    V_ZG = 12
    V_ATO = 13
    t = 16
    R = 24
    V_RING = 32
    V_X = 56
    V_ACC = 184
    V_E = 240
    NR = 6; PF = 4
    def xreg(ks, T): return V_X + (ks*2+T)*4
    def soff(st): return (st % NSL)*SLOT - (K1_WB if st in (3, 4) else 0)
    e("v_lshrrev_b32 v1, 6, v0")
    e("v_and_b32 v2, 15, v0")
    e("v_readfirstlane_b32 s54, v1")
    e(f"v_and_b32 v{V_LANE}, 63, v0")
    code_warm("K1", 1, t)
    e(f"v_lshrrev_b32 v{V_G}, 4, v{V_LANE}")
    e("s_and_b32 s55, s54, 3")
    e("s_lshl_b32 s62, s55, 12")
    e("s_cmp_lt_u32 s54, 4")
    e("s_cbranch_scc1 K1_CONS")
    def xa_setup():
        e(f"v_lshrrev_b32 v{t}, 1, v{V_I}")
        e(f"v_xor_b32 v{t}, v{t}, v{V_G}")
        e(f"v_lshlrev_b32 v{t}, 4, v{t}")
        e(f"v_lshl_add_u32 v{t}, v{V_I}, 7, v{t}")
        e(f"v_add_u32 v{V_XA}, s62, v{t}")
        e(f"v_add_u32 v{V_XA}, 0x2000, v{V_XA}")
        e(f"v_xor_b32 v{V_XA+1}, 64, v{V_XA}")
    def wa_setup(js, add):
        e(f"v_lshrrev_b32 v{t}, 2, v{V_I}")
        e(f"v_and_b32 v{t+1}, 1, v{V_G}")
        e(f"v_lshrrev_b32 v{t+2}, 1, v{t}")
        e(f"v_lshl_add_u32 v{t+2}, v{t+1}, 1, v{t+2}")
        e(f"v_lshl_add_u32 v{t}, v{V_G}, 3, v{t}")
        e(f"v_lshlrev_b32 v{t}, 7, v{t}")
        e(f"v_lshl_add_u32 v{t}, v{t+2}, 5, v{t}")
        e(f"v_and_b32 v{t+1}, 3, v{V_I}")
        e(f"v_lshl_add_u32 v{t}, v{t+1}, 3, v{t}")
        if add: e(f"v_add_u32 v{t}, {add}, v{t}")
        for q, j in enumerate(js): e(f"v_xor_b32 v{V_WA+q}, {j<<5}, v{t}")
        e(f"v_lshlrev_b32 v{V_L16}, 4, v{V_LANE}")
        e(f"v_lshlrev_b32 v{V_ZG}, 4, v{V_G}")
        e(f"v_add_u32 v{V_ZG}, {K1_Z}, v{V_ZG}")
    def out_setup(jp0):
        e("s_lshl_b32 s60, s52, 4")
        e("s_lshr_b32 s61, s55, 1")
        e("s_lshl_b32 s61, s61, 3")
        e("s_add_u32 s60, s60, s61")
        e("s_lshl_b32 s61, s78, 2")
        e("s_add_u32 s60, s60, s61")
        e("s_and_b32 s61, s55, 1")
        e("s_lshl_b32 s61, s61, 1")
        e("s_add_u32 s60, s60, s61")
        e(f"s_mul_i32 s60, s60, {TILE_B}")
        e("s_lshl_b32 s61, s53, 12")
        e("s_add_u32 s60, s60, s61")
        if jp0: e(f"s_add_u32 s60, s60, {1024*jp0}")
        e(f"s_add_u32 s61, s60, {TILE_B}")
        e("s_or_b32 s63, s52, s55")
        e("s_or_b32 s63, s63, s78")
        e("s_cmp_eq_u32 s63, 0")
        e("s_cselect_b32 s76, 0xffff, 0")
        e("s_mov_b32 s77, 0")
        e("s_lshl_b32 s64, s78, 3")
        e("s_add_u32 s64, s64, s52")
        e("s_lshl_b32 s64, s64, 10")
        e("s_lshl_b32 s65, s55, 8")
        e("s_add_u32 s64, s64, s65")
        e(f"s_add_u32 s64, s64, {WS_AT:#x}")
        e("s_lshl_b32 s63, s55, 7")
        e("s_and_b32 s66, s53, 1")
        e("s_lshl_b32 s66, s66, 3")
        if jp0: e(f"s_add_u32 s66, s66, {2*jp0}")
        e("s_lshl_b32 s67, s66, 14")
        e("s_add_u32 s67, s67, s64")
        e("s_lshl_b32 s66, s66, 6")
        e(f"s_add_u32 s66, s66, {WS_X512:#x}")
        e(f"v_lshl_add_u32 v14, v{V_I}, 2, s66")
        e(f"v_and_b32 v{t+5}, 1, v{V_G}")
        e(f"v_mul_u32_u24 v{t+5}, {ASTR:#x}, v{t+5}")
        e(f"v_lshrrev_b32 v{t+6}, 1, v{V_G}")
        e(f"v_lshl_add_u32 v{t+5}, v{t+6}, 14, v{t+5}")
        e(f"v_lshl_add_u32 v{V_ATO}, v{V_I}, 4, v{t+5}")
        e(f"v_lshlrev_b32 v15, 2, v{V_I}")
        e(f"v_add_u32 v15, {K1_Z}, v15")
    if opt("hprio", 1): e("s_setprio 3")
    V_XO = 184; V_WO = 188; V_CA = 190; V_ZA = 191; V_ONES = 192; V_CS = 196; V_TO = 200; V_TA = 201
    h = 202
    V_TD = 216; V_D = 224
    e("s_lshl_b32 s56, s52, 6")
    e("s_add_u32 s56, s56, s78")
    e("s_lshl_b32 s57, s55, 4")
    e("s_add_u32 s56, s56, s57")
    e(f"v_bfe_u32 v{h}, v{V_LANE}, 3, 2")
    quad_consts(h, h+1, h+2, h+3, h+4)
    e(f"v_lshrrev_b32 v{h+4}, 5, v{V_LANE}")
    e(f"v_lshl_add_u32 v{h+4}, v{h+4}, 1, s56")
    e(f"v_and_b32 v{h+5}, 7, v{V_LANE}")
    e(f"v_xor_b32 v{h+5}, v{h+5}, v{V_G}")
    e(f"v_lshlrev_b32 v{h+5}, 4, v{h+5}")
    e(f"v_xor_b32 v{h+6}, 64, v{h+5}")
    for q in range(4):
        if q: e(f"v_add_u32 v{h+4}, 4, v{h+4}")
        e(f"v_mad_i32_i24 v{h+7}, v{h+2}, v{h+4}, v{h+1}")
        if q == 0:
            e(f"v_cmp_eq_u32 vcc, 0, v{h+4}")
            nop(2)
            e(f"v_cndmask_b32 v{h+7}, v{h+7}, v{h+3}, vcc")
        e(f"v_lshl_add_u32 v{V_XO+q}, v{h+7}, 10, v{h+5+(q&1)}")
    e(f"v_and_b32 v{h}, 7, v{V_LANE}")
    e(f"v_and_b32 v{h+1}, 1, v{V_G}")
    e(f"v_lshlrev_b32 v{h+1}, 1, v{h+1}")
    e(f"v_xor_b32 v{h}, v{h}, v{h+1}")
    e(f"v_lshlrev_b32 v{h}, 4, v{h}")
    e(f"v_xor_b32 v{h+1}, 64, v{h}")
    e(f"v_lshrrev_b32 v{h+2}, 3, v{V_LANE}")
    e("s_lshl_b32 s57, s55, 11")
    e("s_lshl_b32 s72, s73, 7")
    e("s_waitcnt lgkmcnt(0)")
    srd(32, 4, 2048*512*2)
    e("s_cmp_lt_u32 s53, 14")
    e("s_cbranch_scc0 K1_H_DSRC")
    srd(44, 16, 512*3584)
    e("s_mov_b32 s58, 3584")
    e("s_lshl_b32 s59, s53, 8")
    e("s_branch K1_H_SRC")
    lab("K1_H_DSRC")
    srd(44, 10, 512*1024)
    e("s_mov_b32 s58, 1024")
    e("s_sub_u32 s59, s53, 14")
    e("s_lshl_b32 s59, s59, 8")
    lab("K1_H_SRC")
    e(f"v_mad_u32_u24 v{V_WO}, v{h+2}, s58, v{h}")
    e(f"v_mad_u32_u24 v{V_WO+1}, v{h+2}, s58, v{h+1}")
    e("s_lshl_b32 s60, s55, 4")
    e("s_mul_i32 s60, s60, s58")
    e("s_add_u32 s60, s60, s59")
    e("s_add_u32 s61, s60, 128")
    e("s_lshl_b32 s63, s58, 3")
    e("s_lshr_b32 s59, s58, 1")
    VQ = []
    def vwait(tag):
        idx = max([i for i, x in enumerate(VQ) if x == tag], default=-1)
        if idx >= 0:
            e(f"s_waitcnt vmcnt({len(VQ) - 1 - idx})")
            del VQ[:idx+1]
    def S_ops(k):
        b = k % NSL
        def xop(q):
            def f():
                if q == 0:
                    e(f"s_add_u32 s74, s72, {k*128}")
                    e(f"s_and_b32 s74, s74, 1023")
                e(f"s_add_u32 m0, s62, {b*SLOT + 8192 + q*1024}")
                if q == 0: e("s_mul_i32 s75, s74, s59")
                elif q == 1: e("s_add_u32 s75, s75, s60")
                else: e("s_nop 0")
                e(f"buffer_load_dwordx4 v{V_XO+q}, s[32:35], s74 offen lds"); VQ.append(("st", k))
            return f
        def wop(q):
            def f():
                e(f"s_add_u32 m0, s57, {b*SLOT + q*1024}")
                e("s_nop 0" if q == 0 else "s_add_u32 s75, s75, s63")
                e(f"buffer_load_dwordx4 v{V_WO+q}, s[44:47], s75 offen lds"); VQ.append(("st", k))
            return f
        return [xop(0), xop(1), wop(0), xop(2), xop(3), wop(1)]
    def B_ops(g):
        ops = []
        for q in range(2):
            def f(g=g, q=q):
                if q == 0:
                    e(f"s_add_u32 s75, s72, {g*128}")
                    e(f"s_and_b32 s75, s75, 1023")
                    e("s_mul_i32 s75, s75, s59")
                e(f"s_add_u32 m0, s57, {K1_WB + g*8192 + q*1024}")
                e(f"s_add_u32 s75, s75, {'s61' if q == 0 else 's63'}")
                e(f"buffer_load_dwordx4 v{V_WO+q}, s[44:47], s75 offen lds"); VQ.append(("wb", 0))
            ops.append(f)
        return ops
    def t_ops():
        def f0():
            e(f"s_add_u32 m0, s57, {K1_TR}")
            e("s_add_u32 s70, s68, 16384")
            e(f"buffer_load_dwordx4 v{V_TO}, s[48:51], s68 offen lds"); VQ.append(("t", 0))
        def f1():
            e(f"s_add_u32 m0, s57, {K1_TR+1024}")
            e("s_nop 0")
            e(f"buffer_load_dwordx4 v{V_TO}, s[48:51], s70 offen lds"); VQ.append(("t", 0))
        return [f0, f1]
    def T_op():
        vwait(("t", 0))
        for m in range(2):
            for u in range(2):
                e(f"ds_read_b64_tr_b16 {vr(V_TD+4*m+2*u,2)}, v{V_TA} offset:{u*1024 + m*32}")
        e(f"s_add_u32 s70, s71, {TILE_B}")
        e("s_waitcnt lgkmcnt(0)")
    def U_op():
        e(f"v_lshlrev_b32 v{h+3}, 4, v{V_LANE}")
        e(f"buffer_store_dwordx4 {vr(V_TD,4)}, v{h+3}, s[36:39], s71 offen{fl(ST_W2)}"); VQ.append(("u", 0))
        e(f"buffer_store_dwordx4 {vr(V_TD+4,4)}, v{h+3}, s[36:39], s70 offen{fl(ST_W2)}"); VQ.append(("u", 0))
    def sched(k):
        ops = []
        for x in SCH[k]:
            if x[0] == "s": ops += S_ops(int(x[1]))
            elif x[0] == "b": ops += B_ops(int(x[1]))
            elif x == "t": ops += t_ops()
            elif x == "T": ops.append(T_op)
            else: ops.append(U_op)
        return ops
    assert SCH[0][0] == "s0"
    SCH[0] = SCH[0][1:]
    for f in S_ops(0): f()
    srd(40, 18, 1792*2)
    e(f"v_lshlrev_b32 v{h+3}, 2, v{V_LANE}")
    e("s_lshl_b32 s71, s53, 8")
    e(f"buffer_load_dword v{h+10}, v{h+3}, s[40:43], s71 offen"); VQ.append(("st", 0))
    for f in sched(0): f()
    stamp(1)
    srd(36, 28, WS_SIZE)
    srd(48, 20, 1792*512*2)
    e("s_min_u32 s65, s2, 223")
    e("s_lshr_b32 s66, s65, 3")
    e("s_lshl_b32 s66, s66, 1")
    e("s_lshr_b32 s67, s55, 1")
    e("s_add_u32 s66, s66, s67")
    e("s_and_b32 s67, s65, 7")
    e("s_lshl_b32 s67, s67, 1")
    e("s_and_b32 s65, s55, 1")
    e("s_add_u32 s67, s67, s65")
    e("s_lshl_b32 s67, s67, 1")
    e(f"s_mul_i32 s71, s67, {TILE_B}")
    e("s_lshl_b32 s65, s66, 10")
    e("s_add_u32 s71, s71, s65")
    e(f"s_add_u32 s71, s71, {WS_W2:#x}")
    e("s_lshl_b32 s68, s66, 15")
    e("s_lshl_b32 s69, s67, 5")
    e("s_add_u32 s68, s68, s69")
    e(f"v_and_b32 v{h+1}, 3, v{V_LANE}")
    e(f"v_lshlrev_b32 v{h+1}, 4, v{h+1}")
    e(f"v_lshrrev_b32 v{h+2}, 2, v{V_LANE}")
    e(f"v_lshl_add_u32 v{V_TO}, v{h+2}, 10, v{h+1}")
    for k in range(4): e(f"v_mov_b32 v{V_ONES+k}, 0x3f803f80")
    e(f"v_lshrrev_b32 v{h}, 2, v{V_I}")
    e(f"v_and_b32 v{h+1}, 1, v{V_G}")
    e(f"v_lshrrev_b32 v{h+2}, 1, v{h}")
    e(f"v_lshl_add_u32 v{h+2}, v{h+1}, 1, v{h+2}")
    e(f"v_xor_b32 v{h+2}, s55, v{h+2}")
    e(f"v_lshl_add_u32 v{h}, v{h+1}, 3, v{h}")
    e(f"v_lshrrev_b32 v{h+1}, 1, v{V_G}")
    e(f"v_lshl_add_u32 v{h}, v{h+1}, 2, v{h}")
    e(f"v_lshlrev_b32 v{h}, 7, v{h}")
    e(f"v_lshl_add_u32 v{h}, v{h+2}, 5, v{h}")
    e(f"v_and_b32 v{h+1}, 3, v{V_I}")
    e(f"v_lshl_add_u32 v{V_CA}, v{h+1}, 3, v{h}")
    e(f"v_lshlrev_b32 v{h+5}, 3, v{V_LANE}")
    e(f"v_add_u32 v{h+5}, {K1_Z}, v{h+5}")
    e("s_lshl_b32 s64, s55, 6")
    e(f"s_add_u32 s64, s64, {K1_Z}")
    e(f"v_lshl_add_u32 v{V_ZA}, v{V_G}, 4, s64")
    e(f"v_lshrrev_b32 v{h+2}, 2, v{V_I}")
    e(f"v_lshl_add_u32 v{h+2}, v{V_G}, 2, v{h+2}")
    e(f"v_lshlrev_b32 v{h+2}, 6, v{h+2}")
    e(f"v_lshl_add_u32 v{h+2}, v{h+1}, 3, v{h+2}")
    e(f"s_add_u32 s64, s57, {K1_TR}")
    e(f"v_add_u32 v{V_TA}, s64, v{h+2}")
    xa_setup()
    wa_setup((2, 3), K1_WB)
    def cs_write(off):
        e("s_mov_b32 exec_lo, 0x10001"); e("s_mov_b32 exec_hi, 0x10001")
        e(f"ds_write_b128 v{V_ZA}, {vr(V_CS,4)} offset:{off}")
        e("s_mov_b64 exec, -1")
    def cs_mma(src, first):
        e(f"v_mfma_f32_16x16x32_bf16 {vr(V_CS,4)}, {vr(src,4)}, {vr(V_ONES,4)}, {'0' if first else vr(V_CS,4)}")
    for k in range(8):
        if k == 3 or k == 5:
            op = "v_add_u32" if k == 3 else "v_subrev_u32"
            for r_ in (V_CA, V_XA, V_XA+1): e(f"{op} v{r_}, {K1_WB}, v{r_}")
        vwait(("st", k))
        if k == 0:
            e(f"v_lshlrev_b32 v{h+6}, 16, v{h+10}")
            e(f"v_and_b32 v{h+7}, 0xffff0000, v{h+10}")
            e(f"ds_write_b64 v{h+5}, {vr(h+6,2)} offset:1536")
        e("s_barrier")
        if k == 0: stamp(2)
        if k == 7: stamp(3)
        dm = sched(k + 1)
        for f in dm[:1]: f()
        for u in range(4):
            e(f"ds_read_b64_tr_b16 {vr(V_D+2*u,2)}, v{V_CA} offset:{soff(k) + u*2048}")
        for f in dm[1:2]: f()
        for kk in range(2):
            for T in range(2):
                e(f"ds_read_b128 {vr(xreg(2*k+kk,T),4)}, v{V_XA+kk} offset:{soff(k) + T*2048}")
        for f in dm[2:4]: f()
        e("s_waitcnt lgkmcnt(4)")
        cs_mma(V_D, k == 0); cs_mma(V_D+4, False)
        for f in dm[4:]: f()
        if k < 7: e("s_waitcnt lgkmcnt(0)")
    e(f"v_add_u32 v{V_CA}, {K1_WB}, v{V_CA}")
    out_setup(3)
    cs_write(0)
    vwait(("wb", 0))
    e("s_waitcnt lgkmcnt(0)")
    stamp(4)
    e("s_barrier")
    for c in range(4):
        if c > 1: e("s_waitcnt lgkmcnt(8)")
        if c > 1:
            for u in range(4): cs_mma(V_D+(c&1)*16+4*u, c == 2 and u == 0)
        for u in range(8):
            if c == 1 and u == 7: e("s_waitcnt lgkmcnt(10)")
            e(f"ds_read_b64_tr_b16 {vr(V_D+(c&1)*16+2*u,2)}, v{V_CA} offset:{(c*8+u)*2048}")
    for c in range(2):
        e(f"s_waitcnt lgkmcnt({8*(1-c)})")
        for u in range(4): cs_mma(V_D+c*16+4*u, False)
    e(f"v_add_u32 v{V_GA}, 384, v{V_ZG}")
    e(f"v_add_u32 v{t+7}, 384, v15")
    nop(8)
    cs_write(256)
    e("s_waitcnt lgkmcnt(0)")
    stamp(5)
    e("s_barrier")
    if opt("hprio", 1): e("s_setprio 0")
    e("s_cmp_lt_u32 s53, 14")
    e("s_cbranch_scc1 K1_PB_F")
    e("s_branch K1_PB_D")

    lab("K1_CONS")
    G = V_X
    e(f"v_lshl_add_u32 v{t}, s53, 4, v{V_I}")
    e(f"v_cmp_eq_u32 vcc, 0, v{t}")
    e(f"v_mov_b32 v{t+1}, 0x100")
    e(f"v_mov_b32 v{t+3}, 0xbe800000")
    e(f"v_cndmask_b32 v{t}, v{t}, v{t+1}, vcc")
    e(f"v_cndmask_b32 v{t+3}, 0, v{t+3}, vcc")
    e(f"v_cvt_f32_u32 v{t}, v{t}")
    e(f"v_mul_f32 v{t}, 0x3b000000, v{t}")
    e("s_lshl_b32 s64, s55, 7")
    e("s_lshl_b32 s65, s73, 6")
    e("s_add_u32 s64, s64, s65")
    e(f"v_lshl_add_u32 v{t+1}, v{V_G}, 3, s64")
    e(f"v_cvt_f32_u32 v{t+1}, v{t+1}")
    e(f"v_fma_f32 v{G}, v{t+1}, v{t}, v{t+3}")
    e(f"v_fract_f32 v{G}, v{G}")
    for k in range(1, 8): e(f"v_add_f32 v{G+k}, v{G+k-1}, v{t}")
    e(f"v_mul_f32 v{t}, 0x42000000, v{t}")
    e(f"v_lshlrev_b32 v{V_GA}, 4, v{V_LANE}")
    e(f"v_add_u32 v{V_GA}, {K1_GEN}, v{V_GA}")
    e(f"v_add_u32 v{t+4}, s62, v{V_GA}")
    for ks in range(4):
        for k in range(8):
            e(f"v_sin_f32 v{G+8+k}, -v{G+k}")
            if ks < 3: e(f"v_add_f32 v{G+k}, v{G+k}, v{t}")
        if ks == 3: e("s_nop 0")
        for k in range(4): e(f"v_cvt_pk_bf16_f32 v{G+16+4*ks+k}, v{G+8+2*k}, v{G+8+2*k+1}")
        e(f"ds_write_b128 v{t+4}, {vr(G+16+4*ks,4)} offset:{ks*1024}")
    wa_setup((0, 1, 2, 3), 0)
    xa_setup()
    for k in range(4): e(f"v_mov_b32 v{V_E+k}, 0x3f803f80")
    out_setup(0)
    e("s_waitcnt lgkmcnt(0)")
    srd(36, 28, WS_SIZE)
    if opt("dyn", 0):
        e("s_or_b32 s68, s2, s54")
        e("s_cmp_eq_u32 s68, 0")
        e("s_cselect_b64 exec, 0xff, 0")
        e(f"v_lshlrev_b32 v{t}, 8, v{V_LANE}")
        e(f"v_mov_b32 v{t+1}, 0")
        e(f"v_add_u32 v{t}, {WS_CNT:#x}, v{t}")
        e(f"buffer_store_dword v{t+1}, v{t}, s[36:39], 0 offen sc1")
        e("s_mov_b64 exec, -1")
    TW = opt("tw", 7)
    if TW:
        e(f"v_lshl_add_u32 v{t}, s55, 6, v{V_LANE}")
    if TW & 1:
        e(f"v_mul_u32_u24 v{t+1}, 0xc000, v{t}")
        e(f"buffer_load_dword v0, v{t+1}, s[36:39], 0 offen")
    if TW & 2:
        srd(40, 24, 2048*512*2)
        e(f"v_lshlrev_b32 v{t+2}, 13, v{t}")
        e(f"buffer_load_dword v0, v{t+2}, s[40:43], 0 offen")
    if TW & 4:
        srd(44, 20, 1792*512*2)
        e(f"v_mul_u32_u24 v{t+3}, 0x1c00, v{t}")
        e(f"buffer_load_dword v0, v{t+3}, s[44:47], 0 offen")
    e("s_cmp_lt_u32 s53, 14")
    e("s_cbranch_scc0 K1_VAR_D")

    def acc(j, T):
        if j < 4: return V_ACC + (j*2+T)*4
        if j == 8: return V_ACC + 32 + T*4
        return V_ACC + 40 + ((j-4)*2+T)*4
    def variant(tag, ffn):
        lab(f"K1_VAR_{tag}")
        Q = []; pend = []
        def need(tags):
            assert not any(tg in tags for tg, _ in pend), (tags, pend)
            idx = max([i for i, x in enumerate(Q) if x in tags], default=-1)
            if idx >= 0:
                e(f"s_waitcnt lgkmcnt({len(Q)-1-idx})")
                del Q[:idx+1]
        def pop(n):
            for _ in range(min(n, len(pend))):
                tg, ins = pend.pop(0); e(ins); Q.append(tg)
            assert len(Q) <= 15
        def mm(ins):
            e(ins); pop(2 if len(pend) > 2 else 1)
        def mfma(j, ks, slot):
            for T in range(2):
                a_ = acc(j, T); xf = vr(xreg(ks, T), 4); c_ = "0" if ks == 0 else vr(a_, 4)
                if ffn and j < 8: mm(f"v_mfma_f32_16x16x32_bf16 {vr(a_,4)}, {vr(slot,4)}, {xf}, {c_}")
                else: mm(f"v_mfma_f32_16x16x32_bf16 {vr(a_,4)}, {xf}, {vr(slot,4)}, {c_}")
        def rdA(n):
            ks, jj = divmod(n, 5); st, kk = divmod(ks, 2)
            slot = V_RING + (n % NR)*4
            if jj < 4:
                off = soff(st) + kk*4096
                pend.append((("w", n), f"ds_read_b64_tr_b16 {vr(slot,2)}, v{V_WA+jj} offset:{off}"))
                pend.append((("w", n), f"ds_read_b64_tr_b16 {vr(slot+2,2)}, v{V_WA+jj} offset:{off+512}"))
            else:
                pend.append((("w", n), f"ds_read_b128 {vr(slot,4)}, v{V_GA} offset:{ks*1024}"))
        def rdX(ks):
            st, kk = divmod(ks, 2)
            for T in range(2):
                pend.append((("x", ks), f"ds_read_b128 {vr(xreg(ks,T),4)}, v{V_XA+kk} offset:{soff(st) + T*2048}"))
        def stage_start(n0):
            if n0 in (30, 50):
                op = "v_add_u32" if n0 == 30 else "v_subrev_u32"
                for r_ in (V_WA, V_WA+1, V_WA+2, V_WA+3, V_XA, V_XA+1): e(f"{op} v{r_}, {K1_WB}, v{r_}")
            e("s_barrier")
            rdX(n0 // 5)
            for n in range(n0, n0+PF): rdA(n)
        ST = V_ACC + 40
        stage_start(0); pop(10)
        stamp(2)
        for n in range(80):
            rem = n % 10; ks, jj = divmod(n, 5)
            if rem == 0: rdX(ks + 1)
            if rem + PF < 10: rdA(n + PF)
            if rem == 8 and n < 70:
                pop(99)
                e("s_waitcnt lgkmcnt(0)"); Q.clear()
                stage_start(n + 2)
            need([("w", n), ("x", ks)])
            mfma(jj if jj < 4 else 8, ks, V_RING + (n % NR)*4)
            if jj in (1, 3):
                T = jj >> 1; xf = vr(xreg(ks, T), 4)
                for a_, o1 in ((ST + 4*T, vr(V_E, 4)), (ST + 8 + 4*T, xf)):
                    mm(f"v_mfma_f32_16x16x32_bf16 {vr(a_,4)}, {o1}, {xf}, {'0' if ks == 0 else vr(a_,4)}")
        stamp(3)
        for j in range(2): e(f"v_add_u32 v{V_WA+j}, {K1_WB}, v{V_WA+j}")
        e(f"v_add_u32 v{t+1}, s63, v15")
        e("s_nop 0")
        for q in range(1, 4):
            e(f"s_mov_b32 s68, {0x11111111 << q:#x}"); e(f"s_mov_b32 s69, {0x11111111 << q:#x}")
            for T in range(2): e(f"v_cndmask_b32 v{ST+8+4*T}, v{ST+8+4*T}, v{ST+8+4*T+q}, s[68:69]")
        def both(f):
            for T in range(2): e(f(ST+4*T, ST+8+4*T, ST+4*T+1))
        both(lambda vS, vQ, tmp: f"v_mul_f32 v{vS}, 0x3b000000, v{vS}")
        both(lambda vS, vQ, tmp: f"v_mul_f32 v{vQ}, 0x3b000000, v{vQ}")
        both(lambda vS, vQ, tmp: f"v_fma_f32 v{vQ}, -v{vS}, v{vS}, v{vQ}")
        both(lambda vS, vQ, tmp: f"v_max_f32 v{vQ}, 0, v{vQ}")
        both(lambda vS, vQ, tmp: f"v_cvt_pk_bf16_f32 v{tmp}, v{vS}, v{vQ}")
        both(lambda vS, vQ, tmp: f"v_lshlrev_b32 v{vS}, 16, v{tmp}")
        both(lambda vS, vQ, tmp: f"v_and_b32 v{vQ}, 0xffff0000, v{tmp}")
        both(lambda vS, vQ, tmp: f"v_add_f32 v{vQ}, 0x3727c5ac, v{vQ}")
        both(lambda vS, vQ, tmp: f"v_cvt_pk_bf16_f32 v{tmp}, v{vQ}, v{vQ}")
        both(lambda vS, vQ, tmp: f"v_lshlrev_b32 v{vQ}, 16, v{tmp}")
        both(lambda vS, vQ, tmp: f"v_sqrt_f32 v{vQ}, v{vQ}")
        e("s_nop 0")
        both(lambda vS, vQ, tmp: f"v_cvt_pk_bf16_f32 v{tmp}, v{vQ}, v{vQ}")
        both(lambda vS, vQ, tmp: f"v_lshlrev_b32 v{vQ}, 16, v{tmp}")
        both(lambda vS, vQ, tmp: f"v_rcp_f32 v{vQ}, v{vQ}")
        e("s_mov_b32 exec_lo, 0x00f0000f"); e("s_mov_b32 exec_hi, 0xf0000f00")
        for T in range(2):
            e(f"ds_write_b32 v{t+1}, v{ST+4*T} offset:{512+64*T}")
            e(f"ds_write_b32 v{t+1}, v{ST+8+4*T} offset:{1024+64*T}")
        e("s_mov_b64 exec, -1")
        e("s_waitcnt lgkmcnt(0)")
        e("s_barrier")
        stamp(1)
        def rd_S(S, mean=True):
            r = [f"v_add_u32 v{t+4}, s63, v{V_ZG}"]
            for T in range(2):
                if mean: r.append(f"ds_read_b128 {vr(S+8*T,4)}, v{t+4} offset:{512+64*T}")
                r.append(f"ds_read_b128 {vr(S+8*T+4,4)}, v{t+4} offset:{1024+64*T}")
            return r
        def rd_R():
            return [f"v_add_u32 v{t+1}, s63, v15"] + [f"ds_read_b32 v{R+2*q}, v{t+1} offset:{512*(1+(q&1)) + 64*(q>>1)}" for q in range(4)]
        def rd_cb(base, jp, CB):
            r = []
            for hh in range(2):
                r.append(f"ds_read_b128 {vr(CB+4*hh,4)}, v{base} offset:{64*(2*jp+hh)}")
                r.append(f"ds_read_b128 {vr(CB+8+4*hh,4)}, v{base} offset:{1536+64*(2*jp+hh)}")
            return r
        def ffn_pair(j0, so, CB, O):
            for T in range(2):
                o = O + T*12
                for hh in range(2):
                    for k in range(2):
                        e(f"v_pk_fma_f32 {vr(o+4*hh+2*k,2)}, {vr(R+4*T,2)}, {vr(CB+4*hh+2*k,2)}, {vr(CB+8+4*hh+2*k,2)} op_sel_hi:[0,1,1] neg_lo:[1,0,0] neg_hi:[1,0,0]")
                for hh in range(2):
                    for k in range(2):
                        e(f"v_pk_fma_f32 {vr(o+4*hh+2*k,2)}, {vr(R+4*T+2,2)}, {vr(acc(j0+hh,T)+2*k,2)}, {vr(o+4*hh+2*k,2)} op_sel_hi:[0,1,1]")
                for k in range(8): e(f"v_mul_f32 v{o+k}, v{o+k}, |v{o+k}|")
                for k in range(4): e(f"v_cvt_pk_bf16_f32 v{o+8+k}, v{o+2*k}, v{o+2*k+1}")
                for k in range(4): e(f"v_pk_max_i16 v{o+8+k}, v{o+8+k}, 0")
                e(f"buffer_store_dwordx4 {vr(o+8,4)}, v{V_L16}, s[36:39], s{60+T} offen offset:{so}{fl(ST_H2)}")
        def xstore(tagj, vaddr, vdata):
            e("s_cmp_eq_u32 s76, 0")
            e(f"s_cbranch_scc1 K1_NOX_{tagj}")
            e("s_mov_b64 exec, s[76:77]")
            e(f"buffer_store_dword v{vdata}, v{vaddr}, s[36:39], 0 offen")
            e("s_mov_b64 exec, -1")
            lab(f"K1_NOX_{tagj}")
        def transpose4(o):
            nop(2)
            e(f"v_permlane32_swap_b32 v{o}, v{o+2}")
            e(f"v_permlane32_swap_b32 v{o+1}, v{o+3}")
            nop(2)
            e(f"v_permlane16_swap_b32 v{o}, v{o+1}")
            e(f"v_permlane16_swap_b32 v{o+2}, v{o+3}")
        def dft_pair(j0, S, CS, W):
            PL = W; MI = W + 2; VV = W + 4; o = W + 12
            for hh in range(2):
                j = j0 + hh
                for T in range(2):
                    a_ = acc(j, T)
                    for k in range(4): e(f"v_fma_f32 v{VV+k}, -v{S+8*T+k}, v{CS+hh}, v{a_+k}")
                    for k in range(4): e(f"v_mul_f32 v{VV+k}, v{VV+k}, v{S+8*T+4+k}")
                    e(f"v_add_f32 v{VV+4}, v{VV}, v{VV+1}")
                    e(f"v_add_f32 v{VV+5}, v{VV+2}, v{VV+3}")
                    e(f"v_add_f32 v{PL+T}, v{VV+4}, v{VV+5}")
                    e(f"v_sub_f32 v{MI+T}, v{VV+4}, v{VV+5}")
                    if T == 0:
                        e(f"v_sub_f32 v{VV+6}, v{VV}, v{VV+1}")
                        e(f"v_cndmask_b32 v{PL}, v{PL}, v{VV+4}, s[76:77]")
                        e(f"v_cndmask_b32 v{MI}, v{MI}, v{VV+6}, s[76:77]")
                        xstore(f"{tag}_{j}", 14, VV+5)
                        e(f"v_add_u32 v14, 64, v14")
                e(f"v_cvt_pk_bf16_f32 v{o+2*hh}, v{PL}, v{PL+1}")
                e(f"v_cvt_pk_bf16_f32 v{o+2*hh+1}, v{MI}, v{MI+1}")
            transpose4(o)
            e(f"buffer_store_dwordx4 {vr(o,4)}, v{V_ATO}, s[36:39], s67 offen{fl(ST_AT)}")
            e("s_add_u32 s67, s67, 0x8000")
        def gen_tile(S, W):
            PL = W; MI = W + 2; VV = W + 4; o = W + 12
            e(f"v_lshl_add_u32 v{t}, s53, 4, v{V_I}")
            e(f"v_cmp_eq_u32 vcc, 0, v{t}")
            e("s_lshl_b32 s66, s53, 14")
            e(f"s_add_u32 s66, s66, {3*ASTR:#x}")
            e(f"v_mov_b32 v{t+2}, {ASTR:#x}")
            e(f"v_mul_lo_u32 v{t+2}, v{t+2}, v{V_G}")
            e(f"v_sub_u32 v{t+1}, s66, v{t+2}")
            e(f"v_add_u32 v{t+2}, {16*16384:#x}, v{t+2}")
            e(f"v_cndmask_b32 v{t+1}, v{t+1}, v{t+2}, vcc")
            e(f"v_lshl_add_u32 v{t+1}, v{V_I}, 4, v{t+1}")
            e(f"v_mov_b32 v{t+2}, -1.0")
            e(f"v_cndmask_b32 v{t+2}, v{t+2}, 1.0, vcc")
            e(f"v_add_u32 v{t+6}, 288, v{t}")
            e(f"v_mov_b32 v{t+7}, 0x100")
            e(f"v_cndmask_b32 v{t+6}, v{t+6}, v{t+7}, vcc")
            e(f"v_lshlrev_b32 v{t+6}, 2, v{t+6}")
            e(f"v_add_u32 v{t+6}, {WS_X512:#x}, v{t+6}")
            for T in range(2):
                a_ = acc(8, T)
                for k in range(4): e(f"v_mul_f32 v{VV+k}, v{a_+k}, v{S+8*T+4+k}")
                e(f"v_fma_f32 v{VV+4}, v{t+2}, v{VV+1}, v{VV}")
                e(f"v_fma_f32 v{VV+5}, v{t+2}, v{VV+3}, v{VV+2}")
                e(f"v_add_f32 v{PL+T}, v{VV+4}, v{VV+5}")
                e(f"v_sub_f32 v{MI+T}, v{VV+4}, v{VV+5}")
                if T == 0:
                    e(f"v_sub_f32 v{VV+6}, v{VV}, v{VV+1}")
                    e(f"v_cndmask_b32 v{VV+6}, 0, v{VV+6}, vcc")
                    e(f"v_cndmask_b32 v{VV+7}, 0, v{VV+4}, vcc")
                    e(f"v_cndmask_b32 v{PL}, v{PL}, v{VV+7}, s[76:77]")
                    e(f"v_cndmask_b32 v{MI}, v{MI}, v{VV+6}, s[76:77]")
                    xstore(f"{tag}_g", t+6, VV+5)
            e(f"v_cvt_pk_bf16_f32 v{o}, v{PL}, v{PL+1}")
            e(f"v_cvt_pk_bf16_f32 v{o+1}, v{MI}, v{MI+1}")
            transpose4(o)
            e("s_mov_b32 exec_hi, 0")
            e(f"buffer_store_dwordx4 {vr(o,4)}, v{t+1}, s[36:39], s64 offen{fl(ST_AT)}")
            e("s_mov_b32 exec_hi, -1")
        B1 = V_ACC + 40
        if ffn:
            for x in rd_R()[1:] + rd_cb(V_ZG, 0, V_E) + rd_cb(V_ZG, 1, B1): e(x)
            e("s_waitcnt lgkmcnt(4)")
            e(f"v_mul_f32 v{R}, v{R}, v{R+2}")
            e(f"v_mul_f32 v{R+4}, v{R+4}, v{R+6}")
            ffn_pair(0, 0, V_E, V_RING)
            for x in rd_S(V_E, mean=False): e(x)
            e("s_waitcnt lgkmcnt(0)")
            e("s_barrier")
            gen_tile(V_E, V_RING)
            ffn_pair(2, 1024, B1, V_ACC)
            e("s_add_u32 s60, s60, 0x800"); e("s_add_u32 s61, s61, 0x800")
        else:
            for x in rd_S(V_E): e(x)
            for j in range(4): e(f"ds_read_b32 v{R+j}, v15 offset:{64*j}")
            e("s_waitcnt lgkmcnt(0)")
            dft_pair(0, V_E, R, V_RING)
            e("s_barrier")
            dft_pair(2, V_E, R+2, B1)
            gen_tile(V_E, V_RING)
        e(f"v_add_u32 v{V_GA}, 256, v{V_ZG}")
        e(f"v_add_u32 v{t+7}, 256, v15")
        stamp(4)
        lab(f"K1_PB_{tag}")
        def rdB(n):
            ks, hh = divmod(n, 2)
            slot = V_RING + (n % NR)*4
            pend.append((("w", n), f"ds_read_b64_tr_b16 {vr(slot,2)}, v{V_WA+hh} offset:{ks*4096}"))
            pend.append((("w", n), f"ds_read_b64_tr_b16 {vr(slot+2,2)}, v{V_WA+hh} offset:{ks*4096+512}"))
        Q.clear()
        PB = 5
        for n in range(PB): rdB(n)
        pop(99)
        ep = (rd_R() + rd_cb(V_GA, 0, V_E)) if ffn else (rd_S(V_E) + [f"ds_read_b32 v{R+j}, v{t+7} offset:{64*j}" for j in range(2)])
        e(ep[0])
        for n in range(32):
            ks, hh = divmod(n, 2)
            if n + PB < 32: rdB(n + PB)
            if n + PB == 32: pend.extend((("c", 0), x) for x in ep[1:])
            need([("w", n)])
            mfma(4 + hh, ks, V_RING + (n % NR)*4)
        assert not pend
        stamp(6)
        e("s_waitcnt lgkmcnt(0)")
        if ffn:
            e(f"v_mul_f32 v{R}, v{R}, v{R+2}")
            e(f"v_mul_f32 v{R+4}, v{R+4}, v{R+6}")
            nop(2)
            ffn_pair(4, 0, V_E, V_RING)
        else:
            nop(8)
            dft_pair(4, V_E, R, V_RING)
        if PROF: e("s_waitcnt vmcnt(0)")
        stamp(7)
        prof_end(0, 1)
        e("s_endpgm")
    variant("F", True)
    variant("D", False)
    lab("K1_END")
    e("s_endpgm")

PP = 272
K2_F = 0
K2_D = 3 * 64 * PP
DP = 208
DARR = 17 * DP
K2_LDS = K2_D + 4 * DARR

def gen_k2():
    DEPTH = opt("depth", 8); DD = opt("ddepth", 8); MAP2 = opt("map2", 0); TO = opt("to", 1)
    lab("k2_kernel")
    e("s_cmp_ge_u32 s2, 256")
    e("s_cbranch_scc1 K2_END")
    prof_begin(); stamp(0)
    load_ptrs()
    V_LANE, V_I, V_G = 1, 2, 3
    V_L16 = 4
    V_XO = 5
    V_XV = 6
    V_B2 = 14
    V_OA = 22
    t = 30
    V_ACC = 48
    V_ST = 120
    e("v_lshrrev_b32 v1, 6, v0")
    e("v_and_b32 v2, 15, v0")
    e("v_readfirstlane_b32 s54, v1")
    e(f"v_and_b32 v{V_LANE}, 63, v0")
    e(f"v_lshrrev_b32 v{V_G}, 4, v{V_LANE}")
    e(f"v_lshlrev_b32 v{V_L16}, 4, v{V_LANE}")
    code_warm("K2", 1, t)
    e("s_waitcnt lgkmcnt(0)")
    srd(36, 28, WS_SIZE)
    if opt("dyn", 0):
        e(f"v_mov_b32 v{t+2}, 0")
        e("s_getreg_b32 s40, hwreg(HW_REG_XCC_ID)")
        e("s_cmp_eq_u32 s54, 0")
        e("s_cbranch_scc0 K2_TPRE")
        e("s_mov_b32 s41, 0")
        e("s_mov_b64 exec, 1")
        lab("K2_TLOOP")
        e("s_and_b32 s40, s40, 7")
        e("s_lshl_b32 s42, s40, 8")
        e(f"s_add_u32 s42, s42, {WS_CNT:#x}")
        e(f"v_mov_b32 v{t}, s42")
        e(f"v_mov_b32 v{t+1}, 1")
        e(f"buffer_atomic_add v{t+1}, v{t}, s[36:39], 0 offen sc0 sc1")
        e("s_waitcnt vmcnt(0)")
        e(f"v_readfirstlane_b32 s42, v{t+1}")
        e("s_lshl_b32 s43, s42, 3")
        e("s_or_b32 s43, s43, s40")
        e("s_cmp_lt_u32 s42, 32")
        e("s_cbranch_scc1 K2_TDONE")
        e("s_add_u32 s40, s40, 1")
        e("s_add_u32 s41, s41, 1")
        e("s_cmp_lt_u32 s41, 8")
        e("s_cbranch_scc1 K2_TLOOP")
        e("s_mov_b32 s43, 0x100")
        lab("K2_TDONE")
        e(f"v_mov_b32 v{t+1}, s43")
        e(f"ds_write_b32 v{t+2}, v{t+1}")
        e("s_mov_b64 exec, -1")
        e("s_waitcnt lgkmcnt(0)")
        e("s_branch K2_TWAIT")
        lab("K2_TPRE")
        NW, NH = opt("pw", 0), opt("ph", 0)
        e("s_sub_u32 s41, s54, 1")
        e("s_mul_i32 s41, s41, 19456")
        e("s_lshr_b32 s42, s2, 3")
        if MAP2 == 0:
            e("s_mov_b32 s43, s42")
            e("s_and_b32 s44, s40, 6"); e("s_lshl_b32 s44, s44, 4")
            e("s_bfe_u32 s45, s42, 0x20002"); e("s_lshl_b32 s45, s45, 3"); e("s_add_u32 s44, s44, s45")
            e("s_lshr_b32 s46, s42, 4")
            wh, hh = 0, 1
        else:
            e("s_and_b32 s43, s42, 7"); e("s_and_b32 s45, s40, 2"); e("s_lshl_b32 s45, s45, 2"); e("s_add_u32 s43, s43, s45")
            e("s_sub_u32 s45, 31, s43"); e("s_bitcmp1_b32 s42, 3"); e("s_cselect_b32 s43, s45, s43")
            e("s_and_b32 s44, s40, 4"); e("s_lshl_b32 s44, s44, 4")
            e("s_lshr_b32 s45, s42, 2"); e("s_lshl_b32 s45, s45, 3"); e("s_add_u32 s44, s44, s45")
            e("s_lshr_b32 s46, s42, 4")
            wh, hh = 1, 0
        e("s_and_b32 s45, s40, 1"); e("s_lshl_b32 s45, s45, 2"); e("s_add_u32 s44, s44, s45")
        e("s_and_b32 s45, s42, 3"); e("s_add_u32 s44, s44, s45")
        e(f"s_mul_i32 s43, s43, {TILE_B}"); e("s_add_u32 s43, s43, s41"); e(f"s_add_u32 s43, s43, {WS_W2:#x}")
        e(f"s_mul_i32 s44, s44, {TILE_B}"); e("s_add_u32 s44, s44, s41")
        if MAP2: NW, NH = NH, NW
        e(f"s_mul_i32 s46, s46, {1024*(NW if wh else NH)}")
        e(f"s_add_u32 s{43 if wh else 44}, s{43 if wh else 44}, s46")
        for q in range(max(NW, NH)):
            if q == 4 or q == 8: e("s_add_u32 s43, s43, 0x1000"); e("s_add_u32 s44, s44, 0x1000")
            if q < NW: e(f"buffer_load_dwordx4 {vr(V_ACC,4)}, v{V_L16}, s[36:39], s43 offen offset:{1024*(q%4)}")
            if q < NH: e(f"buffer_load_dwordx4 {vr(V_ACC+4,4)}, v{V_L16}, s[36:39], s44 offen offset:{1024*(q%4)}")
        lab("K2_TWAIT")
        e("s_barrier")
        e(f"ds_read_b32 v{t+1}, v{t+2}")
        e("s_waitcnt lgkmcnt(0)")
        e(f"v_readfirstlane_b32 s2, v{t+1}")
        e("s_cmp_ge_u32 s2, 256")
        e("s_cbranch_scc1 K2_END")
    e("s_and_b32 s56, s2, 1")
    if MAP2 == 0:
        e("s_and_b32 s52, s2, 6")
        e("s_lshl_b32 s52, s52, 1")
        e("s_bfe_u32 s55, s2, 0x20003")
        e("s_add_u32 s52, s52, s55")
        e("s_lshr_b32 s53, s2, 5")
    else:
        e("s_and_b32 s52, s2, 4")
        e("s_lshl_b32 s52, s52, 1")
        e("s_bfe_u32 s55, s2, 0x30003")
        e("s_add_u32 s52, s52, s55")
        e("s_and_b32 s53, s2, 2")
        e("s_lshl_b32 s53, s53, 1")
        e("s_lshr_b32 s55, s2, 6")
        e("s_add_u32 s53, s53, s55")
    e("s_lshl_b32 s57, s52, 5")
    e("s_add_u32 s57, s57, s56")
    e("s_cmp_eq_u32 s54, 3")
    e("s_cbranch_scc1 K2_DFT")
    e("s_lshl_b32 s60, s52, 1")
    e("s_add_u32 s60, s60, s56")
    e(f"s_mul_i32 s60, s60, {4*TILE_B}")
    for n in range(4):
        e(f"s_add_u32 s61, s60, {n*TILE_B}")
        e(f"v_add_u32 v{V_OA+4+n}, s61, v{V_L16}")
    e(f"s_mul_i32 s62, s53, {2*TILE_B}")
    e(f"s_add_u32 s61, s62, {WS_W2:#x}")
    e(f"v_add_u32 v{V_OA}, s61, v{V_L16}")
    e(f"v_add_u32 v{V_OA+1}, {TILE_B:#x}, v{V_OA}")
    e(f"s_sub_u32 s61, {WS_W2 + 30*TILE_B:#x}, s62")
    e(f"v_add_u32 v{V_OA+2}, s61, v{V_L16}")
    e(f"v_add_u32 v{V_OA+3}, {TILE_B:#x}, v{V_OA+2}")
    e("s_mul_i32 s68, s54, 19456")
    KR = opt("kr", 1)
    if KR:
        if KR == 1: e("s_and_b32 s69, s2, 7")
        elif KR == 2: e("s_lshr_b32 s69, s2, 5")
        elif KR == 3: e("s_lshr_b32 s69, s2, 5"); e("s_add_u32 s69, s69, s2"); e("s_and_b32 s69, s69, 7")
        elif KR == 4: e("s_lshr_b32 s69, s2, 3"); e("s_add_u32 s69, s69, s2"); e("s_and_b32 s69, s69, 7")
        e(f"s_mul_i32 s69, s69, {opt('krm', 7)*1024}")
        e("s_add_u32 s68, s68, s69")
        e("s_sub_u32 s68, s68, 0x400")
    NS = 19
    def st(s, q):
        k = s % DEPTH
        return vr(V_ST + k*32 + q*4, 4) if k < 4 else ar((k-4)*32 + q*4, 4)
    def ld(s):
        if KR:
            e("s_add_u32 s68, s68, 0x400")
            e(f"s_sub_u32 s69, s68, {56*1024}")
            e(f"s_cmp_ge_u32 s68, {56*1024}")
            e("s_cselect_b32 s68, s69, s68")
        elif s and s % 4 == 0: e("s_add_u32 s68, s68, 0x1000")
        io = 0 if KR else 1024*(s%4)
        for m in range(4):
            e(f"buffer_load_dwordx4 {st(s,m)}, v{V_OA+m}, s[36:39], s68 offen offset:{io}")
            e(f"buffer_load_dwordx4 {st(s,4+m)}, v{V_OA+4+m}, s[36:39], s68 offen offset:{io}")
    def acc(m, n): return V_ACC + (m*4+n)*4
    def mm(s):
        for m in range(4):
            for n in range(4):
                c_ = "0" if s == 0 else vr(acc(m,n),4)
                e(f"v_mfma_f32_16x16x32_bf16 {vr(acc(m,n),4)}, {st(s,m)}, {st(s,4+n)}, {c_}")
    def fin_loads():
        srd(32, 4, 2048*512*2)
        srd(40, 22, 512*2)
        srd(60, 24, 2048*512*2)
        e(f"v_bfe_u32 v{t}, v{V_LANE}, 2, 2")
        quad_consts(t, t+1, t+2, t+3, t+4)
        e("s_lshl_b32 s66, s54, 3")
        e("s_add_u32 s66, s66, s57")
        e(f"v_lshl_add_u32 v{t+4}, v{V_G}, 1, s66")
        e(f"v_mad_i32_i24 v{t+5}, v{t+2}, v{t+4}, v{t+1}")
        e(f"v_cmp_eq_u32 vcc, 0, v{t+4}")
        e(f"v_and_b32 v{t+6}, 3, v{V_LANE}")
        e(f"v_lshlrev_b32 v{t+6}, 4, v{t+6}")
        e(f"v_cndmask_b32 v{t+5}, v{t+5}, v{t+3}, vcc")
        e(f"v_lshl_add_u32 v{V_XO}, v{t+5}, 10, v{t+6}")
        e("s_lshl_b32 s64, s53, 6")
        e(f"s_sub_u32 s65, {480*2}, s64")
        if TO: e(f"buffer_load_dword v0, v{V_XO}, s[60:63], s64 offen")
        e(f"buffer_load_dwordx4 {vr(V_XV,4)}, v{V_XO}, s[32:35], s64 offen")
        e(f"buffer_load_dwordx4 {vr(V_XV+4,4)}, v{V_XO}, s[32:35], s65 offen")
        e(f"buffer_load_dwordx4 {vr(V_B2,4)}, v{t+6}, s[40:43], s64 offen")
        e(f"buffer_load_dwordx4 {vr(V_B2+4,4)}, v{t+6}, s[40:43], s65 offen")
    for s in range(DEPTH - 1):
        ld(s)
        if s == 1: fin_loads()
    stamp(1)
    for s in range(NS):
        if s == 1: stamp(2)
        if s == 8: stamp(3)
        nl = s + DEPTH - 1
        extra = 4 + TO if s < 2 else 0
        if nl < NS - 1:
            ld(nl); e(f"s_waitcnt vmcnt({min(63, 8*(DEPTH-1) + extra)})")
        elif nl == NS - 1:
            e("s_cmp_eq_u32 s54, 2")
            e("s_cbranch_scc1 K2_W2TAIL")
            ld(nl); e(f"s_waitcnt vmcnt({8*(DEPTH-1)})")
        else:
            e(f"s_waitcnt vmcnt({8*(NS-1-s)})")
        mm(s)
    e("s_branch K2_FFN_DONE")
    lab("K2_W2TAIL")
    for s in range(NS - DEPTH, NS - 1):
        e(f"s_waitcnt vmcnt({8*(NS-2-s)})")
        mm(s)
    lab("K2_FFN_DONE")
    stamp(4)
    e(f"s_mul_i32 s66, s54, {64*PP}")
    e(f"v_mul_u32_u24 v{t}, {PP}, v{V_I}")
    e(f"v_lshl_add_u32 v{t}, v{V_G}, 4, v{t}")
    e(f"v_add_u32 v{t}, s66, v{t}")
    nop(6)
    for m in range(4):
        for n in range(4):
            e(f"ds_write_b128 v{t}, {vr(acc(m,n),4)} offset:{n*16*PP + m*64}")
    e("s_branch K2_FINAL")
    lab("K2_DFT")
    e(f"s_mul_i32 s68, s56, {ASTR:#x}")
    e("s_lshl_b32 s69, s53, 15")
    e("s_add_u32 s68, s68, s69")
    e(f"s_add_u32 s68, s68, {WS_AT:#x}")
    e(f"s_add_u32 s69, s68, {2*ASTR:#x}")
    e(f"v_add_u32 v{V_OA+1}, 0x4000, v{V_L16}")
    e(f"v_lshlrev_b32 v{V_OA+2}, 8, v{V_G}")
    e(f"v_add_u32 v{V_OA+2}, 0x8000, v{V_OA+2}")
    OFF = [V_L16, V_OA+1, V_OA+2]
    def dst(s, q):
        return ar((s % DD)*24 + q*4, 4)
    def dld(s):
        if s and s % 4 == 0:
            e("s_add_u32 s68, s68, 0x1000"); e("s_add_u32 s69, s69, 0x1000")
        for m in range(3):
            e(f"buffer_load_dwordx4 {dst(s,m)}, v{OFF[m]}, s[36:39], s68 offen offset:{1024*(s%4)}")
            e(f"buffer_load_dwordx4 {dst(s,3+m)}, v{OFF[m]}, s[36:39], s69 offen offset:{1024*(s%4)}")
    XA = V_ST; XB = XA + 12; CF = XB + 12
    XR = CF + 4
    TG = XR + 8
    FR = TG + 16
    for s in range(2): dld(s)
    e("s_lshl_b32 s70, s53, 7")
    e(f"s_add_u32 s70, s70, {WS_X512:#x}")
    e(f"v_lshlrev_b32 v{t+7}, 4, v{V_G}")
    for m in range(3):
        e(f"buffer_load_dwordx4 {vr(XA+4*m,4)}, v{t+7}, s[36:39], s70 offen offset:{64*m}")
        e(f"buffer_load_dwordx4 {vr(XB+4*m,4)}, v{t+7}, s[36:39], s70 offen offset:{288*4+64*m}")
    fin_loads()
    for s in range(2, DD - 1): dld(s)
    stamp(1)
    VT = t + 10; VINC = t + 11; VT1 = t + 12; CRE = t + 13; CIM = t + 14
    e(f"v_lshl_add_u32 v{VT}, v{V_I}, 1, s57")
    e(f"v_cvt_f32_u32 v{VT}, v{VT}")
    e(f"v_mul_f32 v{VINC}, 0x3d000000, v{VT}")
    e(f"v_mul_f32 v{VT1}, 0x3a000000, v{VT}")
    e(f"v_mul_f32 v{CRE}, 0x3e800000, v{VT}")
    e(f"v_sin_f32 v{CIM}, -v{CRE}")
    e(f"v_cos_f32 v{CRE}, v{CRE}")
    e(f"v_lshlrev_b32 v{t+8}, 4, v{V_G}")
    def init_args(sp):
        for k in range(8):
            e(f"v_add_u32 v{t+9}, {2*(k>>1) + 8*(k&1) + sp}, v{t+8}")
            e(f"v_cvt_f32_u32 v{t+9}, v{t+9}")
            e(f"v_mul_f32 v{XR+k}, v{t+9}, v{VT1}")
    for k in range(4): e(f"v_mov_b32 v{CF+k}, {'0xbf80bf80' if k & 1 else '0x3f803f80'}")
    def gen(s):
        if s % 8 == 0: init_args(s // 8)
        else:
            for k in range(8): e(f"v_add_f32 v{XR+k}, v{XR+k}, v{VINC}")
        for k in range(8):
            e(f"v_cos_f32 v{TG+k}, v{XR+k}")
            e(f"v_sin_f32 v{TG+8+k}, -v{XR+k}")
        e("s_nop 0")
        f = FR + (s % 2)*8
        for k in range(8): e(f"v_cvt_pk_bf16_f32 v{f+k}, v{TG+2*k}, v{TG+2*k+1}")
    def pacc(ph, sp, m): return V_ACC + ((ph*2+sp)*3+m)*4
    def sacc(ph, m): return V_ACC + 48 + (ph*3+m)*4
    def dmm(s):
        sp, h = divmod(s, 8); f = FR + (s % 2)*8
        for ph in range(2):
            for m in range(3):
                a_ = pacc(ph, sp, m); c_ = "0" if h == 0 else vr(a_, 4)
                e(f"v_mfma_f32_16x16x32_bf16 {vr(a_,4)}, {dst(s,3*ph+m)}, {vr(f+4*ph,4)}, {c_}")
        for m in range(3):
            a_ = sacc(sp, m); c_ = "0" if h == 0 else vr(a_, 4)
            e(f"v_mfma_f32_16x16x32_bf16 {vr(a_,4)}, {dst(s,3*sp+m)}, {vr(CF,4)}, {c_}")
    ND = 16
    gen(0)
    for s in range(ND):
        if s == 1: stamp(2)
        if s == 8: stamp(3)
        nl = s + DD - 1
        if nl < ND: dld(nl)
        if s + 1 < ND: gen(s + 1)
        else: nop(2)
        extra = 10 + TO if s < 2 else 0
        e(f"s_waitcnt vmcnt({min(63, 6*(min(nl, ND-1) - s) + extra)})")
        dmm(s)
    stamp(4)
    e("s_cmp_eq_u32 s53, 0")
    e("s_cselect_b32 s72, 0xffff, 0")
    e("s_mov_b32 s73, 0")
    e("s_cmp_eq_u32 s53, 7")
    e("s_cselect_b32 s74, 0xffff, 0")
    e("s_mov_b32 s75, 0")
    e(f"v_mul_u32_u24 v{t}, {DP}, v{V_I}")
    e(f"v_add3_u32 v{t}, v{t}, v{t+7}, 0")
    e(f"v_add_u32 v{t}, {K2_D}, v{t}")
    nop(6)
    O = TG
    for m in range(3):
        EP, OP, EQ, OQ = pacc(0,0,m), pacc(0,1,m), pacc(1,0,m), pacc(1,1,m)
        o = O + (m % 2)*16
        for k in range(4):
            e(f"v_fma_f32 v{EP+k}, v{CRE}, v{XA+4*m+k}, v{EP+k}")
            e(f"v_fma_f32 v{EQ+k}, v{CIM}, v{XB+4*m+k}, v{EQ+k}")
        if m != 1:
            msk = "s[72:73]" if m == 0 else "s[74:75]"
            e(f"v_cndmask_b32 v{EQ}, v{EQ}, 0, {msk}")
            e(f"v_cndmask_b32 v{OQ}, v{OQ}, 0, {msk}")
            e(f"v_cndmask_b32 v{sacc(1,m)}, v{sacc(1,m)}, 0, {msk}")
        for k in range(4):
            e(f"v_add_f32 v{o+k}, v{EP+k}, v{OP+k}")
            e(f"v_sub_f32 v{o+8+k}, v{EP+k}, v{OP+k}")
            e(f"v_add_f32 v{EP+k}, v{EQ+k}, v{OQ+k}")
            e(f"v_sub_f32 v{OP+k}, v{OQ+k}, v{EQ+k}")
        for k in range(4):
            e(f"v_add_f32 v{o+4+k}, v{o+k}, v{EP+k}")
            e(f"v_sub_f32 v{o+k}, v{o+k}, v{EP+k}")
            e(f"v_add_f32 v{o+12+k}, v{o+8+k}, v{OP+k}")
            e(f"v_sub_f32 v{o+8+k}, v{o+8+k}, v{OP+k}")
        for a in range(4):
            e(f"ds_write_b128 v{t}, {vr(o+4*a,4)} offset:{a*DARR + m*64}")
    for m in range(3):
        for k in range(4):
            e(f"v_add_f32 v{sacc(0,m)+k}, v{sacc(0,m)+k}, v{XA+4*m+k}")
            e(f"v_sub_f32 v{XA+4*m+k}, v{sacc(0,m)+k}, v{sacc(1,m)+k}")
            e(f"v_add_f32 v{sacc(0,m)+k}, v{sacc(0,m)+k}, v{sacc(1,m)+k}")
    e(f"v_cmp_eq_u32 vcc, 0, v{V_I}")
    e("s_and_saveexec_b64 s[76:77], vcc")
    for m in range(3):
        e(f"ds_write_b128 v{t}, {vr(sacc(0,m),4)} offset:{16*DP + m*64}")
        e(f"ds_write_b128 v{t}, {vr(XA+4*m,4)} offset:{DARR + 16*DP + m*64}")
    e("s_mov_b64 exec, s[76:77]")
    lab("K2_FINAL")
    e(f"v_lshrrev_b32 v{t+1}, 2, v{V_LANE}")
    e("s_lshl_b32 s66, s54, 4")
    e(f"v_add_u32 v{t+2}, s66, v{t+1}")
    e(f"v_mul_u32_u24 v{t+2}, {PP}, v{t+2}")
    e(f"v_and_b32 v{t+3}, 3, v{V_LANE}")
    e(f"v_lshl_add_u32 v{t+2}, v{t+3}, 5, v{t+2}")
    e(f"v_and_b32 v{t+4}, 3, v{t+1}")
    e("s_lshl_b32 s66, s54, 2")
    e(f"v_add_u32 v{t+5}, s66, v{V_G}")
    e(f"v_or_b32 v{t+6}, s57, v{t+5}")
    e(f"v_cmp_eq_u32 vcc, 0, v{t+6}")
    e(f"v_lshlrev_b32 v{t+8}, 1, v{t+4}")
    e(f"v_mov_b32 v{t+9}, 0x48")
    e(f"v_lshrrev_b32 v{t+9}, v{t+8}, v{t+9}")
    e(f"v_and_b32 v{t+9}, 3, v{t+9}")
    e(f"v_and_b32 v{t+8}, 2, v{t+4}")
    e(f"v_lshlrev_b32 v{t+8}, 3, v{t+8}")
    e(f"v_cndmask_b32 v{t+4}, v{t+4}, v{t+9}, vcc")
    e(f"v_cndmask_b32 v{t+5}, v{t+5}, v{t+8}, vcc")
    e(f"v_mul_u32_u24 v{t+5}, {DP}, v{t+5}")
    e(f"v_add_u32 v{t+5}, {K2_D}, v{t+5}")
    e(f"v_mov_b32 v{t+8}, {DARR}")
    e(f"v_mad_u32_u24 v{t+6}, v{t+4}, v{t+8}, v{t+5}")
    e(f"v_lshl_add_u32 v{t+6}, v{t+3}, 5, v{t+6}")
    e(f"v_xor_b32 v{t+4}, 1, v{t+4}")
    e(f"v_mad_u32_u24 v{t+5}, v{t+4}, v{t+8}, v{t+5}")
    e(f"v_lshlrev_b32 v{t+3}, 5, v{t+3}")
    e(f"v_sub_u32 v{t+5}, v{t+5}, v{t+3}")
    e("s_waitcnt vmcnt(0) lgkmcnt(0)")
    stamp(5)
    e("s_barrier")
    stamp(6)
    R = V_ACC
    Y = V_ST
    for b in range(2):
        for w in range(3):
            for hh in range(2):
                e(f"ds_read_b128 {vr(R+(b*3+w)*8+4*hh,4)}, v{t+2} offset:{w*64*PP + b*128 + hh*16}")
        if b == 0:
            e(f"ds_read_b128 {vr(Y,4)}, v{t+6}")
            e(f"ds_read_b128 {vr(Y+4,4)}, v{t+6} offset:16")
    e("s_waitcnt lgkmcnt(6)")
    for k in range(8):
        e(f"ds_read_b32 v{Y+8+k}, v{t+5} offset:{(32-k)*4}")
    U = V_ST + 16
    for b in range(2):
        u = U + b*32; p0 = R + b*24
        for k in range(4):
            e(f"v_lshlrev_b32 v{u+2*k}, 16, v{V_B2+4*b+k}")
            e(f"v_and_b32 v{u+2*k+1}, 0xffff0000, v{V_B2+4*b+k}")
        if b == 1: e("s_waitcnt lgkmcnt(8)")
        for k in range(4):
            e(f"v_pk_add_f32 {vr(p0+2*k,2)}, {vr(p0+2*k,2)}, {vr(p0+8+2*k,2)}")
            e(f"v_pk_add_f32 {vr(u+2*k,2)}, {vr(u+2*k,2)}, {vr(p0+16+2*k,2)}")
        for k in range(4):
            e(f"v_pk_add_f32 {vr(u+2*k,2)}, {vr(u+2*k,2)}, {vr(p0+2*k,2)}")
        for k in range(8): e(f"v_mul_f32 v{u+8+k}, 0xbfb8aa3b, v{u+k}")
        for k in range(8): e(f"v_exp_f32 v{u+8+k}, v{u+8+k}")
        for k in range(4):
            e(f"v_lshlrev_b32 v{u+16+2*k}, 16, v{V_XV+4*b+k}")
            e(f"v_and_b32 v{u+16+2*k+1}, 0xffff0000, v{V_XV+4*b+k}")
        for k in range(8): e(f"v_add_f32 v{u+8+k}, 1.0, v{u+8+k}")
        for k in range(8): e(f"v_rcp_f32 v{u+8+k}, v{u+8+k}")
        if b == 1: e("s_waitcnt lgkmcnt(0)")
        else: e("s_nop 0")
        for k in range(4):
            e(f"v_pk_mul_f32 {vr(u+2*k,2)}, {vr(u+2*k,2)}, {vr(u+8+2*k,2)}")
        for k in range(4):
            e(f"v_pk_fma_f32 {vr(u+2*k,2)}, {vr(Y+8*b+2*k,2)}, {vr(u+2*k,2)}, {vr(u+16+2*k,2)}")
        for k in range(4):
            e(f"v_cvt_pk_bf16_f32 v{u+24+k}, v{u+2*k}, v{u+2*k+1}")
        e(f"buffer_store_dwordx4 {vr(u+24,4)}, v{V_XO}, s[60:63], s{64+b} offen{fl(ST_OUT)}")
    if PROF: e("s_waitcnt vmcnt(0)")
    stamp(7)
    prof_end(1, 1)
    lab("K2_END")
    e("s_endpgm")
    lab("CODE_END")

def kd(name, nvgpr, acc_off):
    return f""".amdhsa_kernel {name}
  .amdhsa_next_free_vgpr {nvgpr}
  .amdhsa_next_free_sgpr 102
  .amdhsa_accum_offset {acc_off}
  .amdhsa_group_segment_fixed_size 0
  .amdhsa_kernarg_size 104
  .amdhsa_user_sgpr_count 2
  .amdhsa_user_sgpr_kernarg_segment_ptr 1
  .amdhsa_system_sgpr_workgroup_id_x 1
.end_amdhsa_kernel
"""

def main(out):
    hdr = f"""; FNet (folded real 2-D DFT) * silu(squared-relu FFN) + residual, two launches.
; @launch kernel=k1_kernel grid=(256,1,1) block=(512,1,1) lds={K1_LDS}
; @launch kernel=k2_kernel grid=(256,1,1) block=(256,1,1) lds={K2_LDS}
.amdgcn_target "amdgcn-amd-amdhsa--gfx950"
.text
"""
    body = []
    for nm, fn in (("k1_kernel", gen_k1), ("k2_kernel", gen_k2)):
        L.clear()
        fn()
        body.append(f".globl {nm}\n.p2align 8\n.type {nm},@function\n" + "\n".join(L) + "\n")
    txt = hdr + "".join(body) + '.section .rodata,"a"\n.p2align 6\n' + kd("k1_kernel", 256, 256) + ".p2align 6\n" + kd("k2_kernel", 256+192, 256)
    open(out, "w").write(txt)

if __name__ == "__main__":
    main(sys.argv[1] if len(sys.argv) > 1 else f"cdna_kernels/{NAME}.s")
```

```python
import sys, os
NAME = "recurrent_scan__spectral_fnet__dense_activation_squared_relu__prompt"
L = []
def e(s): L.append("    " + s)
def lab(s): L.append(s + ":")
def nop(n):
    while n > 0:
        k = min(n, 16); e(f"s_nop {k-1}"); n -= k
def vr(b, n): return f"v[{b}:{b+n-1}]" if n > 1 else f"v{b}"
def ar(b, n): return f"a[{b}:{b+n-1}]" if n > 1 else f"a{b}"

PROF = int(os.environ.get("PROF", "0"))
OPT = dict(kv.split("=") for kv in os.environ.get("OPT", "").split(",") if kv)
def opt(k, d): return type(d)(OPT.get(k, d))
PM = int(os.environ.get("PM", "0"))
def stamp(k, pm=0):
    if PROF and (pm == PM or k == 0): e(f"s_memtime s[{80+2*k}:{81+2*k}]")
def prof_begin():
    if PROF: e("s_memrealtime s[96:97]")
def prof_end(kidx, tmp):
    if not PROF: return
    e("s_memrealtime s[98:99]")
    e("s_waitcnt lgkmcnt(0)")
    e("s_mov_b32 s76, s26"); e("s_and_b32 s77, s27, 0xffff"); e("s_mov_b32 s78, 0x40000"); e("s_mov_b32 s79, 0x00020000")
    e("s_lshl_b32 s30, s2, 3"); e("s_add_u32 s30, s30, s54"); e("s_lshl_b32 s30, s30, 6"); e(f"s_add_u32 s30, s30, {kidx*131072}")
    e("s_mov_b64 exec, 1")
    e(f"v_mov_b32 v{tmp}, 0")
    for k in range(10):
        e(f"v_mov_b32 v{tmp+1}, s{80+2*k}")
        e(f"buffer_store_dword v{tmp+1}, v{tmp}, s[76:79], s30 offen offset:{4*k}")
        e("s_nop 1")

TILE_B = opt('tk', 57) * 1024
WS_H2 = 0
WS_W2 = 0x800000
WS_AT = 0xA00000
ASTR = 17 * 16384
WS_X512 = WS_AT + 4 * ASTR
WS_CNT = WS_X512 + 4096
WS_SIZE = WS_CNT + 4096

def code_warm(tag, rounds, tmp):
    if not opt("cw", 1): return
    e("s_getpc_b64 s[30:31]")
    lab(f"{tag}_PC")
    e(f"v_lshlrev_b32 v{tmp}, 7, v0")
    for r in range(rounds):
        if r: e(f"v_add_u32 v{tmp}, 0x8000, v{tmp}")
        e(f"v_min_u32 v{tmp+1}, CODE_END-{tag}_PC-4, v{tmp}")
        e(f"global_load_dword v0, v{tmp+1}, s[30:31]")
def load_ptrs():
    e("s_load_dwordx16 s[4:19], s[0:1], 0")
    e("s_load_dwordx8 s[20:27], s[0:1], 64")
    e("s_load_dwordx2 s[28:29], s[0:1], 96")
def srd(d, p, nbytes):
    e(f"s_mov_b32 s{d}, s{p}")
    e(f"s_and_b32 s{d+1}, s{p+1}, 0xffff")
    e(f"s_mov_b32 s{d+2}, {nbytes:#x}")
    e(f"s_mov_b32 s{d+3}, 0x00020000")

def quad_consts(vmem, vbase, vsgn, vspec, tmp):
    e(f"v_mov_b32 v{vbase}, 0x400")
    e(f"v_cmp_eq_u32 vcc, 0, v{vmem}")
    e(f"v_add_u32 v{tmp}, 1, v{vmem}")
    e(f"v_and_b32 v{tmp}, 2, v{tmp}")
    e(f"v_cndmask_b32 v{vbase}, v{vbase}, 0, vcc")
    e(f"v_sub_u32 v{vsgn}, 1, v{tmp}")
    e(f"v_cmp_eq_u32 vcc, 1, v{vmem}")
    e(f"v_mov_b32 v{tmp}, 0x800")
    e(f"v_and_b32 v{vspec}, 1, v{vmem}")
    e(f"v_cndmask_b32 v{vbase}, v{vbase}, v{tmp}, vcc")
    e(f"v_lshlrev_b32 v{vspec}, 10, v{vspec}")
    e(f"v_lshrrev_b32 v{tmp}, 1, v{vmem}")
    e(f"v_lshl_add_u32 v{vspec}, v{tmp}, 9, v{vspec}")

ST_H2 = opt("sth2", "sc1")
ST_W2 = opt("stw2", "sc1")
ST_AT = opt("stat", "sc1")
ST_OUT = opt("stout", "")
def fl(s): return (" " + s.replace("+", " ")) if s else ""

SLOT = 24576
NSL = 5
K1_WB = 3 * SLOT
K1_SP = 5 * SLOT
K1_TR = K1_SP + 24576
K1_Z = K1_SP + 32768
K1_LDS = K1_Z + 2048 + 512
def goff(g): return K1_SP + g*8192 if g < 4 else K1_WB + (g-4)*8192

def gen_k1():
    SCH = [x.split(".") if x else [] for x in opt("sch", "s0.s1.s2/s3.s4/t/s5/s6/s7.b0/b1.b2.T.b3.b4/b5.b6.b7.U/").split("/")]
    assert len(SCH) == 9
    for k, l in enumerate(SCH):
        for x in l:
            if x[0] == "s": assert int(x[1]) < 5 or k >= int(x[1]) - 2
            if x[0] == "b": assert k >= {0:0,1:0,2:0,3:0,4:6,5:6,6:6,7:7}[int(x[1])]
    flat = sum(SCH, []); assert flat.index("t") < flat.index("T") < flat.index("b3") and flat[-1] == "U"
    NP1 = opt("np1", 4)
    assert [x for x in flat if x[0] == "b"] == [f"b{i}" for i in range(8)]
    lab("k1_kernel")
    e("s_cmp_ge_u32 s2, 256")
    e("s_cbranch_scc1 K1_END")
    prof_begin(); stamp(0)
    load_ptrs()
    e("s_and_b32 s78, s2, 1")
    if opt("map1", 0) == 0:
        e("s_and_b32 s52, s2, 6")
        e("s_bfe_u32 s55, s2, 0x10003")
        e("s_add_u32 s52, s52, s55")
        e("s_lshr_b32 s53, s2, 4")
    elif opt("map1", 0) == 1:
        e("s_and_b32 s52, s2, 4")
        e("s_bfe_u32 s55, s2, 0x20003")
        e("s_add_u32 s52, s52, s55")
        e("s_and_b32 s53, s2, 2")
        e("s_lshl_b32 s53, s53, 2")
        e("s_lshr_b32 s55, s2, 5")
        e("s_add_u32 s53, s53, s55")
    else:
        e("s_bfe_u32 s52, s2, 0x30003")
        e("s_and_b32 s53, s2, 6")
        e("s_lshl_b32 s53, s53, 1")
        e("s_lshr_b32 s55, s2, 6")
        e("s_add_u32 s53, s53, s55")
    e("s_lshl_b32 s73, s52, 1")
    e("s_add_u32 s73, s73, s78")
    e("s_add_u32 s73, s73, s53")
    if opt("rh", 0): e("s_add_u32 s73, s52, s53")
    e(f"s_and_b32 s73, s73, {opt('rm', 7)}")
    if opt("rs", 0): e(f"s_lshl_b32 s73, s73, {opt('rs', 0)}")
    V_LANE, V_I, V_G = 1, 2, 3
    V_WA = 4
    V_XA = 8
    V_GA = 10
    V_L16 = 11
    V_ZG = 12
    V_ATO = 13
    t = 16
    R = 24
    V_RING = 32
    V_X = 56
    V_ACC = 184
    V_E = 240
    NR = 6; PF = 4
    def xreg(ks, T): return V_X + (ks*2+T)*4
    def soff(st): return (st % NSL)*SLOT - (K1_WB if st in (3, 4) else 0)
    e("v_lshrrev_b32 v1, 6, v0")
    e("v_and_b32 v2, 15, v0")
    e("v_readfirstlane_b32 s54, v1")
    e(f"v_and_b32 v{V_LANE}, 63, v0")
    code_warm("K1", 1, t)
    e(f"v_lshrrev_b32 v{V_G}, 4, v{V_LANE}")
    e("s_and_b32 s55, s54, 3")
    e("s_lshl_b32 s62, s55, 12")
    e("s_cmp_lt_u32 s54, 4")
    e("s_cbranch_scc1 K1_CONS")
    def xa_setup():
        e(f"v_lshrrev_b32 v{t}, 1, v{V_I}")
        e(f"v_xor_b32 v{t}, v{t}, v{V_G}")
        e(f"v_lshlrev_b32 v{t}, 4, v{t}")
        e(f"v_lshl_add_u32 v{t}, v{V_I}, 7, v{t}")
        e(f"v_add_u32 v{V_XA}, s62, v{t}")
        e(f"v_add_u32 v{V_XA}, 0x2000, v{V_XA}")
        e("s_and_b32 s64, s55, 1")
        e("s_lshl_b32 s64, s64, 6")
        e(f"v_xor_b32 v{V_XA}, s64, v{V_XA}")
        e(f"v_xor_b32 v{V_XA+1}, 64, v{V_XA}")
    def cs_add(src, off):
        e("s_mov_b64 exec, 0xffff")
        for q in range(2): e(f"ds_add_f32 v10, v{src+4*q} offset:{off+64*q}")
        e("s_mov_b64 exec, -1")
    def wa_setup(js, add):
        e(f"v_lshrrev_b32 v{t}, 2, v{V_I}")
        e(f"v_and_b32 v{t+1}, 1, v{V_G}")
        e(f"v_lshrrev_b32 v{t+2}, 1, v{t}")
        e(f"v_lshl_add_u32 v{t+2}, v{t+1}, 1, v{t+2}")
        e(f"v_lshl_add_u32 v{t}, v{V_G}, 3, v{t}")
        e(f"v_lshlrev_b32 v{t}, 7, v{t}")
        e(f"v_lshl_add_u32 v{t}, v{t+2}, 5, v{t}")
        e(f"v_and_b32 v{t+1}, 3, v{V_I}")
        e(f"v_lshl_add_u32 v{t}, v{t+1}, 3, v{t}")
        if add: e(f"v_add_u32 v{t}, {add}, v{t}")
        e("s_and_b32 s64, s55, 1")
        e("s_lshl_b32 s64, s64, 12")
        e("s_and_b32 s79, s55, 2")
        e("s_lshl_b32 s79, s79, 5")
        e("s_or_b32 s64, s64, s79")
        e("s_lshl_b32 s79, s79, 1")
        e(f"v_xor_b32 v{t}, s64, v{t}")
        for q, j in enumerate(js): e(f"v_xor_b32 v{V_WA+q}, {j<<5}, v{t}")
        e(f"v_lshlrev_b32 v{V_L16}, 4, v{V_LANE}")
        e(f"v_lshlrev_b32 v{V_ZG}, 4, v{V_G}")
        e(f"v_add_u32 v{V_ZG}, {K1_Z}, v{V_ZG}")
    def out_setup(jp0):
        e("s_lshl_b32 s60, s52, 4")
        e("s_lshr_b32 s61, s55, 1")
        e("s_lshl_b32 s61, s61, 3")
        e("s_add_u32 s60, s60, s61")
        e("s_lshl_b32 s61, s78, 2")
        e("s_add_u32 s60, s60, s61")
        e("s_and_b32 s61, s55, 1")
        e("s_lshl_b32 s61, s61, 1")
        e("s_add_u32 s60, s60, s61")
        e(f"s_mul_i32 s60, s60, {TILE_B}")
        e("s_lshl_b32 s61, s53, 12")
        e("s_add_u32 s60, s60, s61")
        if jp0: e(f"s_add_u32 s60, s60, {1024*jp0}")
        e("s_lshl_b32 s61, s79, 3")
        e("s_add_u32 s60, s60, s61")
        e(f"s_add_u32 s61, s60, {TILE_B}")
        e("s_or_b32 s63, s52, s55")
        e("s_or_b32 s63, s63, s78")
        e("s_cmp_eq_u32 s63, 0")
        e("s_cselect_b32 s76, 0xffff, 0")
        e("s_mov_b32 s77, 0")
        e("s_lshl_b32 s64, s78, 3")
        e("s_add_u32 s64, s64, s52")
        e("s_lshl_b32 s64, s64, 10")
        e("s_lshl_b32 s65, s55, 8")
        e("s_add_u32 s64, s64, s65")
        e(f"s_add_u32 s64, s64, {WS_AT:#x}")
        e("s_lshl_b32 s63, s55, 7")
        e("s_and_b32 s66, s53, 1")
        e("s_lshl_b32 s66, s66, 3")
        if jp0: e(f"s_add_u32 s66, s66, {2*jp0}")
        e("s_lshl_b32 s67, s66, 14")
        e("s_add_u32 s67, s67, s64")
        e("s_lshl_b32 s65, s79, 8")
        e("s_add_u32 s67, s67, s65")
        e("s_lshl_b32 s65, s79, 4")
        e("s_sub_u32 s65, 0x400, s65")
        e("s_lshl_b32 s66, s66, 6")
        e(f"s_add_u32 s66, s66, {WS_X512:#x}")
        e(f"v_lshl_add_u32 v14, v{V_I}, 2, s66")
        e(f"v_and_b32 v{t+5}, 1, v{V_G}")
        e(f"v_mul_u32_u24 v{t+5}, {ASTR:#x}, v{t+5}")
        e(f"v_lshrrev_b32 v{t+6}, 1, v{V_G}")
        e(f"v_lshl_add_u32 v{t+5}, v{t+6}, 14, v{t+5}")
        e(f"v_lshl_add_u32 v{V_ATO}, v{V_I}, 4, v{t+5}")
        e(f"v_lshlrev_b32 v15, 2, v{V_I}")
        e(f"v_add_u32 v15, {K1_Z}, v15")
        e(f"v_xor_b32 v10, s79, v15")
    if opt("hprio", 1): e("s_setprio 3")
    V_CS = 216; V_XO = 224; V_WO = 228; V_TO = 230; V_TA = 231; V_TD = 232; V_ONES = V_E
    h = 36
    e("s_lshl_b32 s56, s52, 6")
    e("s_add_u32 s56, s56, s78")
    e("s_lshl_b32 s57, s55, 4")
    e("s_add_u32 s56, s56, s57")
    e(f"v_bfe_u32 v{h}, v{V_LANE}, 3, 2")
    quad_consts(h, h+1, h+2, h+3, h+4)
    e(f"v_lshrrev_b32 v{h+4}, 5, v{V_LANE}")
    e(f"v_lshl_add_u32 v{h+4}, v{h+4}, 1, s56")
    e(f"v_and_b32 v{h+5}, 7, v{V_LANE}")
    e(f"v_xor_b32 v{h+5}, v{h+5}, v{V_G}")
    e(f"v_lshlrev_b32 v{h+5}, 4, v{h+5}")
    e(f"v_xor_b32 v{h+6}, 64, v{h+5}")
    for q in range(4):
        if q: e(f"v_add_u32 v{h+4}, 4, v{h+4}")
        e(f"v_mad_i32_i24 v{h+7}, v{h+2}, v{h+4}, v{h+1}")
        if q == 0:
            e(f"v_cmp_eq_u32 vcc, 0, v{h+4}")
            nop(2)
            e(f"v_cndmask_b32 v{h+7}, v{h+7}, v{h+3}, vcc")
        e(f"v_lshl_add_u32 v{V_XO+q}, v{h+7}, 10, v{h+5+(q&1)}")
    e(f"v_and_b32 v{h}, 7, v{V_LANE}")
    e(f"v_and_b32 v{h+1}, 1, v{V_G}")
    e(f"v_lshlrev_b32 v{h+1}, 1, v{h+1}")
    e(f"v_xor_b32 v{h}, v{h}, v{h+1}")
    e(f"v_lshlrev_b32 v{h}, 4, v{h}")
    e(f"v_xor_b32 v{h+1}, 64, v{h}")
    e(f"v_lshrrev_b32 v{h+2}, 3, v{V_LANE}")
    e("s_lshl_b32 s57, s55, 11")
    e("s_lshl_b32 s72, s73, 7")
    e("s_waitcnt lgkmcnt(0)")
    srd(32, 4, 2048*512*2)
    e("s_cmp_lt_u32 s53, 14")
    e("s_cbranch_scc0 K1_H_DSRC")
    srd(44, 16, 512*3584)
    e("s_mov_b32 s58, 3584")
    e("s_lshl_b32 s59, s53, 8")
    e("s_branch K1_H_SRC")
    lab("K1_H_DSRC")
    srd(44, 10, 512*1024)
    e("s_mov_b32 s58, 1024")
    e("s_sub_u32 s59, s53, 14")
    e("s_lshl_b32 s59, s59, 8")
    lab("K1_H_SRC")
    e(f"v_mad_u32_u24 v{V_WO}, v{h+2}, s58, v{h}")
    e(f"v_mad_u32_u24 v{V_WO+1}, v{h+2}, s58, v{h+1}")
    e("s_lshl_b32 s60, s55, 4")
    e("s_mul_i32 s60, s60, s58")
    e("s_add_u32 s60, s60, s59")
    e("s_add_u32 s61, s60, 128")
    e("s_lshl_b32 s63, s58, 3")
    e("s_lshr_b32 s59, s58, 1")
    VQ = []
    def vwait(tag):
        idx = max([i for i, x in enumerate(VQ) if x == tag], default=-1)
        if idx >= 0:
            e(f"s_waitcnt vmcnt({len(VQ) - 1 - idx})")
            del VQ[:idx+1]
    def S_ops(k):
        b = k % NSL
        def xop(q):
            def f():
                if q == 0:
                    e(f"s_add_u32 s74, s72, {k*128}")
                    e(f"s_and_b32 s74, s74, 1023")
                e(f"s_add_u32 m0, s62, {b*SLOT + 8192 + q*1024}")
                if q == 0: e("s_mul_i32 s75, s74, s59")
                elif q == 1: e("s_add_u32 s75, s75, s60")
                else: e("s_nop 0")
                e(f"buffer_load_dwordx4 v{V_XO+q}, s[32:35], s74 offen lds"); VQ.append(("st", k))
            return f
        def wop(q):
            def f():
                e(f"s_add_u32 m0, s57, {b*SLOT + q*1024}")
                e("s_nop 0" if q == 0 else "s_add_u32 s75, s75, s63")
                e(f"buffer_load_dwordx4 v{V_WO+q}, s[44:47], s75 offen lds"); VQ.append(("st", k))
            return f
        return [xop(0), xop(1), wop(0), xop(2), xop(3), wop(1)]
    def B_ops(g):
        ops = []
        for q in range(2):
            def f(g=g, q=q):
                if q == 0:
                    e(f"s_add_u32 s75, s72, {g*128}")
                    e(f"s_and_b32 s75, s75, 1023")
                    e("s_mul_i32 s75, s75, s59")
                e(f"s_add_u32 m0, s57, {goff(g) + q*1024}")
                e(f"s_add_u32 s75, s75, {'s61' if q == 0 else 's63'}")
                e(f"buffer_load_dwordx4 v{V_WO+q}, s[44:47], s75 offen lds"); VQ.append(("wb", g))
            ops.append(f)
        return ops
    def t_ops():
        def f0():
            e(f"s_add_u32 m0, s57, {K1_TR}")
            e("s_add_u32 s70, s68, 16384")
            e(f"buffer_load_dwordx4 v{V_TO}, s[48:51], s68 offen lds"); VQ.append(("t", 0))
        def f1():
            e(f"s_add_u32 m0, s57, {K1_TR+1024}")
            e("s_nop 0")
            e(f"buffer_load_dwordx4 v{V_TO}, s[48:51], s70 offen lds"); VQ.append(("t", 0))
        return [f0, f1]
    def T_op():
        vwait(("t", 0))
        for m in range(2):
            for u in range(2):
                e(f"ds_read_b64_tr_b16 {vr(V_TD+4*m+2*u,2)}, v{V_TA} offset:{u*1024 + m*32}")
        e(f"s_add_u32 s70, s71, {TILE_B}")
        e("s_waitcnt lgkmcnt(0)")
    def U_op():
        e(f"buffer_store_dwordx4 {vr(V_TD,4)}, v{V_L16}, s[36:39], s71 offen{fl(ST_W2)}"); VQ.append(("u", 0))
        e(f"buffer_store_dwordx4 {vr(V_TD+4,4)}, v{V_L16}, s[36:39], s70 offen{fl(ST_W2)}"); VQ.append(("u", 0))
    def sched(k):
        ops = []
        for x in SCH[k]:
            if x[0] == "s": ops += S_ops(int(x[1]))
            elif x[0] == "b": ops += B_ops(int(x[1]))
            elif x == "t": ops += t_ops()
            elif x == "T": ops.append(T_op)
            elif x == "U": ops.append(U_op)
        return ops
    assert SCH[0][0] == "s0"
    SCH[0] = SCH[0][1:]
    for f in S_ops(0): f()
    srd(40, 18, 1792*2)
    e(f"v_lshlrev_b32 v{h+3}, 2, v{V_LANE}")
    e("s_lshl_b32 s71, s53, 8")
    e(f"buffer_load_dword v{h+10}, v{h+3}, s[40:43], s71 offen"); VQ.append(("st", 0))
    for f in sched(0): f()
    stamp(1)
    srd(36, 28, WS_SIZE)
    srd(48, 20, 1792*512*2)
    e("s_min_u32 s65, s2, 223")
    e("s_lshr_b32 s66, s65, 3")
    e("s_lshl_b32 s66, s66, 1")
    e("s_lshr_b32 s67, s55, 1")
    e("s_add_u32 s66, s66, s67")
    e("s_and_b32 s67, s65, 7")
    e("s_lshl_b32 s67, s67, 1")
    e("s_and_b32 s65, s55, 1")
    e("s_add_u32 s67, s67, s65")
    e("s_lshl_b32 s67, s67, 1")
    e(f"s_mul_i32 s71, s67, {TILE_B}")
    e("s_lshl_b32 s65, s66, 10")
    e("s_add_u32 s71, s71, s65")
    e(f"s_add_u32 s71, s71, {WS_W2:#x}")
    e("s_lshl_b32 s68, s66, 15")
    e("s_lshl_b32 s69, s67, 5")
    e("s_add_u32 s68, s68, s69")
    e(f"v_and_b32 v{h+1}, 3, v{V_LANE}")
    e(f"v_lshlrev_b32 v{h+1}, 4, v{h+1}")
    e(f"v_lshrrev_b32 v{h+2}, 2, v{V_LANE}")
    e(f"v_lshl_add_u32 v{V_TO}, v{h+2}, 10, v{h+1}")
    e(f"v_and_b32 v{h+1}, 3, v{V_I}")
    e(f"v_lshrrev_b32 v{h+2}, 2, v{V_I}")
    e(f"v_lshl_add_u32 v{h+2}, v{V_G}, 2, v{h+2}")
    e(f"v_lshlrev_b32 v{h+2}, 6, v{h+2}")
    e(f"v_lshl_add_u32 v{h+2}, v{h+1}, 3, v{h+2}")
    e(f"s_add_u32 s64, s57, {K1_TR}")
    e(f"v_add_u32 v{V_TA}, s64, v{h+2}")
    for k in range(4): e(f"v_mov_b32 v{V_ONES+k}, 0x3f803f80")
    e(f"v_lshlrev_b32 v{h+5}, 3, v{V_LANE}")
    e(f"v_add_u32 v{h+5}, {K1_Z}, v{h+5}")
    xa_setup()
    wa_setup((0, 1, 2, 3), K1_SP)
    ST = V_ACC
    def dots(k):
        for kk in range(2):
            for T in range(2):
                xf = vr(xreg(2*k+kk, T), 4)
                for a_, o1 in ((ST + 4*T, vr(V_ONES, 4)), (ST + 8 + 4*T, xf)):
                    e(f"v_mfma_f32_16x16x32_bf16 {vr(a_,4)}, {o1}, {xf}, {'0' if k + kk == 0 else vr(a_,4)}")
    for k in range(8):
        if k == 3 or k == 5:
            op = "v_add_u32" if k == 3 else "v_subrev_u32"
            for r_ in (V_XA, V_XA+1): e(f"{op} v{r_}, {K1_WB}, v{r_}")
        if k: stamp(k, 2)
        vwait(("st", k))
        if k: stamp(k, 1)
        if k == 0:
            e(f"v_lshlrev_b32 v{h+6}, 16, v{h+10}")
            e(f"v_and_b32 v{h+7}, 0xffff0000, v{h+10}")
            e(f"ds_write_b64 v{h+5}, {vr(h+6,2)} offset:1536")
            e(f"v_mov_b32 v{h+8}, 0"); e(f"v_mov_b32 v{h+9}, 0")
            e(f"ds_write_b64 v{h+5}, {vr(h+8,2)}")
            e(f"ds_write_b64 v{h+5}, {vr(h+8,2)} offset:2048")
        e("s_barrier")
        if k == 0: stamp(2)
        if k == 7: stamp(3)
        dm = sched(k + 1)
        for f in dm[:1]: f()
        for kk in range(2):
            for T in range(2):
                e(f"ds_read_b128 {vr(xreg(2*k+kk,T),4)}, v{V_XA+kk} offset:{soff(k) + T*2048}")
        for f in dm[1:]: f()
        e("s_waitcnt lgkmcnt(0)")
        dots(k)
    out_setup(2)
    e(f"v_add_u32 v{t+1}, s63, v15")
    for q in range(1, 4):
        e(f"s_mov_b32 s68, {0x11111111 << q:#x}"); e(f"s_mov_b32 s69, {0x11111111 << q:#x}")
        for T in range(2): e(f"v_cndmask_b32 v{ST+8+4*T}, v{ST+8+4*T}, v{ST+8+4*T+q}, s[68:69]")
    def both(f):
        for T in range(2): e(f(ST+4*T, ST+8+4*T, ST+4*T+1))
    both(lambda vS, vQ, tmp: f"v_mul_f32 v{vS}, 0x3b000000, v{vS}")
    both(lambda vS, vQ, tmp: f"v_mul_f32 v{vQ}, 0x3b000000, v{vQ}")
    both(lambda vS, vQ, tmp: f"v_fma_f32 v{vQ}, -v{vS}, v{vS}, v{vQ}")
    both(lambda vS, vQ, tmp: f"v_max_f32 v{vQ}, 0, v{vQ}")
    both(lambda vS, vQ, tmp: f"v_cvt_pk_bf16_f32 v{tmp}, v{vS}, v{vQ}")
    both(lambda vS, vQ, tmp: f"v_lshlrev_b32 v{vS}, 16, v{tmp}")
    both(lambda vS, vQ, tmp: f"v_and_b32 v{vQ}, 0xffff0000, v{tmp}")
    both(lambda vS, vQ, tmp: f"v_add_f32 v{vQ}, 0x3727c5ac, v{vQ}")
    both(lambda vS, vQ, tmp: f"v_cvt_pk_bf16_f32 v{tmp}, v{vQ}, v{vQ}")
    both(lambda vS, vQ, tmp: f"v_lshlrev_b32 v{vQ}, 16, v{tmp}")
    both(lambda vS, vQ, tmp: f"v_sqrt_f32 v{vQ}, v{vQ}")
    e("s_nop 0")
    both(lambda vS, vQ, tmp: f"v_cvt_pk_bf16_f32 v{tmp}, v{vQ}, v{vQ}")
    both(lambda vS, vQ, tmp: f"v_lshlrev_b32 v{vQ}, 16, v{tmp}")
    both(lambda vS, vQ, tmp: f"v_rcp_f32 v{vQ}, v{vQ}")
    e("s_nop 0")
    e("s_mov_b32 exec_lo, 0x00f0000f"); e("s_mov_b32 exec_hi, 0xf0000f00")
    for T in range(2):
        e(f"ds_write_b32 v{t+1}, v{ST+4*T} offset:{512+64*T}")
        e(f"ds_write_b32 v{t+1}, v{ST+8+4*T} offset:{1024+64*T}")
    e("s_mov_b64 exec, -1")
    for q in range(4): e(f"v_xor_b32 v{V_XO+q}, 0x1000, v{V_WA+q}")
    vwait(("wb", NP1 - 1))
    e("s_waitcnt lgkmcnt(0)")
    stamp(4)
    e("s_barrier")
    if opt("hprio", 1): e(f"s_setprio {opt('hp2', 0)}")
    e("s_cmp_lt_u32 s53, 14")
    e("s_cbranch_scc1 K1_PB_F")
    e("s_branch K1_PB_D")
    VQ_B8 = list(VQ)

    lab("K1_CONS")
    C_RING = 32; CNR = 8; C_X = 64; C_GEN = 88; C_CS = 152; G = 164; C_WA1 = 160
    e(f"v_lshl_add_u32 v{t}, s53, 4, v{V_I}")
    e(f"v_cmp_eq_u32 vcc, 0, v{t}")
    e(f"v_mov_b32 v{t+1}, 0x100")
    e(f"v_mov_b32 v{t+3}, 0xbe800000")
    e(f"v_cndmask_b32 v{t}, v{t}, v{t+1}, vcc")
    e(f"v_cndmask_b32 v{t+3}, 0, v{t+3}, vcc")
    e(f"v_cvt_f32_u32 v{t}, v{t}")
    e(f"v_mul_f32 v{t}, 0x3b000000, v{t}")
    e("s_and_b32 s65, s55, 1")
    e("s_lshl_b32 s64, s73, 1")
    e("s_add_u32 s64, s64, s65")
    e("s_lshl_b32 s64, s64, 5")
    e("s_cmp_eq_u32 s65, 0")
    e("s_cselect_b32 s65, 1.0, -1.0")
    e("s_cselect_b32 s66, 1.0, 0x40400000")
    e(f"v_lshl_add_u32 v{t+1}, v{V_G}, 3, s64")
    e(f"v_cvt_f32_u32 v{t+1}, v{t+1}")
    e(f"v_fma_f32 v{G}, v{t+1}, v{t}, v{t+3}")
    e(f"v_fract_f32 v{G}, v{G}")
    for k in range(1, 8): e(f"v_add_f32 v{G+k}, v{G+k-1}, v{t}")
    e(f"v_mul_f32 v{t}, 0x42000000, v{t}")
    e(f"v_fract_f32 v{t}, v{t}")
    e(f"v_mul_f32 v{t+1}, s66, v{t}")
    e(f"v_mul_f32 v{t}, s65, v{t}")
    for ks in range(16):
        for k in range(8):
            e(f"v_sin_f32 v{G+8+k}, -v{G+k}")
            if ks < 15: e(f"v_add_f32 v{G+k}, v{G+k}, v{t+(ks&1)}")
        if ks == 15: e("s_nop 0")
        for k in range(4): e(f"v_cvt_pk_bf16_f32 v{C_GEN+4*ks+k}, v{G+8+2*k}, v{G+8+2*k+1}")
    wa_setup((0, 1, 2, 3), 0)
    for q in range(4): e(f"v_xor_b32 v{C_WA1+q}, 0x1000, v{V_WA+q}")
    xa_setup()
    for k in range(4): e(f"v_mov_b32 v{V_E+k}, 0x3f803f80")
    out_setup(0)
    e("s_waitcnt lgkmcnt(0)")
    srd(36, 28, WS_SIZE)
    if opt("dyn", 0):
        e("s_or_b32 s72, s2, s54")
        e("s_cmp_eq_u32 s72, 0")
        e("s_cselect_b64 exec, 0xff, 0")
        e(f"v_lshlrev_b32 v{t}, 8, v{V_LANE}")
        e(f"v_mov_b32 v{t+1}, 0")
        e(f"v_add_u32 v{t}, {WS_CNT:#x}, v{t}")
        e(f"buffer_store_dword v{t+1}, v{t}, s[36:39], 0 offen sc1")
        e("s_mov_b64 exec, -1")
    e("s_cmp_lt_u32 s53, 14")
    e("s_cbranch_scc0 K1_VAR_D")

    def acc(j, T):
        if j < 4: return V_ACC + (j*2+T)*4
        if j == 8: return V_ACC + 32 + T*4
        return V_ACC + ((j-4)*2+T)*4
    def variant(tag, ffn):
        lab(f"K1_VAR_{tag}")
        Q = []; pend = []
        def need(tags):
            assert not any(tg in tags for tg, _ in pend), (tags, pend)
            idx = max([i for i, x in enumerate(Q) if x in tags], default=-1)
            if idx >= 0:
                e(f"s_waitcnt lgkmcnt({len(Q)-1-idx})")
                del Q[:idx+1]
        def pop(n):
            for _ in range(min(n, len(pend))):
                tg, ins = pend.pop(0); e(ins); Q.append(tg)
            assert len(Q) <= 15
        def mm(ins):
            e(ins); pop(2 if len(pend) > 2 else 1)
        def mfma(j, ks, slot, xr):
            for T in range(2):
                a_ = acc(j, T); xf = vr(xr(ks, T), 4); c_ = "0" if ks == 0 else vr(a_, 4)
                if ffn and j < 8: mm(f"v_mfma_f32_16x16x32_bf16 {vr(a_,4)}, {vr(slot,4)}, {xf}, {c_}")
                else: mm(f"v_mfma_f32_16x16x32_bf16 {vr(a_,4)}, {xf}, {vr(slot,4)}, {c_}")
        def cs_mma(jj, ks, slot, cs, ones):
            if jj < 2 and ks % 2 == 0:
                mm(f"v_mfma_f32_16x16x32_bf16 {vr(cs+4*jj,4)}, {vr(ones,4)}, {vr(slot,4)}, {'0' if ks == 0 else vr(cs+4*jj,4)}")
        PF = opt("pf", 5)
        def cx(ks, T): return C_X + ((ks % 3)*2 + T)*4
        def rdA(m):
            ks, jj = divmod(m, 4); st, kk = divmod(ks, 2)
            slot = C_RING + (m % CNR)*4
            off = soff(st); ad = (C_WA1 if kk else V_WA) + jj
            pend.append((("w", m), f"ds_read_b64_tr_b16 {vr(slot,2)}, v{ad} offset:{off}"))
            pend.append((("w", m), f"ds_read_b64_tr_b16 {vr(slot+2,2)}, v{ad} offset:{off+512}"))
        def rdX(ks):
            st, kk = divmod(ks, 2)
            for T in range(2):
                pend.append((("x", ks), f"ds_read_b128 {vr(cx(ks,T),4)}, v{V_XA+kk} offset:{soff(st) + T*2048}"))
        def issue(m):
            if m >= 64: return
            if m % 8 == 0:
                pop(99)
                if m in (24, 40):
                    op = "v_add_u32" if m == 24 else "v_subrev_u32"
                    for r_ in [V_WA+q for q in range(6)] + [C_WA1+q for q in range(4)]: e(f"{op} v{r_}, {K1_WB}, v{r_}")
                if m: stamp(m // 8, 1)
                e("s_barrier")
                if m: stamp(m // 8, 2)
            if m % 4 == 0: rdX(m // 4)
            rdA(m)
        for m in range(PF): issue(m); pop(99)
        stamp(2)
        for m in range(64):
            ks, jj = divmod(m, 4)
            issue(m + PF)
            need([("w", m), ("x", ks)])
            slot = C_RING + (m % CNR)*4
            mfma(jj, ks, slot, cx)
            cs_mma(jj, ks, slot, C_CS, V_E)
            if jj == 3: mfma(8, ks, C_GEN + 4*ks, cx)
        assert not pend
        stamp(3)
        e(f"v_add_u32 v{t+1}, s63, v15")
        cs_add(C_CS, 0)
        e("s_waitcnt lgkmcnt(0)")
        e("s_barrier")
        stamp(1)
        def rd_S(S, mean=True):
            r = [f"v_add_u32 v{t+4}, s63, v{V_ZG}"]
            for T in range(2):
                if mean: r.append(f"ds_read_b128 {vr(S+8*T,4)}, v{t+4} offset:{512+64*T}")
                r.append(f"ds_read_b128 {vr(S+8*T+4,4)}, v{t+4} offset:{1024+64*T}")
            return r
        def rd_R():
            return [f"v_add_u32 v{t+1}, s63, v15"] + [f"ds_read_b32 v{R+2*q}, v{t+1} offset:{512*(1+(q&1)) + 64*(q>>1)}" for q in range(4)]
        def rd_cb(jp, CB):
            base = t + 6 + (jp & 1)
            r = [f"v_xor_b32 v{t+7}, 0x80, v{t+6}" if jp & 1 else f"v_xor_b32 v{t+6}, s79, v{V_ZG}"]
            for hh in range(2):
                r.append(f"ds_read_b128 {vr(CB+4*hh,4)}, v{base} offset:{64*(2*(jp&2)+hh)}")
                r.append(f"ds_read_b128 {vr(CB+8+4*hh,4)}, v{base} offset:{1536+64*(2*(jp&2)+hh)}")
            return r
        def rd_cs(off):
            r = [f"v_xor_b32 v{t+7}, 0x80, v10"]
            return r + [f"ds_read_b32 v{R+j}, v{t+7 if j > 1 else 10} offset:{off + 64*(j&1)}" for j in range(4)]
        def ffn_pair(j0, so, CB, O):
            if so: e("s_add_u32 s60, s60, s65"); e("s_add_u32 s61, s61, s65")
            for T in range(2):
                o = O + T*12
                for hh in range(2):
                    for k in range(2):
                        e(f"v_pk_fma_f32 {vr(o+4*hh+2*k,2)}, {vr(R+4*T,2)}, {vr(CB+4*hh+2*k,2)}, {vr(CB+8+4*hh+2*k,2)} op_sel_hi:[0,1,1] neg_lo:[1,0,0] neg_hi:[1,0,0]")
                for hh in range(2):
                    for k in range(2):
                        e(f"v_pk_fma_f32 {vr(o+4*hh+2*k,2)}, {vr(R+4*T+2,2)}, {vr(acc(j0+hh,T)+2*k,2)}, {vr(o+4*hh+2*k,2)} op_sel_hi:[0,1,1]")
                for k in range(8): e(f"v_mul_f32 v{o+k}, v{o+k}, |v{o+k}|")
                for k in range(4): e(f"v_cvt_pk_bf16_f32 v{o+8+k}, v{o+2*k}, v{o+2*k+1}")
                for k in range(4): e(f"v_pk_max_i16 v{o+8+k}, v{o+8+k}, 0")
                e(f"buffer_store_dwordx4 {vr(o+8,4)}, v{V_L16}, s[36:39], s{60+T} offen{fl(ST_H2)}")
        def xstore(tagj, vaddr, vdata):
            e("s_cmp_eq_u32 s76, 0")
            e(f"s_cbranch_scc1 K1_NOX_{tagj}")
            e("s_mov_b64 exec, s[76:77]")
            e(f"buffer_store_dword v{vdata}, v{vaddr}, s[36:39], 0 offen")
            e("s_mov_b64 exec, -1")
            lab(f"K1_NOX_{tagj}")
        def transpose4(o):
            nop(2)
            e(f"v_permlane32_swap_b32 v{o}, v{o+2}")
            e(f"v_permlane32_swap_b32 v{o+1}, v{o+3}")
            nop(2)
            e(f"v_permlane16_swap_b32 v{o}, v{o+1}")
            e(f"v_permlane16_swap_b32 v{o+2}, v{o+3}")
        def dft_pair(j0, S, CS, W):
            PL = W; MI = W + 2; VV = W + 4; o = W + 12
            for hh in range(2):
                j = j0 + hh
                for T in range(2):
                    a_ = acc(j, T)
                    for k in range(4): e(f"v_fma_f32 v{VV+k}, -v{S+8*T+k}, v{CS+hh}, v{a_+k}")
                    for k in range(4): e(f"v_mul_f32 v{VV+k}, v{VV+k}, v{S+8*T+4+k}")
                    e(f"v_add_f32 v{VV+4}, v{VV}, v{VV+1}")
                    e(f"v_add_f32 v{VV+5}, v{VV+2}, v{VV+3}")
                    e(f"v_add_f32 v{PL+T}, v{VV+4}, v{VV+5}")
                    e(f"v_sub_f32 v{MI+T}, v{VV+4}, v{VV+5}")
                    if T == 0:
                        e(f"v_sub_f32 v{VV+6}, v{VV}, v{VV+1}")
                        e(f"v_cndmask_b32 v{PL}, v{PL}, v{VV+4}, s[76:77]")
                        e(f"v_cndmask_b32 v{MI}, v{MI}, v{VV+6}, s[76:77]")
                        xstore(f"{tag}_{j}", 14, VV+5)
                        e(f"v_add_u32 v14, 64, v14")
                e(f"v_cvt_pk_bf16_f32 v{o+2*hh}, v{PL}, v{PL+1}")
                e(f"v_cvt_pk_bf16_f32 v{o+2*hh+1}, v{MI}, v{MI+1}")
            transpose4(o)
            e(f"buffer_store_dwordx4 {vr(o,4)}, v{V_ATO}, s[36:39], s67 offen{fl(ST_AT)}")
            e("s_lshl_b32 s66, s65, 5")
            e("s_add_u32 s67, s67, s66")
        def gen_tile(S, W):
            PL = W; MI = W + 2; VV = W + 4; o = W + 12
            e(f"v_lshl_add_u32 v{t}, s53, 4, v{V_I}")
            e(f"v_cmp_eq_u32 vcc, 0, v{t}")
            e("s_lshl_b32 s66, s53, 14")
            e(f"s_add_u32 s66, s66, {3*ASTR:#x}")
            e(f"v_mov_b32 v{t+2}, {ASTR:#x}")
            e(f"v_mul_lo_u32 v{t+2}, v{t+2}, v{V_G}")
            e(f"v_sub_u32 v{t+1}, s66, v{t+2}")
            e(f"v_add_u32 v{t+2}, {16*16384:#x}, v{t+2}")
            e(f"v_cndmask_b32 v{t+1}, v{t+1}, v{t+2}, vcc")
            e(f"v_lshl_add_u32 v{t+1}, v{V_I}, 4, v{t+1}")
            e(f"v_mov_b32 v{t+2}, -1.0")
            e(f"v_cndmask_b32 v{t+2}, v{t+2}, 1.0, vcc")
            e(f"v_add_u32 v{t+6}, 288, v{t}")
            e(f"v_mov_b32 v{t+7}, 0x100")
            e(f"v_cndmask_b32 v{t+6}, v{t+6}, v{t+7}, vcc")
            e(f"v_lshlrev_b32 v{t+6}, 2, v{t+6}")
            e(f"v_add_u32 v{t+6}, {WS_X512:#x}, v{t+6}")
            for T in range(2):
                a_ = acc(8, T)
                for k in range(4): e(f"v_mul_f32 v{VV+k}, v{a_+k}, v{S+8*T+4+k}")
                e(f"v_fma_f32 v{VV+4}, v{t+2}, v{VV+1}, v{VV}")
                e(f"v_fma_f32 v{VV+5}, v{t+2}, v{VV+3}, v{VV+2}")
                e(f"v_add_f32 v{PL+T}, v{VV+4}, v{VV+5}")
                e(f"v_sub_f32 v{MI+T}, v{VV+4}, v{VV+5}")
                if T == 0:
                    e(f"v_sub_f32 v{VV+6}, v{VV}, v{VV+1}")
                    e(f"v_cndmask_b32 v{VV+6}, 0, v{VV+6}, vcc")
                    e(f"v_cndmask_b32 v{VV+7}, 0, v{VV+4}, vcc")
                    e(f"v_cndmask_b32 v{PL}, v{PL}, v{VV+7}, s[76:77]")
                    e(f"v_cndmask_b32 v{MI}, v{MI}, v{VV+6}, s[76:77]")
                    xstore(f"{tag}_g", t+6, VV+5)
            e(f"v_cvt_pk_bf16_f32 v{o}, v{PL}, v{PL+1}")
            e(f"v_cvt_pk_bf16_f32 v{o+1}, v{MI}, v{MI+1}")
            transpose4(o)
            e("s_mov_b32 exec_hi, 0")
            e(f"buffer_store_dwordx4 {vr(o,4)}, v{t+1}, s[36:39], s64 offen{fl(ST_AT)}")
            e("s_mov_b32 exec_hi, -1")
        B1 = V_ACC + 40
        B9 = opt("b9", 1)
        def b9(pos):
            pass
        if ffn:
            for x in rd_R()[1:] + rd_cb(0, V_E) + rd_cb(1, B1) + rd_S(C_GEN, mean=False): e(x)
            e("s_waitcnt lgkmcnt(6)")
            e(f"v_mul_f32 v{R}, v{R}, v{R+2}")
            e(f"v_mul_f32 v{R+4}, v{R+4}, v{R+6}")
            ffn_pair(0, 0, V_E, V_RING)
            e("s_waitcnt lgkmcnt(0)")
            b9(1)
            ffn_pair(2, 1024, B1, C_X)
            b9(2)
            gen_tile(C_GEN, C_GEN + 16)
        else:
            for x in rd_S(V_E): e(x)
            for x in rd_cs(0): e(x)
            e("s_waitcnt lgkmcnt(0)")
            dft_pair(0, V_E, R, V_RING)
            b9(1)
            dft_pair(2, V_E, R+2, B1)
            b9(2)
            gen_tile(V_E, C_GEN)
        b9(3)
        stamp(4)
        if PROF: e("s_waitcnt vmcnt(0)")
        stamp(7)
        prof_end(0, 1)
        e("s_endpgm")
        lab(f"K1_PB_{tag}")
        VQ[:] = VQ_B8
        seq = [(ks, jj) for ks in range(8) for jj in range(4)] + [(ks, jj) for ks in range(8, 16) for jj in range(2)] \
            + [(ks, jj) for ks in range(8, 16) for jj in range(2, 4)]
        assert NP1 in (4, 8)
        def bslot(m):
            k = m % 9
            return V_RING + 4*k if k < 6 else V_WO + 4*(k - 6)
        def rdB(m):
            ks, jj = seq[m]
            slot = bslot(m)
            off = ((ks >> 1) % 4)*8192; ad = (V_XO if ks & 1 else V_WA) + jj
            pend.append((("w", m), f"ds_read_b64_tr_b16 {vr(slot,2)}, v{ad} offset:{off}"))
            pend.append((("w", m), f"ds_read_b64_tr_b16 {vr(slot+2,2)}, v{ad} offset:{off+512}"))
        def issueB(m):
            if m >= 64: return
            if m == 32:
                pop(99)
                for r_ in [V_WA+q for q in range(4)] + [V_XO+q for q in range(4)]: e(f"v_subrev_u32 v{r_}, {K1_SP - K1_WB}, v{r_}")
                if NP1 == 4:
                    stamp(5)
                    spin(0)
            rdB(m)
        def arrive(c):
            pop(99)
            e(f"v_mov_b32 v{t+2}, {K1_Z}"); e(f"v_mov_b32 v{t+3}, 1")
            e("s_mov_b64 exec, 1")
            e(f"ds_add_u32 v{t+2}, v{t+3} offset:{2048 + 64*c}"); Q.append(("a", c))
            e("s_mov_b64 exec, -1")
            assert len(Q) <= 15
        def spin(c):
            e("s_waitcnt lgkmcnt(8)")
            lab(f"K1_SPIN_{tag}_{c}")
            e(f"ds_read_b32 v{t+3}, v{t+2} offset:{2048 + 64*c}")
            e("s_waitcnt lgkmcnt(0)"); Q.clear()
            e(f"v_readfirstlane_b32 s72, v{t+3}")
            e("s_cmp_lt_u32 s72, 4")
            e(f"s_cbranch_scc1 K1_SPIN_{tag}_{c}")
        def capture(f):
            n0 = len(L); f(); cap = L[n0:]; del L[n0:]
            units = []; inside = False
            for x in cap:
                if inside: units[-1].append(x)
                else: units.append([x])
                if "s_cmp_eq_u32 s76, 0" in x: inside = True
                if x.startswith("K1_NOX"): inside = False
            return units
        Q.clear()
        PB = opt("pb", 7)
        for m in range(PB): issueB(m)
        pop(99)
        units = []
        for m in range(64):
            ks, jj = seq[m]
            if m == opt("a0", 18) and NP1 == 4:
                need([("w", m)])
                vwait(("wb", 7))
                arrive(0)
            if m == 47:
                pop(99); need([("w", m + 2)])
                cs_add(V_CS, 256); Q.extend([("a", 1)] * 2)
                arrive(1)
            if m == 49:
                pop(99); need([("w", m + 3)]); assert len(Q) <= 11
                for x in (rd_R() if ffn else rd_S(V_E)):
                    e(x)
                    if x.startswith("ds_"): Q.append(("c", 0))
                stamp(6)
                spin(1)
            if m == 49 or (m == 60 and ffn):
                for x in (rd_cb(3, V_X) if m == 60 else rd_cb(2, V_E) if ffn else rd_cs(256)):
                    e(x)
                    if x.startswith("ds_"): Q.append(("c", 0))
            issueB(m + PB)
            if m == 52:
                need([("c", 0)])
                if ffn:
                    e(f"v_mul_f32 v{R}, v{R}, v{R+2}")
                    e(f"v_mul_f32 v{R+4}, v{R+4}, v{R+6}")
                    units = capture(lambda: ffn_pair(4, 0, V_E, V_X + 16))
                else: units = capture(lambda: dft_pair(4, V_E, R, V_X + 16))
                per = (len(units) + 11) // 12
            need([("w", m)])
            slot = bslot(m)
            mfma(4 + jj, ks, slot, xreg)
            cs_mma(jj, ks, slot, V_CS, V_ONES)
            for u in units[:per if units else 0]: L.extend(u)
            del units[:per if units else 0]
        assert not pend and not units
        e("s_waitcnt lgkmcnt(0)")
        nop(6)
        if ffn: ffn_pair(6, 1024, V_X, V_X + 40)
        else: dft_pair(6, V_E, R+2, V_X + 40)
        if PROF: e("s_waitcnt vmcnt(0)")
        stamp(7)
        prof_end(0, 1)
        e("s_endpgm")
    variant("F", True)
    variant("D", False)
    lab("K1_END")
    e("s_endpgm")

PP = 272
K2_F = 0
K2_D = 3 * 64 * PP
DP = 208
DARR = 17 * DP
K2_LDS = K2_D + 4 * DARR

def gen_k2():
    DEPTH = opt("depth", 8); DD = opt("ddepth", 8); MAP2 = opt("map2", 0)
    lab("k2_kernel")
    e("s_cmp_ge_u32 s2, 256")
    e("s_cbranch_scc1 K2_END")
    prof_begin(); stamp(0)
    load_ptrs()
    V_LANE, V_I, V_G = 1, 2, 3
    V_L16 = 4
    V_XO = 5
    V_XV = 6
    V_B2 = 14
    V_OA = 22
    t = 30
    V_ACC = 48
    V_ST = 120
    e("v_lshrrev_b32 v1, 6, v0")
    e("v_and_b32 v2, 15, v0")
    e("v_readfirstlane_b32 s54, v1")
    e(f"v_and_b32 v{V_LANE}, 63, v0")
    e(f"v_lshrrev_b32 v{V_G}, 4, v{V_LANE}")
    e(f"v_lshlrev_b32 v{V_L16}, 4, v{V_LANE}")
    code_warm("K2", 1, t)
    e("s_waitcnt lgkmcnt(0)")
    srd(36, 28, WS_SIZE)
    if opt("dyn", 0):
        e(f"v_mov_b32 v{t+2}, 0")
        e("s_getreg_b32 s40, hwreg(HW_REG_XCC_ID)")
        e("s_cmp_eq_u32 s54, 0")
        e("s_cbranch_scc0 K2_TPRE")
        e("s_mov_b32 s41, 0")
        e("s_mov_b64 exec, 1")
        lab("K2_TLOOP")
        e("s_and_b32 s40, s40, 7")
        e("s_lshl_b32 s42, s40, 8")
        e(f"s_add_u32 s42, s42, {WS_CNT:#x}")
        e(f"v_mov_b32 v{t}, s42")
        e(f"v_mov_b32 v{t+1}, 1")
        e(f"buffer_atomic_add v{t+1}, v{t}, s[36:39], 0 offen sc0 sc1")
        e("s_waitcnt vmcnt(0)")
        e(f"v_readfirstlane_b32 s42, v{t+1}")
        e("s_lshl_b32 s43, s42, 3")
        e("s_or_b32 s43, s43, s40")
        e("s_cmp_lt_u32 s42, 32")
        e("s_cbranch_scc1 K2_TDONE")
        e("s_add_u32 s40, s40, 1")
        e("s_add_u32 s41, s41, 1")
        e("s_cmp_lt_u32 s41, 8")
        e("s_cbranch_scc1 K2_TLOOP")
        e("s_mov_b32 s43, 0x100")
        lab("K2_TDONE")
        e(f"v_mov_b32 v{t+1}, s43")
        e(f"ds_write_b32 v{t+2}, v{t+1}")
        e("s_mov_b64 exec, -1")
        e("s_waitcnt lgkmcnt(0)")
        e("s_branch K2_TWAIT")
        lab("K2_TPRE")
        NW, NH = opt("pw", 0), opt("ph", 0)
        e("s_sub_u32 s41, s54, 1")
        e("s_mul_i32 s41, s41, 19456")
        e("s_lshr_b32 s42, s2, 3")
        if MAP2 == 0:
            e("s_mov_b32 s43, s42")
            e("s_and_b32 s44, s40, 6"); e("s_lshl_b32 s44, s44, 4")
            e("s_bfe_u32 s45, s42, 0x20002"); e("s_lshl_b32 s45, s45, 3"); e("s_add_u32 s44, s44, s45")
            e("s_lshr_b32 s46, s42, 4")
            wh, hh = 0, 1
        else:
            e("s_and_b32 s43, s42, 7"); e("s_and_b32 s45, s40, 2"); e("s_lshl_b32 s45, s45, 2"); e("s_add_u32 s43, s43, s45")
            e("s_sub_u32 s45, 31, s43"); e("s_bitcmp1_b32 s42, 3"); e("s_cselect_b32 s43, s45, s43")
            e("s_and_b32 s44, s40, 4"); e("s_lshl_b32 s44, s44, 4")
            e("s_lshr_b32 s45, s42, 2"); e("s_lshl_b32 s45, s45, 3"); e("s_add_u32 s44, s44, s45")
            e("s_lshr_b32 s46, s42, 4")
            wh, hh = 1, 0
        e("s_and_b32 s45, s40, 1"); e("s_lshl_b32 s45, s45, 2"); e("s_add_u32 s44, s44, s45")
        e("s_and_b32 s45, s42, 3"); e("s_add_u32 s44, s44, s45")
        e(f"s_mul_i32 s43, s43, {TILE_B}"); e("s_add_u32 s43, s43, s41"); e(f"s_add_u32 s43, s43, {WS_W2:#x}")
        e(f"s_mul_i32 s44, s44, {TILE_B}"); e("s_add_u32 s44, s44, s41")
        if MAP2: NW, NH = NH, NW
        e(f"s_mul_i32 s46, s46, {1024*(NW if wh else NH)}")
        e(f"s_add_u32 s{43 if wh else 44}, s{43 if wh else 44}, s46")
        for q in range(max(NW, NH)):
            if q == 4 or q == 8: e("s_add_u32 s43, s43, 0x1000"); e("s_add_u32 s44, s44, 0x1000")
            if q < NW: e(f"buffer_load_dwordx4 {vr(V_ACC,4)}, v{V_L16}, s[36:39], s43 offen offset:{1024*(q%4)}")
            if q < NH: e(f"buffer_load_dwordx4 {vr(V_ACC+4,4)}, v{V_L16}, s[36:39], s44 offen offset:{1024*(q%4)}")
        lab("K2_TWAIT")
        e("s_barrier")
        e(f"ds_read_b32 v{t+1}, v{t+2}")
        e("s_waitcnt lgkmcnt(0)")
        e(f"v_readfirstlane_b32 s2, v{t+1}")
        e("s_cmp_ge_u32 s2, 256")
        e("s_cbranch_scc1 K2_END")
    e("s_and_b32 s56, s2, 1")
    if MAP2 == 0:
        e("s_and_b32 s52, s2, 6")
        e("s_lshl_b32 s52, s52, 1")
        e("s_bfe_u32 s55, s2, 0x20003")
        e("s_add_u32 s52, s52, s55")
        e("s_lshr_b32 s53, s2, 5")
    else:
        e("s_and_b32 s52, s2, 4")
        e("s_lshl_b32 s52, s52, 1")
        e("s_bfe_u32 s55, s2, 0x30003")
        e("s_add_u32 s52, s52, s55")
        e("s_and_b32 s53, s2, 2")
        e("s_lshl_b32 s53, s53, 1")
        e("s_lshr_b32 s55, s2, 6")
        e("s_add_u32 s53, s53, s55")
    e("s_lshl_b32 s57, s52, 5")
    e("s_add_u32 s57, s57, s56")
    e("s_cmp_eq_u32 s54, 3")
    e("s_cbranch_scc1 K2_DFT")
    e("s_lshl_b32 s60, s52, 1")
    e("s_add_u32 s60, s60, s56")
    e(f"s_mul_i32 s60, s60, {4*TILE_B}")
    for n in range(4):
        e(f"s_add_u32 s61, s60, {n*TILE_B}")
        e(f"v_add_u32 v{V_OA+4+n}, s61, v{V_L16}")
    e(f"s_mul_i32 s62, s53, {2*TILE_B}")
    e(f"s_add_u32 s61, s62, {WS_W2:#x}")
    e(f"v_add_u32 v{V_OA}, s61, v{V_L16}")
    e(f"v_add_u32 v{V_OA+1}, {TILE_B:#x}, v{V_OA}")
    e(f"s_sub_u32 s61, {WS_W2 + 30*TILE_B:#x}, s62")
    e(f"v_add_u32 v{V_OA+2}, s61, v{V_L16}")
    e(f"v_add_u32 v{V_OA+3}, {TILE_B:#x}, v{V_OA+2}")
    e("s_mul_i32 s68, s54, 19456")
    KR = opt("kr", 1)
    if KR:
        if KR == 1: e("s_and_b32 s69, s2, 7")
        elif KR == 2: e("s_lshr_b32 s69, s2, 5")
        elif KR == 3: e("s_lshr_b32 s69, s2, 5"); e("s_add_u32 s69, s69, s2"); e("s_and_b32 s69, s69, 7")
        elif KR == 4: e("s_lshr_b32 s69, s2, 3"); e("s_add_u32 s69, s69, s2"); e("s_and_b32 s69, s69, 7")
        e(f"s_mul_i32 s69, s69, {opt('krm', 7)*1024}")
        e("s_add_u32 s68, s68, s69")
        e("s_sub_u32 s68, s68, 0x400")
    NS = 19
    def st(s, q):
        k = s % DEPTH
        return vr(V_ST + k*32 + q*4, 4) if k < 4 else ar((k-4)*32 + q*4, 4)
    def ld(s):
        if KR:
            e("s_add_u32 s68, s68, 0x400")
            e(f"s_sub_u32 s69, s68, {56*1024}")
            e(f"s_cmp_ge_u32 s68, {56*1024}")
            e("s_cselect_b32 s68, s69, s68")
        elif s and s % 4 == 0: e("s_add_u32 s68, s68, 0x1000")
        io = 0 if KR else 1024*(s%4)
        for m in range(4):
            e(f"buffer_load_dwordx4 {st(s,m)}, v{V_OA+m}, s[36:39], s68 offen offset:{io}")
            e(f"buffer_load_dwordx4 {st(s,4+m)}, v{V_OA+4+m}, s[36:39], s68 offen offset:{io}")
    def acc(m, n): return V_ACC + (m*4+n)*4
    def mm(s):
        for m in range(4):
            for n in range(4):
                c_ = "0" if s == 0 else vr(acc(m,n),4)
                e(f"v_mfma_f32_16x16x32_bf16 {vr(acc(m,n),4)}, {st(s,m)}, {st(s,4+n)}, {c_}")
    def fin_loads():
        srd(32, 4, 2048*512*2)
        srd(40, 22, 512*2)
        srd(60, 24, 2048*512*2)
        e(f"v_bfe_u32 v{t}, v{V_LANE}, 2, 2")
        quad_consts(t, t+1, t+2, t+3, t+4)
        e("s_lshl_b32 s66, s54, 3")
        e("s_add_u32 s66, s66, s57")
        e(f"v_lshl_add_u32 v{t+4}, v{V_G}, 1, s66")
        e(f"v_mad_i32_i24 v{t+5}, v{t+2}, v{t+4}, v{t+1}")
        e(f"v_cmp_eq_u32 vcc, 0, v{t+4}")
        e(f"v_and_b32 v{t+6}, 3, v{V_LANE}")
        e(f"v_lshlrev_b32 v{t+6}, 4, v{t+6}")
        e(f"v_cndmask_b32 v{t+5}, v{t+5}, v{t+3}, vcc")
        e(f"v_lshl_add_u32 v{V_XO}, v{t+5}, 10, v{t+6}")
        e("s_lshl_b32 s64, s53, 6")
        e(f"s_sub_u32 s65, {480*2}, s64")
        e(f"buffer_load_dwordx4 {vr(V_XV,4)}, v{V_XO}, s[32:35], s64 offen")
        e(f"buffer_load_dwordx4 {vr(V_XV+4,4)}, v{V_XO}, s[32:35], s65 offen")
        e(f"buffer_load_dwordx4 {vr(V_B2,4)}, v{t+6}, s[40:43], s64 offen")
        e(f"buffer_load_dwordx4 {vr(V_B2+4,4)}, v{t+6}, s[40:43], s65 offen")
    for s in range(DEPTH - 1):
        ld(s)
        if s == 1: fin_loads()
    stamp(1)
    for s in range(NS):
        if s == 1: stamp(2)
        if s == 8: stamp(3)
        nl = s + DEPTH - 1
        extra = 4 if s < 2 else 0
        if nl < NS - 1:
            ld(nl); e(f"s_waitcnt vmcnt({min(63, 8*(DEPTH-1) + extra)})")
        elif nl == NS - 1:
            e("s_cmp_eq_u32 s54, 2")
            e("s_cbranch_scc1 K2_W2TAIL")
            ld(nl); e(f"s_waitcnt vmcnt({8*(DEPTH-1)})")
        else:
            e(f"s_waitcnt vmcnt({8*(NS-1-s)})")
        mm(s)
    e("s_branch K2_FFN_DONE")
    lab("K2_W2TAIL")
    for s in range(NS - DEPTH, NS - 1):
        e(f"s_waitcnt vmcnt({8*(NS-2-s)})")
        mm(s)
    lab("K2_FFN_DONE")
    stamp(4)
    e(f"s_mul_i32 s66, s54, {64*PP}")
    e(f"v_mul_u32_u24 v{t}, {PP}, v{V_I}")
    e(f"v_lshl_add_u32 v{t}, v{V_G}, 4, v{t}")
    e(f"v_add_u32 v{t}, s66, v{t}")
    nop(6)
    for m in range(4):
        for n in range(4):
            e(f"ds_write_b128 v{t}, {vr(acc(m,n),4)} offset:{n*16*PP + m*64}")
    e("s_branch K2_FINAL")
    lab("K2_DFT")
    e(f"s_mul_i32 s68, s56, {ASTR:#x}")
    e("s_lshl_b32 s69, s53, 15")
    e("s_add_u32 s68, s68, s69")
    e(f"s_add_u32 s68, s68, {WS_AT:#x}")
    e(f"s_add_u32 s69, s68, {2*ASTR:#x}")
    e(f"v_add_u32 v{V_OA+1}, 0x4000, v{V_L16}")
    e(f"v_lshlrev_b32 v{V_OA+2}, 8, v{V_G}")
    e(f"v_add_u32 v{V_OA+2}, 0x8000, v{V_OA+2}")
    OFF = [V_L16, V_OA+1, V_OA+2]
    def dst(s, q):
        return ar((s % DD)*24 + q*4, 4)
    def dld(s):
        if s and s % 4 == 0:
            e("s_add_u32 s68, s68, 0x1000"); e("s_add_u32 s69, s69, 0x1000")
        for m in range(3):
            e(f"buffer_load_dwordx4 {dst(s,m)}, v{OFF[m]}, s[36:39], s68 offen offset:{1024*(s%4)}")
            e(f"buffer_load_dwordx4 {dst(s,3+m)}, v{OFF[m]}, s[36:39], s69 offen offset:{1024*(s%4)}")
    XA = V_ST; XB = XA + 12; CF = XB + 12
    XR = CF + 4
    TG = XR + 8
    FR = TG + 16
    for s in range(2): dld(s)
    e("s_lshl_b32 s70, s53, 7")
    e(f"s_add_u32 s70, s70, {WS_X512:#x}")
    e(f"v_lshlrev_b32 v{t+7}, 4, v{V_G}")
    for m in range(3):
        e(f"buffer_load_dwordx4 {vr(XA+4*m,4)}, v{t+7}, s[36:39], s70 offen offset:{64*m}")
        e(f"buffer_load_dwordx4 {vr(XB+4*m,4)}, v{t+7}, s[36:39], s70 offen offset:{288*4+64*m}")
    fin_loads()
    for s in range(2, DD - 1): dld(s)
    stamp(1)
    VT = t + 10; VINC = t + 11; VT1 = t + 12; CRE = t + 13; CIM = t + 14
    e(f"v_lshl_add_u32 v{VT}, v{V_I}, 1, s57")
    e(f"v_cvt_f32_u32 v{VT}, v{VT}")
    e(f"v_mul_f32 v{VINC}, 0x3d000000, v{VT}")
    e(f"v_mul_f32 v{VT1}, 0x3a000000, v{VT}")
    e(f"v_mul_f32 v{CRE}, 0x3e800000, v{VT}")
    e(f"v_sin_f32 v{CIM}, -v{CRE}")
    e(f"v_cos_f32 v{CRE}, v{CRE}")
    e(f"v_lshlrev_b32 v{t+8}, 4, v{V_G}")
    def init_args(sp):
        for k in range(8):
            e(f"v_add_u32 v{t+9}, {2*(k>>1) + 8*(k&1) + sp}, v{t+8}")
            e(f"v_cvt_f32_u32 v{t+9}, v{t+9}")
            e(f"v_mul_f32 v{XR+k}, v{t+9}, v{VT1}")
    for k in range(4): e(f"v_mov_b32 v{CF+k}, {'0xbf80bf80' if k & 1 else '0x3f803f80'}")
    def gen(s):
        if s % 8 == 0: init_args(s // 8)
        else:
            for k in range(8): e(f"v_add_f32 v{XR+k}, v{XR+k}, v{VINC}")
        for k in range(8):
            e(f"v_cos_f32 v{TG+k}, v{XR+k}")
            e(f"v_sin_f32 v{TG+8+k}, -v{XR+k}")
        e("s_nop 0")
        f = FR + (s % 2)*8
        for k in range(8): e(f"v_cvt_pk_bf16_f32 v{f+k}, v{TG+2*k}, v{TG+2*k+1}")
    def pacc(ph, sp, m): return V_ACC + ((ph*2+sp)*3+m)*4
    def sacc(ph, m): return V_ACC + 48 + (ph*3+m)*4
    def dmm(s):
        sp, h = divmod(s, 8); f = FR + (s % 2)*8
        for ph in range(2):
            for m in range(3):
                a_ = pacc(ph, sp, m); c_ = "0" if h == 0 else vr(a_, 4)
                e(f"v_mfma_f32_16x16x32_bf16 {vr(a_,4)}, {dst(s,3*ph+m)}, {vr(f+4*ph,4)}, {c_}")
        for m in range(3):
            a_ = sacc(sp, m); c_ = "0" if h == 0 else vr(a_, 4)
            e(f"v_mfma_f32_16x16x32_bf16 {vr(a_,4)}, {dst(s,3*sp+m)}, {vr(CF,4)}, {c_}")
    ND = 16
    gen(0)
    for s in range(ND):
        if s == 1: stamp(2)
        if s == 8: stamp(3)
        nl = s + DD - 1
        if nl < ND: dld(nl)
        if s + 1 < ND: gen(s + 1)
        else: nop(2)
        extra = 10 if s < 2 else 0
        e(f"s_waitcnt vmcnt({min(63, 6*(min(nl, ND-1) - s) + extra)})")
        dmm(s)
    stamp(4)
    e("s_cmp_eq_u32 s53, 0")
    e("s_cselect_b32 s72, 0xffff, 0")
    e("s_mov_b32 s73, 0")
    e("s_cmp_eq_u32 s53, 7")
    e("s_cselect_b32 s74, 0xffff, 0")
    e("s_mov_b32 s75, 0")
    e(f"v_mul_u32_u24 v{t}, {DP}, v{V_I}")
    e(f"v_add3_u32 v{t}, v{t}, v{t+7}, 0")
    e(f"v_add_u32 v{t}, {K2_D}, v{t}")
    nop(6)
    O = TG
    for m in range(3):
        EP, OP, EQ, OQ = pacc(0,0,m), pacc(0,1,m), pacc(1,0,m), pacc(1,1,m)
        o = O + (m % 2)*16
        for k in range(4):
            e(f"v_fma_f32 v{EP+k}, v{CRE}, v{XA+4*m+k}, v{EP+k}")
            e(f"v_fma_f32 v{EQ+k}, v{CIM}, v{XB+4*m+k}, v{EQ+k}")
        if m != 1:
            msk = "s[72:73]" if m == 0 else "s[74:75]"
            e(f"v_cndmask_b32 v{EQ}, v{EQ}, 0, {msk}")
            e(f"v_cndmask_b32 v{OQ}, v{OQ}, 0, {msk}")
            e(f"v_cndmask_b32 v{sacc(1,m)}, v{sacc(1,m)}, 0, {msk}")
        for k in range(4):
            e(f"v_add_f32 v{o+k}, v{EP+k}, v{OP+k}")
            e(f"v_sub_f32 v{o+8+k}, v{EP+k}, v{OP+k}")
            e(f"v_add_f32 v{EP+k}, v{EQ+k}, v{OQ+k}")
            e(f"v_sub_f32 v{OP+k}, v{OQ+k}, v{EQ+k}")
        for k in range(4):
            e(f"v_add_f32 v{o+4+k}, v{o+k}, v{EP+k}")
            e(f"v_sub_f32 v{o+k}, v{o+k}, v{EP+k}")
            e(f"v_add_f32 v{o+12+k}, v{o+8+k}, v{OP+k}")
            e(f"v_sub_f32 v{o+8+k}, v{o+8+k}, v{OP+k}")
        for a in range(4):
            e(f"ds_write_b128 v{t}, {vr(o+4*a,4)} offset:{a*DARR + m*64}")
    for m in range(3):
        for k in range(4):
            e(f"v_add_f32 v{sacc(0,m)+k}, v{sacc(0,m)+k}, v{XA+4*m+k}")
            e(f"v_sub_f32 v{XA+4*m+k}, v{sacc(0,m)+k}, v{sacc(1,m)+k}")
            e(f"v_add_f32 v{sacc(0,m)+k}, v{sacc(0,m)+k}, v{sacc(1,m)+k}")
    e(f"v_cmp_eq_u32 vcc, 0, v{V_I}")
    e("s_and_saveexec_b64 s[76:77], vcc")
    for m in range(3):
        e(f"ds_write_b128 v{t}, {vr(sacc(0,m),4)} offset:{16*DP + m*64}")
        e(f"ds_write_b128 v{t}, {vr(XA+4*m,4)} offset:{DARR + 16*DP + m*64}")
    e("s_mov_b64 exec, s[76:77]")
    lab("K2_FINAL")
    e(f"v_lshrrev_b32 v{t+1}, 2, v{V_LANE}")
    e("s_lshl_b32 s66, s54, 4")
    e(f"v_add_u32 v{t+2}, s66, v{t+1}")
    e(f"v_mul_u32_u24 v{t+2}, {PP}, v{t+2}")
    e(f"v_and_b32 v{t+3}, 3, v{V_LANE}")
    e(f"v_lshl_add_u32 v{t+2}, v{t+3}, 5, v{t+2}")
    e(f"v_and_b32 v{t+4}, 3, v{t+1}")
    e("s_lshl_b32 s66, s54, 2")
    e(f"v_add_u32 v{t+5}, s66, v{V_G}")
    e(f"v_or_b32 v{t+6}, s57, v{t+5}")
    e(f"v_cmp_eq_u32 vcc, 0, v{t+6}")
    e(f"v_lshlrev_b32 v{t+8}, 1, v{t+4}")
    e(f"v_mov_b32 v{t+9}, 0x48")
    e(f"v_lshrrev_b32 v{t+9}, v{t+8}, v{t+9}")
    e(f"v_and_b32 v{t+9}, 3, v{t+9}")
    e(f"v_and_b32 v{t+8}, 2, v{t+4}")
    e(f"v_lshlrev_b32 v{t+8}, 3, v{t+8}")
    e(f"v_cndmask_b32 v{t+4}, v{t+4}, v{t+9}, vcc")
    e(f"v_cndmask_b32 v{t+5}, v{t+5}, v{t+8}, vcc")
    e(f"v_mul_u32_u24 v{t+5}, {DP}, v{t+5}")
    e(f"v_add_u32 v{t+5}, {K2_D}, v{t+5}")
    e(f"v_mov_b32 v{t+8}, {DARR}")
    e(f"v_mad_u32_u24 v{t+6}, v{t+4}, v{t+8}, v{t+5}")
    e(f"v_lshl_add_u32 v{t+6}, v{t+3}, 5, v{t+6}")
    e(f"v_xor_b32 v{t+4}, 1, v{t+4}")
    e(f"v_mad_u32_u24 v{t+5}, v{t+4}, v{t+8}, v{t+5}")
    e(f"v_lshlrev_b32 v{t+3}, 5, v{t+3}")
    e(f"v_sub_u32 v{t+5}, v{t+5}, v{t+3}")
    e("s_waitcnt vmcnt(0) lgkmcnt(0)")
    stamp(5)
    e("s_barrier")
    stamp(6)
    R = V_ACC
    Y = V_ST
    for b in range(2):
        for w in range(3):
            for hh in range(2):
                e(f"ds_read_b128 {vr(R+(b*3+w)*8+4*hh,4)}, v{t+2} offset:{w*64*PP + b*128 + hh*16}")
        if b == 0:
            e(f"ds_read_b128 {vr(Y,4)}, v{t+6}")
            e(f"ds_read_b128 {vr(Y+4,4)}, v{t+6} offset:16")
    e("s_waitcnt lgkmcnt(6)")
    for k in range(8):
        e(f"ds_read_b32 v{Y+8+k}, v{t+5} offset:{(32-k)*4}")
    U = V_ST + 16
    for b in range(2):
        u = U + b*32; p0 = R + b*24
        for k in range(4):
            e(f"v_lshlrev_b32 v{u+2*k}, 16, v{V_B2+4*b+k}")
            e(f"v_and_b32 v{u+2*k+1}, 0xffff0000, v{V_B2+4*b+k}")
        if b == 1: e("s_waitcnt lgkmcnt(8)")
        for k in range(4):
            e(f"v_pk_add_f32 {vr(p0+2*k,2)}, {vr(p0+2*k,2)}, {vr(p0+8+2*k,2)}")
            e(f"v_pk_add_f32 {vr(u+2*k,2)}, {vr(u+2*k,2)}, {vr(p0+16+2*k,2)}")
        for k in range(4):
            e(f"v_pk_add_f32 {vr(u+2*k,2)}, {vr(u+2*k,2)}, {vr(p0+2*k,2)}")
        for k in range(8): e(f"v_mul_f32 v{u+8+k}, 0xbfb8aa3b, v{u+k}")
        for k in range(8): e(f"v_exp_f32 v{u+8+k}, v{u+8+k}")
        for k in range(4):
            e(f"v_lshlrev_b32 v{u+16+2*k}, 16, v{V_XV+4*b+k}")
            e(f"v_and_b32 v{u+16+2*k+1}, 0xffff0000, v{V_XV+4*b+k}")
        for k in range(8): e(f"v_add_f32 v{u+8+k}, 1.0, v{u+8+k}")
        for k in range(8): e(f"v_rcp_f32 v{u+8+k}, v{u+8+k}")
        if b == 1: e("s_waitcnt lgkmcnt(0)")
        else: e("s_nop 0")
        for k in range(4):
            e(f"v_pk_mul_f32 {vr(u+2*k,2)}, {vr(u+2*k,2)}, {vr(u+8+2*k,2)}")
        for k in range(4):
            e(f"v_pk_fma_f32 {vr(u+2*k,2)}, {vr(Y+8*b+2*k,2)}, {vr(u+2*k,2)}, {vr(u+16+2*k,2)}")
        for k in range(4):
            e(f"v_cvt_pk_bf16_f32 v{u+24+k}, v{u+2*k}, v{u+2*k+1}")
        e(f"buffer_store_dwordx4 {vr(u+24,4)}, v{V_XO}, s[60:63], s{64+b} offen{fl(ST_OUT)}")
    if PROF: e("s_waitcnt vmcnt(0)")
    stamp(7)
    prof_end(1, 1)
    lab("K2_END")
    e("s_endpgm")
    lab("CODE_END")

def kd(name, nvgpr, acc_off):
    return f""".amdhsa_kernel {name}
  .amdhsa_next_free_vgpr {nvgpr}
  .amdhsa_next_free_sgpr 102
  .amdhsa_accum_offset {acc_off}
  .amdhsa_group_segment_fixed_size 0
  .amdhsa_kernarg_size 104
  .amdhsa_user_sgpr_count 2
  .amdhsa_user_sgpr_kernarg_segment_ptr 1
  .amdhsa_system_sgpr_workgroup_id_x 1
.end_amdhsa_kernel
"""

def main(out):
    hdr = f"""; FNet (folded real 2-D DFT) * silu(squared-relu FFN) + residual, two launches.
; @launch kernel=k1_kernel grid=(256,1,1) block=(512,1,1) lds={K1_LDS}
; @launch kernel=k2_kernel grid=(256,1,1) block=(256,1,1) lds={K2_LDS}
.amdgcn_target "amdgcn-amd-amdhsa--gfx950"
.text
"""
    body = []
    for nm, fn in (("k1_kernel", gen_k1), ("k2_kernel", gen_k2)):
        L.clear()
        fn()
        body.append(f".globl {nm}\n.p2align 8\n.type {nm},@function\n" + "\n".join(L) + "\n")
    txt = hdr + "".join(body) + '.section .rodata,"a"\n.p2align 6\n' + kd("k1_kernel", 256, 256) + ".p2align 6\n" + kd("k2_kernel", 256+192, 256)
    open(out, "w").write(txt)

if __name__ == "__main__":
    main(sys.argv[1] if len(sys.argv) > 1 else f"cdna_kernels/{NAME}.s")
```

```python
import sys, os
NAME = "recurrent_scan__spectral_fnet__dense_activation_squared_relu__prompt"
L = []
def e(s): L.append("    " + s)
def lab(s): L.append(s + ":")
def nop(n):
    while n > 0:
        k = min(n, 16); e(f"s_nop {k-1}"); n -= k
def vr(b, n): return f"v[{b}:{b+n-1}]" if n > 1 else f"v{b}"
def ar(b, n): return f"a[{b}:{b+n-1}]" if n > 1 else f"a{b}"

PROF = int(os.environ.get("PROF", "0"))
OPT = dict(kv.split("=") for kv in os.environ.get("OPT", "").split(",") if kv)
def opt(k, d): return type(d)(OPT.get(k, d))
PM = int(os.environ.get("PM", "0"))
def stamp(k, pm=0):
    if PROF and (pm == PM or k == 0): e(f"s_memtime s[{80+2*k}:{81+2*k}]")
def prof_begin():
    if PROF: e("s_memrealtime s[96:97]")
def prof_end(kidx, tmp):
    if not PROF: return
    e("s_memrealtime s[98:99]")
    e("s_waitcnt lgkmcnt(0)")
    e("s_mov_b32 s76, s26"); e("s_and_b32 s77, s27, 0xffff"); e("s_mov_b32 s78, 0x40000"); e("s_mov_b32 s79, 0x00020000")
    e("s_lshl_b32 s30, s2, 3"); e("s_add_u32 s30, s30, s54"); e("s_lshl_b32 s30, s30, 6"); e(f"s_add_u32 s30, s30, {kidx*131072}")
    e("s_mov_b64 exec, 1")
    e(f"v_mov_b32 v{tmp}, 0")
    for k in range(10):
        e(f"v_mov_b32 v{tmp+1}, s{80+2*k}")
        e(f"buffer_store_dword v{tmp+1}, v{tmp}, s[76:79], s30 offen offset:{4*k}")
        e("s_nop 1")

TILE_B = opt('tk', 57) * 1024
WS_H2 = 0
WS_W2 = 0x800000
WS_AT = 0xA00000
ASTR = 17 * 16384
WS_X512 = WS_AT + 4 * ASTR
WS_CNT = WS_X512 + 4096
WS_SIZE = WS_CNT + 4096

def code_warm(tag, rounds, tmp):
    if not opt("cw", 1): return
    e("s_getpc_b64 s[30:31]")
    lab(f"{tag}_PC")
    e(f"v_lshlrev_b32 v{tmp}, 7, v0")
    for r in range(rounds):
        if r: e(f"v_add_u32 v{tmp}, 0x8000, v{tmp}")
        e(f"v_min_u32 v{tmp+1}, CODE_END-{tag}_PC-4, v{tmp}")
        e(f"global_load_dword v0, v{tmp+1}, s[30:31]")
def load_ptrs():
    e("s_load_dwordx16 s[4:19], s[0:1], 0")
    e("s_load_dwordx8 s[20:27], s[0:1], 64")
    e("s_load_dwordx2 s[28:29], s[0:1], 96")
def srd(d, p, nbytes):
    e(f"s_mov_b32 s{d}, s{p}")
    e(f"s_and_b32 s{d+1}, s{p+1}, 0xffff")
    e(f"s_mov_b32 s{d+2}, {nbytes:#x}")
    e(f"s_mov_b32 s{d+3}, 0x00020000")

def quad_consts(vmem, vbase, vsgn, vspec, tmp):
    e(f"v_mov_b32 v{vbase}, 0x400")
    e(f"v_cmp_eq_u32 vcc, 0, v{vmem}")
    e(f"v_add_u32 v{tmp}, 1, v{vmem}")
    e(f"v_and_b32 v{tmp}, 2, v{tmp}")
    e(f"v_cndmask_b32 v{vbase}, v{vbase}, 0, vcc")
    e(f"v_sub_u32 v{vsgn}, 1, v{tmp}")
    e(f"v_cmp_eq_u32 vcc, 1, v{vmem}")
    e(f"v_mov_b32 v{tmp}, 0x800")
    e(f"v_and_b32 v{vspec}, 1, v{vmem}")
    e(f"v_cndmask_b32 v{vbase}, v{vbase}, v{tmp}, vcc")
    e(f"v_lshlrev_b32 v{vspec}, 10, v{vspec}")
    e(f"v_lshrrev_b32 v{tmp}, 1, v{vmem}")
    e(f"v_lshl_add_u32 v{vspec}, v{tmp}, 9, v{vspec}")

ST_H2 = opt("sth2", "sc1")
ST_W2 = opt("stw2", "sc1")
ST_AT = opt("stat", "sc1")
ST_OUT = opt("stout", "")
def fl(s): return (" " + s.replace("+", " ")) if s else ""

SLOT = 24576
NSL = 5
K1_WB = 3 * SLOT
K1_SP = 5 * SLOT
K1_TR = K1_SP + 24576
K1_Z = K1_SP + 32768
K1_LDS = K1_Z + 2048 + 512
def goff(g): return K1_SP + g*8192 if g < 4 else K1_WB + (g-4)*8192

def gen_k1():
    SCH = [x.split(".") if x else [] for x in opt("sch", "s0.s1.s2/s3.s4/t/s5/s6/s7.b0/b1.b2.T.b3.b4/b5.b6.b7.U/").split("/")]
    assert len(SCH) == 9
    for k, l in enumerate(SCH):
        for x in l:
            if x[0] == "s": assert int(x[1]) < 5 or k >= int(x[1]) - 2
            if x[0] == "b": assert k >= {0:0,1:0,2:0,3:0,4:6,5:6,6:6,7:7}[int(x[1])]
    flat = sum(SCH, []); assert flat.index("t") < flat.index("T") < flat.index("b3") and flat[-1] == "U"
    NP1 = opt("np1", 4)
    assert [x for x in flat if x[0] == "b"] == [f"b{i}" for i in range(8)]
    lab("k1_kernel")
    e("s_cmp_ge_u32 s2, 256")
    e("s_cbranch_scc1 K1_END")
    prof_begin(); stamp(0)
    load_ptrs()
    e("s_and_b32 s78, s2, 1")
    if opt("map1", 0) == 0:
        e("s_and_b32 s52, s2, 6")
        e("s_bfe_u32 s55, s2, 0x10003")
        e("s_add_u32 s52, s52, s55")
        e("s_lshr_b32 s53, s2, 4")
    elif opt("map1", 0) == 1:
        e("s_and_b32 s52, s2, 4")
        e("s_bfe_u32 s55, s2, 0x20003")
        e("s_add_u32 s52, s52, s55")
        e("s_and_b32 s53, s2, 2")
        e("s_lshl_b32 s53, s53, 2")
        e("s_lshr_b32 s55, s2, 5")
        e("s_add_u32 s53, s53, s55")
    else:
        e("s_bfe_u32 s52, s2, 0x30003")
        e("s_and_b32 s53, s2, 6")
        e("s_lshl_b32 s53, s53, 1")
        e("s_lshr_b32 s55, s2, 6")
        e("s_add_u32 s53, s53, s55")
    e("s_lshl_b32 s73, s52, 1")
    e("s_add_u32 s73, s73, s78")
    e("s_add_u32 s73, s73, s53")
    if opt("rh", 1): e("s_add_u32 s73, s52, s53")
    e(f"s_and_b32 s73, s73, {opt('rm', 3)}")
    if opt("rs", 1): e(f"s_lshl_b32 s73, s73, {opt('rs', 1)}")
    V_LANE, V_I, V_G = 1, 2, 3
    V_WA = 4
    V_XA = 8
    V_GA = 10
    V_L16 = 11
    V_ZG = 12
    V_ATO = 13
    t = 16
    R = 24
    V_RING = 32
    V_X = 56
    V_ACC = 184
    V_E = 240
    NR = 6; PF = 4
    def xreg(ks, T): return V_X + (ks*2+T)*4
    def soff(st): return (st % NSL)*SLOT - (K1_WB if st in (3, 4) else 0)
    e("v_lshrrev_b32 v1, 6, v0")
    e("v_and_b32 v2, 15, v0")
    e("v_readfirstlane_b32 s54, v1")
    e(f"v_and_b32 v{V_LANE}, 63, v0")
    code_warm("K1", 1, t)
    e(f"v_lshrrev_b32 v{V_G}, 4, v{V_LANE}")
    e("s_and_b32 s55, s54, 3")
    e("s_lshl_b32 s62, s55, 12")
    e("s_cmp_lt_u32 s54, 4")
    e("s_cbranch_scc1 K1_CONS")
    def xa_setup():
        e(f"v_lshrrev_b32 v{t}, 1, v{V_I}")
        e(f"v_xor_b32 v{t}, v{t}, v{V_G}")
        e(f"v_lshlrev_b32 v{t}, 4, v{t}")
        e(f"v_lshl_add_u32 v{t}, v{V_I}, 7, v{t}")
        e(f"v_add_u32 v{V_XA}, s62, v{t}")
        e(f"v_add_u32 v{V_XA}, 0x2000, v{V_XA}")
        e("s_and_b32 s64, s55, 1")
        e("s_lshl_b32 s64, s64, 6")
        e(f"v_xor_b32 v{V_XA}, s64, v{V_XA}")
        e(f"v_xor_b32 v{V_XA+1}, 64, v{V_XA}")
    def cs_add(src, off):
        e("s_mov_b64 exec, 0xffff")
        for q in range(2): e(f"ds_add_f32 v10, v{src+4*q} offset:{off+64*q}")
        e("s_mov_b64 exec, -1")
    def wa_setup(js, add):
        e(f"v_lshrrev_b32 v{t}, 2, v{V_I}")
        e(f"v_and_b32 v{t+1}, 1, v{V_G}")
        e(f"v_lshrrev_b32 v{t+2}, 1, v{t}")
        e(f"v_lshl_add_u32 v{t+2}, v{t+1}, 1, v{t+2}")
        e(f"v_lshl_add_u32 v{t}, v{V_G}, 3, v{t}")
        e(f"v_lshlrev_b32 v{t}, 7, v{t}")
        e(f"v_lshl_add_u32 v{t}, v{t+2}, 5, v{t}")
        e(f"v_and_b32 v{t+1}, 3, v{V_I}")
        e(f"v_lshl_add_u32 v{t}, v{t+1}, 3, v{t}")
        if add: e(f"v_add_u32 v{t}, {add}, v{t}")
        e("s_and_b32 s64, s55, 1")
        e("s_lshl_b32 s64, s64, 12")
        e("s_and_b32 s79, s55, 2")
        e("s_lshl_b32 s79, s79, 5")
        e("s_or_b32 s64, s64, s79")
        e("s_lshl_b32 s79, s79, 1")
        e(f"v_xor_b32 v{t}, s64, v{t}")
        for q, j in enumerate(js): e(f"v_xor_b32 v{V_WA+q}, {j<<5}, v{t}")
        e(f"v_lshlrev_b32 v{V_L16}, 4, v{V_LANE}")
        e(f"v_lshlrev_b32 v{V_ZG}, 4, v{V_G}")
        e(f"v_add_u32 v{V_ZG}, {K1_Z}, v{V_ZG}")
    def out_setup(jp0):
        e("s_lshl_b32 s60, s52, 4")
        e("s_lshr_b32 s61, s55, 1")
        e("s_lshl_b32 s61, s61, 3")
        e("s_add_u32 s60, s60, s61")
        e("s_lshl_b32 s61, s78, 2")
        e("s_add_u32 s60, s60, s61")
        e("s_and_b32 s61, s55, 1")
        e("s_lshl_b32 s61, s61, 1")
        e("s_add_u32 s60, s60, s61")
        e(f"s_mul_i32 s60, s60, {TILE_B}")
        e("s_lshl_b32 s61, s53, 12")
        e("s_add_u32 s60, s60, s61")
        if jp0: e(f"s_add_u32 s60, s60, {1024*jp0}")
        e("s_lshl_b32 s61, s79, 3")
        e("s_add_u32 s60, s60, s61")
        e(f"s_add_u32 s61, s60, {TILE_B}")
        e("s_or_b32 s63, s52, s55")
        e("s_or_b32 s63, s63, s78")
        e("s_cmp_eq_u32 s63, 0")
        e("s_cselect_b32 s76, 0xffff, 0")
        e("s_mov_b32 s77, 0")
        e("s_lshl_b32 s64, s78, 3")
        e("s_add_u32 s64, s64, s52")
        e("s_lshl_b32 s64, s64, 10")
        e("s_lshl_b32 s65, s55, 8")
        e("s_add_u32 s64, s64, s65")
        e(f"s_add_u32 s64, s64, {WS_AT:#x}")
        e("s_lshl_b32 s63, s55, 7")
        e("s_and_b32 s66, s53, 1")
        e("s_lshl_b32 s66, s66, 3")
        if jp0: e(f"s_add_u32 s66, s66, {2*jp0}")
        e("s_lshl_b32 s67, s66, 14")
        e("s_add_u32 s67, s67, s64")
        e("s_lshl_b32 s65, s79, 8")
        e("s_add_u32 s67, s67, s65")
        e("s_lshl_b32 s65, s79, 4")
        e("s_sub_u32 s65, 0x400, s65")
        e("s_lshl_b32 s66, s66, 6")
        e(f"s_add_u32 s66, s66, {WS_X512:#x}")
        e(f"v_lshl_add_u32 v14, v{V_I}, 2, s66")
        e(f"v_and_b32 v{t+5}, 1, v{V_G}")
        e(f"v_mul_u32_u24 v{t+5}, {ASTR:#x}, v{t+5}")
        e(f"v_lshrrev_b32 v{t+6}, 1, v{V_G}")
        e(f"v_lshl_add_u32 v{t+5}, v{t+6}, 14, v{t+5}")
        e(f"v_lshl_add_u32 v{V_ATO}, v{V_I}, 4, v{t+5}")
        e(f"v_lshlrev_b32 v15, 2, v{V_I}")
        e(f"v_add_u32 v15, {K1_Z}, v15")
        e(f"v_xor_b32 v10, s79, v15")
    if opt("hprio", 1): e("s_setprio 3")
    V_CS = 216; V_XO = 224; V_WO = 228; V_TO = 230; V_TA = 231; V_TD = 232; V_ONES = V_E
    h = 36
    e("s_lshl_b32 s56, s52, 6")
    e("s_add_u32 s56, s56, s78")
    e("s_lshl_b32 s57, s55, 4")
    e("s_add_u32 s56, s56, s57")
    e(f"v_bfe_u32 v{h}, v{V_LANE}, 3, 2")
    quad_consts(h, h+1, h+2, h+3, h+4)
    e(f"v_lshrrev_b32 v{h+4}, 5, v{V_LANE}")
    e(f"v_lshl_add_u32 v{h+4}, v{h+4}, 1, s56")
    e(f"v_and_b32 v{h+5}, 7, v{V_LANE}")
    e(f"v_xor_b32 v{h+5}, v{h+5}, v{V_G}")
    e(f"v_lshlrev_b32 v{h+5}, 4, v{h+5}")
    e(f"v_xor_b32 v{h+6}, 64, v{h+5}")
    for q in range(4):
        if q: e(f"v_add_u32 v{h+4}, 4, v{h+4}")
        e(f"v_mad_i32_i24 v{h+7}, v{h+2}, v{h+4}, v{h+1}")
        if q == 0:
            e(f"v_cmp_eq_u32 vcc, 0, v{h+4}")
            nop(2)
            e(f"v_cndmask_b32 v{h+7}, v{h+7}, v{h+3}, vcc")
        e(f"v_lshl_add_u32 v{V_XO+q}, v{h+7}, 10, v{h+5+(q&1)}")
    e(f"v_and_b32 v{h}, 7, v{V_LANE}")
    e(f"v_and_b32 v{h+1}, 1, v{V_G}")
    e(f"v_lshlrev_b32 v{h+1}, 1, v{h+1}")
    e(f"v_xor_b32 v{h}, v{h}, v{h+1}")
    e(f"v_lshlrev_b32 v{h}, 4, v{h}")
    e(f"v_xor_b32 v{h+1}, 64, v{h}")
    e(f"v_lshrrev_b32 v{h+2}, 3, v{V_LANE}")
    e("s_lshl_b32 s57, s55, 11")
    e("s_lshl_b32 s72, s73, 7")
    e("s_waitcnt lgkmcnt(0)")
    srd(32, 4, 2048*512*2)
    e("s_cmp_lt_u32 s53, 14")
    e("s_cbranch_scc0 K1_H_DSRC")
    srd(44, 16, 512*3584)
    e("s_mov_b32 s58, 3584")
    e("s_lshl_b32 s59, s53, 8")
    e("s_branch K1_H_SRC")
    lab("K1_H_DSRC")
    srd(44, 10, 512*1024)
    e("s_mov_b32 s58, 1024")
    e("s_sub_u32 s59, s53, 14")
    e("s_lshl_b32 s59, s59, 8")
    lab("K1_H_SRC")
    e(f"v_mad_u32_u24 v{V_WO}, v{h+2}, s58, v{h}")
    e(f"v_mad_u32_u24 v{V_WO+1}, v{h+2}, s58, v{h+1}")
    e("s_lshl_b32 s60, s55, 4")
    e("s_mul_i32 s60, s60, s58")
    e("s_add_u32 s60, s60, s59")
    e("s_add_u32 s61, s60, 128")
    e("s_lshl_b32 s63, s58, 3")
    e("s_lshr_b32 s59, s58, 1")
    VQ = []
    def vwait(tag):
        idx = max([i for i, x in enumerate(VQ) if x == tag], default=-1)
        if idx >= 0:
            e(f"s_waitcnt vmcnt({len(VQ) - 1 - idx})")
            del VQ[:idx+1]
    def S_ops(k):
        b = k % NSL
        def xop(q):
            def f():
                if q == 0:
                    e(f"s_add_u32 s74, s72, {k*128}")
                    e(f"s_and_b32 s74, s74, 1023")
                e(f"s_add_u32 m0, s62, {b*SLOT + 8192 + q*1024}")
                if q == 0: e("s_mul_i32 s75, s74, s59")
                elif q == 1: e("s_add_u32 s75, s75, s60")
                else: e("s_nop 0")
                e(f"buffer_load_dwordx4 v{V_XO+q}, s[32:35], s74 offen lds"); VQ.append(("st", k))
            return f
        def wop(q):
            def f():
                e(f"s_add_u32 m0, s57, {b*SLOT + q*1024}")
                e("s_nop 0" if q == 0 else "s_add_u32 s75, s75, s63")
                e(f"buffer_load_dwordx4 v{V_WO+q}, s[44:47], s75 offen lds"); VQ.append(("st", k))
            return f
        return [xop(0), xop(1), wop(0), xop(2), xop(3), wop(1)]
    def B_ops(g):
        ops = []
        for q in range(2):
            def f(g=g, q=q):
                if q == 0:
                    e(f"s_add_u32 s75, s72, {g*128}")
                    e(f"s_and_b32 s75, s75, 1023")
                    e("s_mul_i32 s75, s75, s59")
                e(f"s_add_u32 m0, s57, {goff(g) + q*1024}")
                e(f"s_add_u32 s75, s75, {'s61' if q == 0 else 's63'}")
                e(f"buffer_load_dwordx4 v{V_WO+q}, s[44:47], s75 offen lds"); VQ.append(("wb", g))
            ops.append(f)
        return ops
    def t_ops():
        def f0():
            e(f"s_add_u32 m0, s57, {K1_TR}")
            e("s_add_u32 s70, s68, 16384")
            e(f"buffer_load_dwordx4 v{V_TO}, s[48:51], s68 offen lds"); VQ.append(("t", 0))
        def f1():
            e(f"s_add_u32 m0, s57, {K1_TR+1024}")
            e("s_nop 0")
            e(f"buffer_load_dwordx4 v{V_TO}, s[48:51], s70 offen lds"); VQ.append(("t", 0))
        return [f0, f1]
    def T_op():
        vwait(("t", 0))
        for m in range(2):
            for u in range(2):
                e(f"ds_read_b64_tr_b16 {vr(V_TD+4*m+2*u,2)}, v{V_TA} offset:{u*1024 + m*32}")
        e(f"s_add_u32 s70, s71, {TILE_B}")
        e("s_waitcnt lgkmcnt(0)")
    def U_op():
        e(f"buffer_store_dwordx4 {vr(V_TD,4)}, v{V_L16}, s[36:39], s71 offen{fl(ST_W2)}"); VQ.append(("u", 0))
        e(f"buffer_store_dwordx4 {vr(V_TD+4,4)}, v{V_L16}, s[36:39], s70 offen{fl(ST_W2)}"); VQ.append(("u", 0))
    def sched(k):
        ops = []
        for x in SCH[k]:
            if x[0] == "s": ops += S_ops(int(x[1]))
            elif x[0] == "b": ops += B_ops(int(x[1]))
            elif x == "t": ops += t_ops()
            elif x == "T": ops.append(T_op)
            elif x == "U": ops.append(U_op)
        return ops
    assert SCH[0][0] == "s0"
    SCH[0] = SCH[0][1:]
    for f in S_ops(0): f()
    srd(40, 18, 1792*2)
    e(f"v_lshlrev_b32 v{h+3}, 2, v{V_LANE}")
    e("s_lshl_b32 s71, s53, 8")
    e(f"buffer_load_dword v{h+10}, v{h+3}, s[40:43], s71 offen"); VQ.append(("st", 0))
    for f in sched(0): f()
    stamp(1)
    srd(36, 28, WS_SIZE)
    srd(48, 20, 1792*512*2)
    e("s_min_u32 s65, s2, 223")
    e("s_lshr_b32 s66, s65, 3")
    e("s_lshl_b32 s66, s66, 1")
    e("s_lshr_b32 s67, s55, 1")
    e("s_add_u32 s66, s66, s67")
    e("s_and_b32 s67, s65, 7")
    e("s_lshl_b32 s67, s67, 1")
    e("s_and_b32 s65, s55, 1")
    e("s_add_u32 s67, s67, s65")
    e("s_lshl_b32 s67, s67, 1")
    e(f"s_mul_i32 s71, s67, {TILE_B}")
    e("s_lshl_b32 s65, s66, 10")
    e("s_add_u32 s71, s71, s65")
    e(f"s_add_u32 s71, s71, {WS_W2:#x}")
    e("s_lshl_b32 s68, s66, 15")
    e("s_lshl_b32 s69, s67, 5")
    e("s_add_u32 s68, s68, s69")
    e(f"v_and_b32 v{h+1}, 3, v{V_LANE}")
    e(f"v_lshlrev_b32 v{h+1}, 4, v{h+1}")
    e(f"v_lshrrev_b32 v{h+2}, 2, v{V_LANE}")
    e(f"v_lshl_add_u32 v{V_TO}, v{h+2}, 10, v{h+1}")
    e(f"v_and_b32 v{h+1}, 3, v{V_I}")
    e(f"v_lshrrev_b32 v{h+2}, 2, v{V_I}")
    e(f"v_lshl_add_u32 v{h+2}, v{V_G}, 2, v{h+2}")
    e(f"v_lshlrev_b32 v{h+2}, 6, v{h+2}")
    e(f"v_lshl_add_u32 v{h+2}, v{h+1}, 3, v{h+2}")
    e(f"s_add_u32 s64, s57, {K1_TR}")
    e(f"v_add_u32 v{V_TA}, s64, v{h+2}")
    for k in range(4): e(f"v_mov_b32 v{V_ONES+k}, 0x3f803f80")
    e(f"v_lshlrev_b32 v{h+5}, 3, v{V_LANE}")
    e(f"v_add_u32 v{h+5}, {K1_Z}, v{h+5}")
    xa_setup()
    wa_setup((0, 1, 2, 3), K1_SP)
    ST = V_ACC
    def dots(k):
        for kk in range(2):
            for T in range(2):
                xf = vr(xreg(2*k+kk, T), 4)
                for a_, o1 in ((ST + 4*T, vr(V_ONES, 4)), (ST + 8 + 4*T, xf)):
                    e(f"v_mfma_f32_16x16x32_bf16 {vr(a_,4)}, {o1}, {xf}, {'0' if k + kk == 0 else vr(a_,4)}")
    for k in range(8):
        if k == 3 or k == 5:
            op = "v_add_u32" if k == 3 else "v_subrev_u32"
            for r_ in (V_XA, V_XA+1): e(f"{op} v{r_}, {K1_WB}, v{r_}")
        if k: stamp(k, 2)
        vwait(("st", k))
        if k: stamp(k, 1)
        if k == 0:
            e(f"v_lshlrev_b32 v{h+6}, 16, v{h+10}")
            e(f"v_and_b32 v{h+7}, 0xffff0000, v{h+10}")
            e(f"ds_write_b64 v{h+5}, {vr(h+6,2)} offset:1536")
            e(f"v_mov_b32 v{h+8}, 0"); e(f"v_mov_b32 v{h+9}, 0")
            e(f"ds_write_b64 v{h+5}, {vr(h+8,2)}")
            e(f"ds_write_b64 v{h+5}, {vr(h+8,2)} offset:2048")
        e("s_barrier")
        if k == 0: stamp(2)
        if k == 7: stamp(3)
        dm = sched(k + 1)
        for f in dm[:1]: f()
        for kk in range(2):
            for T in range(2):
                e(f"ds_read_b128 {vr(xreg(2*k+kk,T),4)}, v{V_XA+kk} offset:{soff(k) + T*2048}")
        for f in dm[1:]: f()
        e("s_waitcnt lgkmcnt(0)")
        dots(k)
    out_setup(2)
    e(f"v_add_u32 v{t+1}, s63, v15")
    for q in range(1, 4):
        e(f"s_mov_b32 s68, {0x11111111 << q:#x}"); e(f"s_mov_b32 s69, {0x11111111 << q:#x}")
        for T in range(2): e(f"v_cndmask_b32 v{ST+8+4*T}, v{ST+8+4*T}, v{ST+8+4*T+q}, s[68:69]")
    def both(f):
        for T in range(2): e(f(ST+4*T, ST+8+4*T, ST+4*T+1))
    both(lambda vS, vQ, tmp: f"v_mul_f32 v{vS}, 0x3b000000, v{vS}")
    both(lambda vS, vQ, tmp: f"v_mul_f32 v{vQ}, 0x3b000000, v{vQ}")
    both(lambda vS, vQ, tmp: f"v_fma_f32 v{vQ}, -v{vS}, v{vS}, v{vQ}")
    both(lambda vS, vQ, tmp: f"v_max_f32 v{vQ}, 0, v{vQ}")
    both(lambda vS, vQ, tmp: f"v_cvt_pk_bf16_f32 v{tmp}, v{vS}, v{vQ}")
    both(lambda vS, vQ, tmp: f"v_lshlrev_b32 v{vS}, 16, v{tmp}")
    both(lambda vS, vQ, tmp: f"v_and_b32 v{vQ}, 0xffff0000, v{tmp}")
    both(lambda vS, vQ, tmp: f"v_add_f32 v{vQ}, 0x3727c5ac, v{vQ}")
    both(lambda vS, vQ, tmp: f"v_cvt_pk_bf16_f32 v{tmp}, v{vQ}, v{vQ}")
    both(lambda vS, vQ, tmp: f"v_lshlrev_b32 v{vQ}, 16, v{tmp}")
    both(lambda vS, vQ, tmp: f"v_sqrt_f32 v{vQ}, v{vQ}")
    e("s_nop 0")
    both(lambda vS, vQ, tmp: f"v_cvt_pk_bf16_f32 v{tmp}, v{vQ}, v{vQ}")
    both(lambda vS, vQ, tmp: f"v_lshlrev_b32 v{vQ}, 16, v{tmp}")
    both(lambda vS, vQ, tmp: f"v_rcp_f32 v{vQ}, v{vQ}")
    e("s_nop 0")
    e("s_mov_b32 exec_lo, 0x00f0000f"); e("s_mov_b32 exec_hi, 0xf0000f00")
    for T in range(2):
        e(f"ds_write_b32 v{t+1}, v{ST+4*T} offset:{512+64*T}")
        e(f"ds_write_b32 v{t+1}, v{ST+8+4*T} offset:{1024+64*T}")
    e("s_mov_b64 exec, -1")
    for q in range(4): e(f"v_xor_b32 v{V_XO+q}, 0x1000, v{V_WA+q}")
    vwait(("wb", NP1 - 1))
    e("s_waitcnt lgkmcnt(0)")
    stamp(4)
    e("s_barrier")
    if opt("hprio", 1): e(f"s_setprio {opt('hp2', 0)}")
    e("s_cmp_lt_u32 s53, 14")
    e("s_cbranch_scc1 K1_PB_F")
    e("s_branch K1_PB_D")
    VQ_B8 = list(VQ)

    lab("K1_CONS")
    C_RING = 32; CNR = 8; C_X = 64; C_GEN = 88; C_CS = 152; G = 164; C_WA1 = 160
    e(f"v_lshl_add_u32 v{t}, s53, 4, v{V_I}")
    e(f"v_cmp_eq_u32 vcc, 0, v{t}")
    e(f"v_mov_b32 v{t+1}, 0x100")
    e(f"v_mov_b32 v{t+3}, 0xbe800000")
    e(f"v_cndmask_b32 v{t}, v{t}, v{t+1}, vcc")
    e(f"v_cndmask_b32 v{t+3}, 0, v{t+3}, vcc")
    e(f"v_cvt_f32_u32 v{t}, v{t}")
    e(f"v_mul_f32 v{t}, 0x3b000000, v{t}")
    e("s_and_b32 s65, s55, 1")
    e("s_lshl_b32 s64, s73, 1")
    e("s_add_u32 s64, s64, s65")
    e("s_lshl_b32 s64, s64, 5")
    e("s_cmp_eq_u32 s65, 0")
    e("s_cselect_b32 s65, 1.0, -1.0")
    e("s_cselect_b32 s66, 1.0, 0x40400000")
    e(f"v_lshl_add_u32 v{t+1}, v{V_G}, 3, s64")
    e(f"v_cvt_f32_u32 v{t+1}, v{t+1}")
    e(f"v_fma_f32 v{G}, v{t+1}, v{t}, v{t+3}")
    e(f"v_fract_f32 v{G}, v{G}")
    for k in range(1, 8): e(f"v_add_f32 v{G+k}, v{G+k-1}, v{t}")
    e(f"v_mul_f32 v{t}, 0x42000000, v{t}")
    e(f"v_fract_f32 v{t}, v{t}")
    e(f"v_mul_f32 v{t+1}, s66, v{t}")
    e(f"v_mul_f32 v{t}, s65, v{t}")
    for ks in range(16):
        for k in range(8):
            e(f"v_sin_f32 v{G+8+k}, -v{G+k}")
            if ks < 15: e(f"v_add_f32 v{G+k}, v{G+k}, v{t+(ks&1)}")
        if ks == 15: e("s_nop 0")
        for k in range(4): e(f"v_cvt_pk_bf16_f32 v{C_GEN+4*ks+k}, v{G+8+2*k}, v{G+8+2*k+1}")
    wa_setup((0, 1, 2, 3), 0)
    for q in range(4): e(f"v_xor_b32 v{C_WA1+q}, 0x1000, v{V_WA+q}")
    xa_setup()
    for k in range(4): e(f"v_mov_b32 v{V_E+k}, 0x3f803f80")
    out_setup(0)
    e("s_waitcnt lgkmcnt(0)")
    srd(36, 28, WS_SIZE)
    if opt("dyn", 0):
        e("s_or_b32 s72, s2, s54")
        e("s_cmp_eq_u32 s72, 0")
        e("s_cselect_b64 exec, 0xff, 0")
        e(f"v_lshlrev_b32 v{t}, 8, v{V_LANE}")
        e(f"v_mov_b32 v{t+1}, 0")
        e(f"v_add_u32 v{t}, {WS_CNT:#x}, v{t}")
        e(f"buffer_store_dword v{t+1}, v{t}, s[36:39], 0 offen sc1")
        e("s_mov_b64 exec, -1")
    e("s_cmp_lt_u32 s53, 14")
    e("s_cbranch_scc0 K1_VAR_D")

    def acc(j, T):
        if j < 4: return V_ACC + (j*2+T)*4
        if j == 8: return V_ACC + 32 + T*4
        return V_ACC + ((j-4)*2+T)*4
    def variant(tag, ffn):
        lab(f"K1_VAR_{tag}")
        Q = []; pend = []
        def need(tags):
            assert not any(tg in tags for tg, _ in pend), (tags, pend)
            idx = max([i for i, x in enumerate(Q) if x in tags], default=-1)
            if idx >= 0:
                e(f"s_waitcnt lgkmcnt({len(Q)-1-idx})")
                del Q[:idx+1]
        def pop(n):
            for _ in range(min(n, len(pend))):
                tg, ins = pend.pop(0); e(ins); Q.append(tg)
            assert len(Q) <= 15
        def mm(ins):
            e(ins); pop(2 if len(pend) > 2 else 1)
        def mfma(j, ks, slot, xr):
            for T in range(2):
                a_ = acc(j, T); xf = vr(xr(ks, T), 4); c_ = "0" if ks == 0 else vr(a_, 4)
                if ffn and j < 8: mm(f"v_mfma_f32_16x16x32_bf16 {vr(a_,4)}, {vr(slot,4)}, {xf}, {c_}")
                else: mm(f"v_mfma_f32_16x16x32_bf16 {vr(a_,4)}, {xf}, {vr(slot,4)}, {c_}")
        def cs_mma(jj, ks, slot, cs, ones):
            if jj < 2 and ks % 2 == 0:
                mm(f"v_mfma_f32_16x16x32_bf16 {vr(cs+4*jj,4)}, {vr(ones,4)}, {vr(slot,4)}, {'0' if ks == 0 else vr(cs+4*jj,4)}")
        PF = opt("pf", 5)
        def cx(ks, T): return C_X + ((ks % 3)*2 + T)*4
        def rdA(m):
            ks, jj = divmod(m, 4); st, kk = divmod(ks, 2)
            slot = C_RING + (m % CNR)*4
            off = soff(st); ad = (C_WA1 if kk else V_WA) + jj
            pend.append((("w", m), f"ds_read_b64_tr_b16 {vr(slot,2)}, v{ad} offset:{off}"))
            pend.append((("w", m), f"ds_read_b64_tr_b16 {vr(slot+2,2)}, v{ad} offset:{off+512}"))
        def rdX(ks):
            st, kk = divmod(ks, 2)
            for T in range(2):
                pend.append((("x", ks), f"ds_read_b128 {vr(cx(ks,T),4)}, v{V_XA+kk} offset:{soff(st) + T*2048}"))
        def issue(m):
            if m >= 64: return
            if m % 8 == 0:
                pop(99)
                if m in (24, 40):
                    op = "v_add_u32" if m == 24 else "v_subrev_u32"
                    for r_ in [V_WA+q for q in range(6)] + [C_WA1+q for q in range(4)]: e(f"{op} v{r_}, {K1_WB}, v{r_}")
                if m: stamp(m // 8, 1)
                e("s_barrier")
                if m: stamp(m // 8, 2)
            if m % 4 == 0: rdX(m // 4)
            rdA(m)
        for m in range(PF): issue(m); pop(99)
        stamp(2)
        for m in range(64):
            ks, jj = divmod(m, 4)
            issue(m + PF)
            need([("w", m), ("x", ks)])
            slot = C_RING + (m % CNR)*4
            mfma(jj, ks, slot, cx)
            cs_mma(jj, ks, slot, C_CS, V_E)
            if jj == 3: mfma(8, ks, C_GEN + 4*ks, cx)
        assert not pend
        stamp(3)
        e(f"v_add_u32 v{t+1}, s63, v15")
        cs_add(C_CS, 0)
        e("s_waitcnt lgkmcnt(0)")
        e("s_barrier")
        stamp(1)
        def rd_S(S, mean=True):
            r = [f"v_add_u32 v{t+4}, s63, v{V_ZG}"]
            for T in range(2):
                if mean: r.append(f"ds_read_b128 {vr(S+8*T,4)}, v{t+4} offset:{512+64*T}")
                r.append(f"ds_read_b128 {vr(S+8*T+4,4)}, v{t+4} offset:{1024+64*T}")
            return r
        def rd_R():
            return [f"v_add_u32 v{t+1}, s63, v15"] + [f"ds_read_b32 v{R+2*q}, v{t+1} offset:{512*(1+(q&1)) + 64*(q>>1)}" for q in range(4)]
        def rd_cb(jp, CB):
            base = t + 6 + (jp & 1)
            r = [f"v_xor_b32 v{t+7}, 0x80, v{t+6}" if jp & 1 else f"v_xor_b32 v{t+6}, s79, v{V_ZG}"]
            for hh in range(2):
                r.append(f"ds_read_b128 {vr(CB+4*hh,4)}, v{base} offset:{64*(2*(jp&2)+hh)}")
                r.append(f"ds_read_b128 {vr(CB+8+4*hh,4)}, v{base} offset:{1536+64*(2*(jp&2)+hh)}")
            return r
        def rd_cs(off):
            r = [f"v_xor_b32 v{t+7}, 0x80, v10"]
            return r + [f"ds_read_b32 v{R+j}, v{t+7 if j > 1 else 10} offset:{off + 64*(j&1)}" for j in range(4)]
        def ffn_pair(j0, so, CB, O):
            if so: e("s_add_u32 s60, s60, s65"); e("s_add_u32 s61, s61, s65")
            for T in range(2):
                o = O + T*12
                for hh in range(2):
                    for k in range(2):
                        e(f"v_pk_fma_f32 {vr(o+4*hh+2*k,2)}, {vr(R+4*T,2)}, {vr(CB+4*hh+2*k,2)}, {vr(CB+8+4*hh+2*k,2)} op_sel_hi:[0,1,1] neg_lo:[1,0,0] neg_hi:[1,0,0]")
                for hh in range(2):
                    for k in range(2):
                        e(f"v_pk_fma_f32 {vr(o+4*hh+2*k,2)}, {vr(R+4*T+2,2)}, {vr(acc(j0+hh,T)+2*k,2)}, {vr(o+4*hh+2*k,2)} op_sel_hi:[0,1,1]")
                for k in range(8): e(f"v_mul_f32 v{o+k}, v{o+k}, |v{o+k}|")
                for k in range(4): e(f"v_cvt_pk_bf16_f32 v{o+8+k}, v{o+2*k}, v{o+2*k+1}")
                for k in range(4): e(f"v_pk_max_i16 v{o+8+k}, v{o+8+k}, 0")
                e(f"buffer_store_dwordx4 {vr(o+8,4)}, v{V_L16}, s[36:39], s{60+T} offen{fl(ST_H2)}")
        def xstore(tagj, vaddr, vdata):
            e("s_cmp_eq_u32 s76, 0")
            e(f"s_cbranch_scc1 K1_NOX_{tagj}")
            e("s_mov_b64 exec, s[76:77]")
            e(f"buffer_store_dword v{vdata}, v{vaddr}, s[36:39], 0 offen")
            e("s_mov_b64 exec, -1")
            lab(f"K1_NOX_{tagj}")
        def transpose4(o):
            nop(2)
            e(f"v_permlane32_swap_b32 v{o}, v{o+2}")
            e(f"v_permlane32_swap_b32 v{o+1}, v{o+3}")
            nop(2)
            e(f"v_permlane16_swap_b32 v{o}, v{o+1}")
            e(f"v_permlane16_swap_b32 v{o+2}, v{o+3}")
        def dft_pair(j0, S, CS, W):
            PL = W; MI = W + 2; VV = W + 4; o = W + 12
            for hh in range(2):
                j = j0 + hh
                for T in range(2):
                    a_ = acc(j, T)
                    for k in range(4): e(f"v_fma_f32 v{VV+k}, -v{S+8*T+k}, v{CS+hh}, v{a_+k}")
                    for k in range(4): e(f"v_mul_f32 v{VV+k}, v{VV+k}, v{S+8*T+4+k}")
                    e(f"v_add_f32 v{VV+4}, v{VV}, v{VV+1}")
                    e(f"v_add_f32 v{VV+5}, v{VV+2}, v{VV+3}")
                    e(f"v_add_f32 v{PL+T}, v{VV+4}, v{VV+5}")
                    e(f"v_sub_f32 v{MI+T}, v{VV+4}, v{VV+5}")
                    if T == 0:
                        e(f"v_sub_f32 v{VV+6}, v{VV}, v{VV+1}")
                        e(f"v_cndmask_b32 v{PL}, v{PL}, v{VV+4}, s[76:77]")
                        e(f"v_cndmask_b32 v{MI}, v{MI}, v{VV+6}, s[76:77]")
                        xstore(f"{tag}_{j}", 14, VV+5)
                        e(f"v_add_u32 v14, 64, v14")
                e(f"v_cvt_pk_bf16_f32 v{o+2*hh}, v{PL}, v{PL+1}")
                e(f"v_cvt_pk_bf16_f32 v{o+2*hh+1}, v{MI}, v{MI+1}")
            transpose4(o)
            e(f"buffer_store_dwordx4 {vr(o,4)}, v{V_ATO}, s[36:39], s67 offen{fl(ST_AT)}")
            e("s_lshl_b32 s66, s65, 5")
            e("s_add_u32 s67, s67, s66")
        def gen_tile(S, W):
            PL = W; MI = W + 2; VV = W + 4; o = W + 12
            e(f"v_lshl_add_u32 v{t}, s53, 4, v{V_I}")
            e(f"v_cmp_eq_u32 vcc, 0, v{t}")
            e("s_lshl_b32 s66, s53, 14")
            e(f"s_add_u32 s66, s66, {3*ASTR:#x}")
            e(f"v_mov_b32 v{t+2}, {ASTR:#x}")
            e(f"v_mul_lo_u32 v{t+2}, v{t+2}, v{V_G}")
            e(f"v_sub_u32 v{t+1}, s66, v{t+2}")
            e(f"v_add_u32 v{t+2}, {16*16384:#x}, v{t+2}")
            e(f"v_cndmask_b32 v{t+1}, v{t+1}, v{t+2}, vcc")
            e(f"v_lshl_add_u32 v{t+1}, v{V_I}, 4, v{t+1}")
            e(f"v_mov_b32 v{t+2}, -1.0")
            e(f"v_cndmask_b32 v{t+2}, v{t+2}, 1.0, vcc")
            e(f"v_add_u32 v{t+6}, 288, v{t}")
            e(f"v_mov_b32 v{t+7}, 0x100")
            e(f"v_cndmask_b32 v{t+6}, v{t+6}, v{t+7}, vcc")
            e(f"v_lshlrev_b32 v{t+6}, 2, v{t+6}")
            e(f"v_add_u32 v{t+6}, {WS_X512:#x}, v{t+6}")
            for T in range(2):
                a_ = acc(8, T)
                for k in range(4): e(f"v_mul_f32 v{VV+k}, v{a_+k}, v{S+8*T+4+k}")
                e(f"v_fma_f32 v{VV+4}, v{t+2}, v{VV+1}, v{VV}")
                e(f"v_fma_f32 v{VV+5}, v{t+2}, v{VV+3}, v{VV+2}")
                e(f"v_add_f32 v{PL+T}, v{VV+4}, v{VV+5}")
                e(f"v_sub_f32 v{MI+T}, v{VV+4}, v{VV+5}")
                if T == 0:
                    e(f"v_sub_f32 v{VV+6}, v{VV}, v{VV+1}")
                    e(f"v_cndmask_b32 v{VV+6}, 0, v{VV+6}, vcc")
                    e(f"v_cndmask_b32 v{VV+7}, 0, v{VV+4}, vcc")
                    e(f"v_cndmask_b32 v{PL}, v{PL}, v{VV+7}, s[76:77]")
                    e(f"v_cndmask_b32 v{MI}, v{MI}, v{VV+6}, s[76:77]")
                    xstore(f"{tag}_g", t+6, VV+5)
            e(f"v_cvt_pk_bf16_f32 v{o}, v{PL}, v{PL+1}")
            e(f"v_cvt_pk_bf16_f32 v{o+1}, v{MI}, v{MI+1}")
            transpose4(o)
            e("s_mov_b32 exec_hi, 0")
            e(f"buffer_store_dwordx4 {vr(o,4)}, v{t+1}, s[36:39], s64 offen{fl(ST_AT)}")
            e("s_mov_b32 exec_hi, -1")
        B1 = V_ACC + 40
        B9 = opt("b9", 1)
        def b9(pos):
            pass
        if ffn:
            for x in rd_R()[1:] + rd_cb(0, V_E) + rd_cb(1, B1) + rd_S(C_GEN, mean=False): e(x)
            e("s_waitcnt lgkmcnt(6)")
            e(f"v_mul_f32 v{R}, v{R}, v{R+2}")
            e(f"v_mul_f32 v{R+4}, v{R+4}, v{R+6}")
            ffn_pair(0, 0, V_E, V_RING)
            e("s_waitcnt lgkmcnt(0)")
            b9(1)
            ffn_pair(2, 1024, B1, C_X)
            b9(2)
            gen_tile(C_GEN, C_GEN + 16)
        else:
            for x in rd_S(V_E): e(x)
            for x in rd_cs(0): e(x)
            e("s_waitcnt lgkmcnt(0)")
            dft_pair(0, V_E, R, V_RING)
            b9(1)
            dft_pair(2, V_E, R+2, B1)
            b9(2)
            gen_tile(V_E, C_GEN)
        b9(3)
        stamp(4)
        if PROF: e("s_waitcnt vmcnt(0)")
        stamp(7)
        prof_end(0, 1)
        e("s_endpgm")
        lab(f"K1_PB_{tag}")
        VQ[:] = VQ_B8
        seq = [(ks, jj) for ks in range(8) for jj in range(4)] + [(ks, jj) for ks in range(8, 16) for jj in range(2)] \
            + [(ks, jj) for ks in range(8, 16) for jj in range(2, 4)]
        assert NP1 in (4, 8)
        def bslot(m):
            k = m % 9
            return V_RING + 4*k if k < 6 else V_WO + 4*(k - 6)
        def rdB(m):
            ks, jj = seq[m]
            slot = bslot(m)
            off = ((ks >> 1) % 4)*8192; ad = (V_XO if ks & 1 else V_WA) + jj
            pend.append((("w", m), f"ds_read_b64_tr_b16 {vr(slot,2)}, v{ad} offset:{off}"))
            pend.append((("w", m), f"ds_read_b64_tr_b16 {vr(slot+2,2)}, v{ad} offset:{off+512}"))
        def issueB(m):
            if m >= 64: return
            if m == 32:
                pop(99)
                for r_ in [V_WA+q for q in range(4)] + [V_XO+q for q in range(4)]: e(f"v_subrev_u32 v{r_}, {K1_SP - K1_WB}, v{r_}")
                if NP1 == 4:
                    stamp(5)
                    spin(0)
            rdB(m)
        def arrive(c):
            pop(99)
            e(f"v_mov_b32 v{t+2}, {K1_Z}"); e(f"v_mov_b32 v{t+3}, 1")
            e("s_mov_b64 exec, 1")
            e(f"ds_add_u32 v{t+2}, v{t+3} offset:{2048 + 64*c}"); Q.append(("a", c))
            e("s_mov_b64 exec, -1")
            assert len(Q) <= 15
        def spin(c):
            e("s_waitcnt lgkmcnt(8)")
            lab(f"K1_SPIN_{tag}_{c}")
            e(f"ds_read_b32 v{t+3}, v{t+2} offset:{2048 + 64*c}")
            e("s_waitcnt lgkmcnt(0)"); Q.clear()
            e(f"v_readfirstlane_b32 s72, v{t+3}")
            e("s_cmp_lt_u32 s72, 4")
            e(f"s_cbranch_scc1 K1_SPIN_{tag}_{c}")
        def capture(f):
            n0 = len(L); f(); cap = L[n0:]; del L[n0:]
            units = []; inside = False
            for x in cap:
                if inside: units[-1].append(x)
                else: units.append([x])
                if "s_cmp_eq_u32 s76, 0" in x: inside = True
                if x.startswith("K1_NOX"): inside = False
            return units
        Q.clear()
        PB = opt("pb", 7)
        for m in range(PB): issueB(m)
        pop(99)
        units = []
        for m in range(64):
            ks, jj = seq[m]
            if m == opt("a0", 18) and NP1 == 4:
                need([("w", m)])
                vwait(("wb", 7))
                arrive(0)
            if m == 47:
                pop(99); need([("w", m + 2)])
                cs_add(V_CS, 256); Q.extend([("a", 1)] * 2)
                arrive(1)
            if m == 49:
                pop(99); need([("w", m + 3)]); assert len(Q) <= 11
                for x in (rd_R() if ffn else rd_S(V_E)):
                    e(x)
                    if x.startswith("ds_"): Q.append(("c", 0))
                stamp(6)
                spin(1)
            if m == 49 or (m == 60 and ffn):
                for x in (rd_cb(3, V_X) if m == 60 else rd_cb(2, V_E) if ffn else rd_cs(256)):
                    e(x)
                    if x.startswith("ds_"): Q.append(("c", 0))
            issueB(m + PB)
            if m == 52:
                need([("c", 0)])
                if ffn:
                    e(f"v_mul_f32 v{R}, v{R}, v{R+2}")
                    e(f"v_mul_f32 v{R+4}, v{R+4}, v{R+6}")
                    units = capture(lambda: ffn_pair(4, 0, V_E, V_X + 16))
                else: units = capture(lambda: dft_pair(4, V_E, R, V_X + 16))
                per = (len(units) + 11) // 12
            need([("w", m)])
            slot = bslot(m)
            mfma(4 + jj, ks, slot, xreg)
            cs_mma(jj, ks, slot, V_CS, V_ONES)
            for u in units[:per if units else 0]: L.extend(u)
            del units[:per if units else 0]
        assert not pend and not units
        e("s_waitcnt lgkmcnt(0)")
        nop(6)
        if ffn: ffn_pair(6, 1024, V_X, V_X + 40)
        else: dft_pair(6, V_E, R+2, V_X + 40)
        if PROF: e("s_waitcnt vmcnt(0)")
        stamp(7)
        prof_end(0, 1)
        e("s_endpgm")
    variant("F", True)
    variant("D", False)
    lab("K1_END")
    e("s_endpgm")

PP = 272
K2_F = 0
K2_D = 3 * 64 * PP
DP = 208
DARR = 17 * DP
K2_LDS = K2_D + 4 * DARR

def gen_k2():
    DEPTH = opt("depth", 8); DD = opt("ddepth", 8); MAP2 = opt("map2", 0)
    lab("k2_kernel")
    e("s_cmp_ge_u32 s2, 256")
    e("s_cbranch_scc1 K2_END")
    prof_begin(); stamp(0)
    load_ptrs()
    V_LANE, V_I, V_G = 1, 2, 3
    V_L16 = 4
    V_XO = 5
    V_XV = 6
    V_B2 = 14
    V_OA = 22
    t = 30
    V_ACC = 48
    V_ST = 120
    e("v_lshrrev_b32 v1, 6, v0")
    e("v_and_b32 v2, 15, v0")
    e("v_readfirstlane_b32 s54, v1")
    e(f"v_and_b32 v{V_LANE}, 63, v0")
    e(f"v_lshrrev_b32 v{V_G}, 4, v{V_LANE}")
    e(f"v_lshlrev_b32 v{V_L16}, 4, v{V_LANE}")
    code_warm("K2", 1, t)
    e("s_waitcnt lgkmcnt(0)")
    srd(36, 28, WS_SIZE)
    if opt("dyn", 0):
        e(f"v_mov_b32 v{t+2}, 0")
        e("s_getreg_b32 s40, hwreg(HW_REG_XCC_ID)")
        e("s_cmp_eq_u32 s54, 0")
        e("s_cbranch_scc0 K2_TPRE")
        e("s_mov_b32 s41, 0")
        e("s_mov_b64 exec, 1")
        lab("K2_TLOOP")
        e("s_and_b32 s40, s40, 7")
        e("s_lshl_b32 s42, s40, 8")
        e(f"s_add_u32 s42, s42, {WS_CNT:#x}")
        e(f"v_mov_b32 v{t}, s42")
        e(f"v_mov_b32 v{t+1}, 1")
        e(f"buffer_atomic_add v{t+1}, v{t}, s[36:39], 0 offen sc0 sc1")
        e("s_waitcnt vmcnt(0)")
        e(f"v_readfirstlane_b32 s42, v{t+1}")
        e("s_lshl_b32 s43, s42, 3")
        e("s_or_b32 s43, s43, s40")
        e("s_cmp_lt_u32 s42, 32")
        e("s_cbranch_scc1 K2_TDONE")
        e("s_add_u32 s40, s40, 1")
        e("s_add_u32 s41, s41, 1")
        e("s_cmp_lt_u32 s41, 8")
        e("s_cbranch_scc1 K2_TLOOP")
        e("s_mov_b32 s43, 0x100")
        lab("K2_TDONE")
        e(f"v_mov_b32 v{t+1}, s43")
        e(f"ds_write_b32 v{t+2}, v{t+1}")
        e("s_mov_b64 exec, -1")
        e("s_waitcnt lgkmcnt(0)")
        e("s_branch K2_TWAIT")
        lab("K2_TPRE")
        NW, NH = opt("pw", 0), opt("ph", 0)
        e("s_sub_u32 s41, s54, 1")
        e("s_mul_i32 s41, s41, 19456")
        e("s_lshr_b32 s42, s2, 3")
        if MAP2 == 0:
            e("s_mov_b32 s43, s42")
            e("s_and_b32 s44, s40, 6"); e("s_lshl_b32 s44, s44, 4")
            e("s_bfe_u32 s45, s42, 0x20002"); e("s_lshl_b32 s45, s45, 3"); e("s_add_u32 s44, s44, s45")
            e("s_lshr_b32 s46, s42, 4")
            wh, hh = 0, 1
        else:
            e("s_and_b32 s43, s42, 7"); e("s_and_b32 s45, s40, 2"); e("s_lshl_b32 s45, s45, 2"); e("s_add_u32 s43, s43, s45")
            e("s_sub_u32 s45, 31, s43"); e("s_bitcmp1_b32 s42, 3"); e("s_cselect_b32 s43, s45, s43")
            e("s_and_b32 s44, s40, 4"); e("s_lshl_b32 s44, s44, 4")
            e("s_lshr_b32 s45, s42, 2"); e("s_lshl_b32 s45, s45, 3"); e("s_add_u32 s44, s44, s45")
            e("s_lshr_b32 s46, s42, 4")
            wh, hh = 1, 0
        e("s_and_b32 s45, s40, 1"); e("s_lshl_b32 s45, s45, 2"); e("s_add_u32 s44, s44, s45")
        e("s_and_b32 s45, s42, 3"); e("s_add_u32 s44, s44, s45")
        e(f"s_mul_i32 s43, s43, {TILE_B}"); e("s_add_u32 s43, s43, s41"); e(f"s_add_u32 s43, s43, {WS_W2:#x}")
        e(f"s_mul_i32 s44, s44, {TILE_B}"); e("s_add_u32 s44, s44, s41")
        if MAP2: NW, NH = NH, NW
        e(f"s_mul_i32 s46, s46, {1024*(NW if wh else NH)}")
        e(f"s_add_u32 s{43 if wh else 44}, s{43 if wh else 44}, s46")
        for q in range(max(NW, NH)):
            if q == 4 or q == 8: e("s_add_u32 s43, s43, 0x1000"); e("s_add_u32 s44, s44, 0x1000")
            if q < NW: e(f"buffer_load_dwordx4 {vr(V_ACC,4)}, v{V_L16}, s[36:39], s43 offen offset:{1024*(q%4)}")
            if q < NH: e(f"buffer_load_dwordx4 {vr(V_ACC+4,4)}, v{V_L16}, s[36:39], s44 offen offset:{1024*(q%4)}")
        lab("K2_TWAIT")
        e("s_barrier")
        e(f"ds_read_b32 v{t+1}, v{t+2}")
        e("s_waitcnt lgkmcnt(0)")
        e(f"v_readfirstlane_b32 s2, v{t+1}")
        e("s_cmp_ge_u32 s2, 256")
        e("s_cbranch_scc1 K2_END")
    e("s_and_b32 s56, s2, 1")
    if MAP2 == 0:
        e("s_and_b32 s52, s2, 6")
        e("s_lshl_b32 s52, s52, 1")
        e("s_bfe_u32 s55, s2, 0x20003")
        e("s_add_u32 s52, s52, s55")
        e("s_lshr_b32 s53, s2, 5")
    else:
        e("s_and_b32 s52, s2, 4")
        e("s_lshl_b32 s52, s52, 1")
        e("s_bfe_u32 s55, s2, 0x30003")
        e("s_add_u32 s52, s52, s55")
        e("s_and_b32 s53, s2, 2")
        e("s_lshl_b32 s53, s53, 1")
        e("s_lshr_b32 s55, s2, 6")
        e("s_add_u32 s53, s53, s55")
    e("s_lshl_b32 s57, s52, 5")
    e("s_add_u32 s57, s57, s56")
    e("s_cmp_eq_u32 s54, 3")
    e("s_cbranch_scc1 K2_DFT")
    e("s_lshl_b32 s60, s52, 1")
    e("s_add_u32 s60, s60, s56")
    e(f"s_mul_i32 s60, s60, {4*TILE_B}")
    for n in range(4):
        e(f"s_add_u32 s61, s60, {n*TILE_B}")
        e(f"v_add_u32 v{V_OA+4+n}, s61, v{V_L16}")
    e(f"s_mul_i32 s62, s53, {2*TILE_B}")
    e(f"s_add_u32 s61, s62, {WS_W2:#x}")
    e(f"v_add_u32 v{V_OA}, s61, v{V_L16}")
    e(f"v_add_u32 v{V_OA+1}, {TILE_B:#x}, v{V_OA}")
    e(f"s_sub_u32 s61, {WS_W2 + 30*TILE_B:#x}, s62")
    e(f"v_add_u32 v{V_OA+2}, s61, v{V_L16}")
    e(f"v_add_u32 v{V_OA+3}, {TILE_B:#x}, v{V_OA+2}")
    e("s_mul_i32 s68, s54, 19456")
    KR = opt("kr", 1)
    if KR:
        if KR == 1: e("s_and_b32 s69, s2, 7")
        elif KR == 2: e("s_lshr_b32 s69, s2, 5")
        elif KR == 3: e("s_lshr_b32 s69, s2, 5"); e("s_add_u32 s69, s69, s2"); e("s_and_b32 s69, s69, 7")
        elif KR == 4: e("s_lshr_b32 s69, s2, 3"); e("s_add_u32 s69, s69, s2"); e("s_and_b32 s69, s69, 7")
        e(f"s_mul_i32 s69, s69, {opt('krm', 7)*1024}")
        e("s_add_u32 s68, s68, s69")
        e("s_sub_u32 s68, s68, 0x400")
    NS = 19
    def st(s, q):
        k = s % DEPTH
        return vr(V_ST + k*32 + q*4, 4) if k < 4 else ar((k-4)*32 + q*4, 4)
    def ld(s):
        if KR:
            e("s_add_u32 s68, s68, 0x400")
            e(f"s_sub_u32 s69, s68, {56*1024}")
            e(f"s_cmp_ge_u32 s68, {56*1024}")
            e("s_cselect_b32 s68, s69, s68")
        elif s and s % 4 == 0: e("s_add_u32 s68, s68, 0x1000")
        io = 0 if KR else 1024*(s%4)
        for m in range(4):
            e(f"buffer_load_dwordx4 {st(s,m)}, v{V_OA+m}, s[36:39], s68 offen offset:{io}")
            e(f"buffer_load_dwordx4 {st(s,4+m)}, v{V_OA+4+m}, s[36:39], s68 offen offset:{io}")
    def acc(m, n): return V_ACC + (m*4+n)*4
    def mm(s):
        for m in range(4):
            for n in range(4):
                c_ = "0" if s == 0 else vr(acc(m,n),4)
                e(f"v_mfma_f32_16x16x32_bf16 {vr(acc(m,n),4)}, {st(s,m)}, {st(s,4+n)}, {c_}")
    def fin_loads():
        srd(32, 4, 2048*512*2)
        srd(40, 22, 512*2)
        srd(60, 24, 2048*512*2)
        e(f"v_bfe_u32 v{t}, v{V_LANE}, 2, 2")
        quad_consts(t, t+1, t+2, t+3, t+4)
        e("s_lshl_b32 s66, s54, 3")
        e("s_add_u32 s66, s66, s57")
        e(f"v_lshl_add_u32 v{t+4}, v{V_G}, 1, s66")
        e(f"v_mad_i32_i24 v{t+5}, v{t+2}, v{t+4}, v{t+1}")
        e(f"v_cmp_eq_u32 vcc, 0, v{t+4}")
        e(f"v_and_b32 v{t+6}, 3, v{V_LANE}")
        e(f"v_lshlrev_b32 v{t+6}, 4, v{t+6}")
        e(f"v_cndmask_b32 v{t+5}, v{t+5}, v{t+3}, vcc")
        e(f"v_lshl_add_u32 v{V_XO}, v{t+5}, 10, v{t+6}")
        e("s_lshl_b32 s64, s53, 6")
        e(f"s_sub_u32 s65, {480*2}, s64")
        e(f"buffer_load_dwordx4 {vr(V_XV,4)}, v{V_XO}, s[32:35], s64 offen")
        e(f"buffer_load_dwordx4 {vr(V_XV+4,4)}, v{V_XO}, s[32:35], s65 offen")
        e(f"buffer_load_dwordx4 {vr(V_B2,4)}, v{t+6}, s[40:43], s64 offen")
        e(f"buffer_load_dwordx4 {vr(V_B2+4,4)}, v{t+6}, s[40:43], s65 offen")
    for s in range(DEPTH - 1):
        ld(s)
        if s == 1: fin_loads()
    stamp(1)
    for s in range(NS):
        if s == 1: stamp(2)
        if s == 8: stamp(3)
        nl = s + DEPTH - 1
        extra = 4 if s < 2 else 0
        if nl < NS - 1:
            ld(nl); e(f"s_waitcnt vmcnt({min(63, 8*(DEPTH-1) + extra)})")
        elif nl == NS - 1:
            e("s_cmp_eq_u32 s54, 2")
            e("s_cbranch_scc1 K2_W2TAIL")
            ld(nl); e(f"s_waitcnt vmcnt({8*(DEPTH-1)})")
        else:
            e(f"s_waitcnt vmcnt({8*(NS-1-s)})")
        mm(s)
    e("s_branch K2_FFN_DONE")
    lab("K2_W2TAIL")
    for s in range(NS - DEPTH, NS - 1):
        e(f"s_waitcnt vmcnt({8*(NS-2-s)})")
        mm(s)
    lab("K2_FFN_DONE")
    stamp(4)
    e(f"s_mul_i32 s66, s54, {64*PP}")
    e(f"v_mul_u32_u24 v{t}, {PP}, v{V_I}")
    e(f"v_lshl_add_u32 v{t}, v{V_G}, 4, v{t}")
    e(f"v_add_u32 v{t}, s66, v{t}")
    nop(6)
    for m in range(4):
        for n in range(4):
            e(f"ds_write_b128 v{t}, {vr(acc(m,n),4)} offset:{n*16*PP + m*64}")
    e("s_branch K2_FINAL")
    lab("K2_DFT")
    e(f"s_mul_i32 s68, s56, {ASTR:#x}")
    e("s_lshl_b32 s69, s53, 15")
    e("s_add_u32 s68, s68, s69")
    e(f"s_add_u32 s68, s68, {WS_AT:#x}")
    e(f"s_add_u32 s69, s68, {2*ASTR:#x}")
    e(f"v_add_u32 v{V_OA+1}, 0x4000, v{V_L16}")
    e(f"v_lshlrev_b32 v{V_OA+2}, 8, v{V_G}")
    e(f"v_add_u32 v{V_OA+2}, 0x8000, v{V_OA+2}")
    OFF = [V_L16, V_OA+1, V_OA+2]
    def dst(s, q):
        return ar((s % DD)*24 + q*4, 4)
    def dld(s):
        if s and s % 4 == 0:
            e("s_add_u32 s68, s68, 0x1000"); e("s_add_u32 s69, s69, 0x1000")
        for m in range(3):
            e(f"buffer_load_dwordx4 {dst(s,m)}, v{OFF[m]}, s[36:39], s68 offen offset:{1024*(s%4)}")
            e(f"buffer_load_dwordx4 {dst(s,3+m)}, v{OFF[m]}, s[36:39], s69 offen offset:{1024*(s%4)}")
    XA = V_ST; XB = XA + 12; CF = XB + 12
    XR = CF + 4
    TG = XR + 8
    FR = TG + 16
    for s in range(2): dld(s)
    e("s_lshl_b32 s70, s53, 7")
    e(f"s_add_u32 s70, s70, {WS_X512:#x}")
    e(f"v_lshlrev_b32 v{t+7}, 4, v{V_G}")
    for m in range(3):
        e(f"buffer_load_dwordx4 {vr(XA+4*m,4)}, v{t+7}, s[36:39], s70 offen offset:{64*m}")
        e(f"buffer_load_dwordx4 {vr(XB+4*m,4)}, v{t+7}, s[36:39], s70 offen offset:{288*4+64*m}")
    fin_loads()
    for s in range(2, DD - 1): dld(s)
    stamp(1)
    VT = t + 10; VINC = t + 11; VT1 = t + 12; CRE = t + 13; CIM = t + 14
    e(f"v_lshl_add_u32 v{VT}, v{V_I}, 1, s57")
    e(f"v_cvt_f32_u32 v{VT}, v{VT}")
    e(f"v_mul_f32 v{VINC}, 0x3d000000, v{VT}")
    e(f"v_mul_f32 v{VT1}, 0x3a000000, v{VT}")
    e(f"v_mul_f32 v{CRE}, 0x3e800000, v{VT}")
    e(f"v_sin_f32 v{CIM}, -v{CRE}")
    e(f"v_cos_f32 v{CRE}, v{CRE}")
    e(f"v_lshlrev_b32 v{t+8}, 4, v{V_G}")
    def init_args(sp):
        for k in range(8):
            e(f"v_add_u32 v{t+9}, {2*(k>>1) + 8*(k&1) + sp}, v{t+8}")
            e(f"v_cvt_f32_u32 v{t+9}, v{t+9}")
            e(f"v_mul_f32 v{XR+k}, v{t+9}, v{VT1}")
    for k in range(4): e(f"v_mov_b32 v{CF+k}, {'0xbf80bf80' if k & 1 else '0x3f803f80'}")
    def gen(s):
        if s % 8 == 0: init_args(s // 8)
        else:
            for k in range(8): e(f"v_add_f32 v{XR+k}, v{XR+k}, v{VINC}")
        for k in range(8):
            e(f"v_cos_f32 v{TG+k}, v{XR+k}")
            e(f"v_sin_f32 v{TG+8+k}, -v{XR+k}")
        e("s_nop 0")
        f = FR + (s % 2)*8
        for k in range(8): e(f"v_cvt_pk_bf16_f32 v{f+k}, v{TG+2*k}, v{TG+2*k+1}")
    def pacc(ph, sp, m): return V_ACC + ((ph*2+sp)*3+m)*4
    def sacc(ph, m): return V_ACC + 48 + (ph*3+m)*4
    def dmm(s):
        sp, h = divmod(s, 8); f = FR + (s % 2)*8
        for ph in range(2):
            for m in range(3):
                a_ = pacc(ph, sp, m); c_ = "0" if h == 0 else vr(a_, 4)
                e(f"v_mfma_f32_16x16x32_bf16 {vr(a_,4)}, {dst(s,3*ph+m)}, {vr(f+4*ph,4)}, {c_}")
        for m in range(3):
            a_ = sacc(sp, m); c_ = "0" if h == 0 else vr(a_, 4)
            e(f"v_mfma_f32_16x16x32_bf16 {vr(a_,4)}, {dst(s,3*sp+m)}, {vr(CF,4)}, {c_}")
    ND = 16
    gen(0)
    for s in range(ND):
        if s == 1: stamp(2)
        if s == 8: stamp(3)
        nl = s + DD - 1
        if nl < ND: dld(nl)
        if s + 1 < ND: gen(s + 1)
        else: nop(2)
        extra = 10 if s < 2 else 0
        e(f"s_waitcnt vmcnt({min(63, 6*(min(nl, ND-1) - s) + extra)})")
        dmm(s)
    stamp(4)
    e("s_cmp_eq_u32 s53, 0")
    e("s_cselect_b32 s72, 0xffff, 0")
    e("s_mov_b32 s73, 0")
    e("s_cmp_eq_u32 s53, 7")
    e("s_cselect_b32 s74, 0xffff, 0")
    e("s_mov_b32 s75, 0")
    e(f"v_mul_u32_u24 v{t}, {DP}, v{V_I}")
    e(f"v_add3_u32 v{t}, v{t}, v{t+7}, 0")
    e(f"v_add_u32 v{t}, {K2_D}, v{t}")
    nop(6)
    O = TG
    for m in range(3):
        EP, OP, EQ, OQ = pacc(0,0,m), pacc(0,1,m), pacc(1,0,m), pacc(1,1,m)
        o = O + (m % 2)*16
        for k in range(4):
            e(f"v_fma_f32 v{EP+k}, v{CRE}, v{XA+4*m+k}, v{EP+k}")
            e(f"v_fma_f32 v{EQ+k}, v{CIM}, v{XB+4*m+k}, v{EQ+k}")
        if m != 1:
            msk = "s[72:73]" if m == 0 else "s[74:75]"
            e(f"v_cndmask_b32 v{EQ}, v{EQ}, 0, {msk}")
            e(f"v_cndmask_b32 v{OQ}, v{OQ}, 0, {msk}")
            e(f"v_cndmask_b32 v{sacc(1,m)}, v{sacc(1,m)}, 0, {msk}")
        for k in range(4):
            e(f"v_add_f32 v{o+k}, v{EP+k}, v{OP+k}")
            e(f"v_sub_f32 v{o+8+k}, v{EP+k}, v{OP+k}")
            e(f"v_add_f32 v{EP+k}, v{EQ+k}, v{OQ+k}")
            e(f"v_sub_f32 v{OP+k}, v{OQ+k}, v{EQ+k}")
        for k in range(4):
            e(f"v_add_f32 v{o+4+k}, v{o+k}, v{EP+k}")
            e(f"v_sub_f32 v{o+k}, v{o+k}, v{EP+k}")
            e(f"v_add_f32 v{o+12+k}, v{o+8+k}, v{OP+k}")
            e(f"v_sub_f32 v{o+8+k}, v{o+8+k}, v{OP+k}")
        for a in range(4):
            e(f"ds_write_b128 v{t}, {vr(o+4*a,4)} offset:{a*DARR + m*64}")
    for m in range(3):
        for k in range(4):
            e(f"v_add_f32 v{sacc(0,m)+k}, v{sacc(0,m)+k}, v{XA+4*m+k}")
            e(f"v_sub_f32 v{XA+4*m+k}, v{sacc(0,m)+k}, v{sacc(1,m)+k}")
            e(f"v_add_f32 v{sacc(0,m)+k}, v{sacc(0,m)+k}, v{sacc(1,m)+k}")
    e(f"v_cmp_eq_u32 vcc, 0, v{V_I}")
    e("s_and_saveexec_b64 s[76:77], vcc")
    for m in range(3):
        e(f"ds_write_b128 v{t}, {vr(sacc(0,m),4)} offset:{16*DP + m*64}")
        e(f"ds_write_b128 v{t}, {vr(XA+4*m,4)} offset:{DARR + 16*DP + m*64}")
    e("s_mov_b64 exec, s[76:77]")
    lab("K2_FINAL")
    e(f"v_lshrrev_b32 v{t+1}, 2, v{V_LANE}")
    e("s_lshl_b32 s66, s54, 4")
    e(f"v_add_u32 v{t+2}, s66, v{t+1}")
    e(f"v_mul_u32_u24 v{t+2}, {PP}, v{t+2}")
    e(f"v_and_b32 v{t+3}, 3, v{V_LANE}")
    e(f"v_lshl_add_u32 v{t+2}, v{t+3}, 5, v{t+2}")
    e(f"v_and_b32 v{t+4}, 3, v{t+1}")
    e("s_lshl_b32 s66, s54, 2")
    e(f"v_add_u32 v{t+5}, s66, v{V_G}")
    e(f"v_or_b32 v{t+6}, s57, v{t+5}")
    e(f"v_cmp_eq_u32 vcc, 0, v{t+6}")
    e(f"v_lshlrev_b32 v{t+8}, 1, v{t+4}")
    e(f"v_mov_b32 v{t+9}, 0x48")
    e(f"v_lshrrev_b32 v{t+9}, v{t+8}, v{t+9}")
    e(f"v_and_b32 v{t+9}, 3, v{t+9}")
    e(f"v_and_b32 v{t+8}, 2, v{t+4}")
    e(f"v_lshlrev_b32 v{t+8}, 3, v{t+8}")
    e(f"v_cndmask_b32 v{t+4}, v{t+4}, v{t+9}, vcc")
    e(f"v_cndmask_b32 v{t+5}, v{t+5}, v{t+8}, vcc")
    e(f"v_mul_u32_u24 v{t+5}, {DP}, v{t+5}")
    e(f"v_add_u32 v{t+5}, {K2_D}, v{t+5}")
    e(f"v_mov_b32 v{t+8}, {DARR}")
    e(f"v_mad_u32_u24 v{t+6}, v{t+4}, v{t+8}, v{t+5}")
    e(f"v_lshl_add_u32 v{t+6}, v{t+3}, 5, v{t+6}")
    e(f"v_xor_b32 v{t+4}, 1, v{t+4}")
    e(f"v_mad_u32_u24 v{t+5}, v{t+4}, v{t+8}, v{t+5}")
    e(f"v_lshlrev_b32 v{t+3}, 5, v{t+3}")
    e(f"v_sub_u32 v{t+5}, v{t+5}, v{t+3}")
    e("s_waitcnt vmcnt(0) lgkmcnt(0)")
    stamp(5)
    e("s_barrier")
    stamp(6)
    R = V_ACC
    Y = V_ST
    for b in range(2):
        for w in range(3):
            for hh in range(2):
                e(f"ds_read_b128 {vr(R+(b*3+w)*8+4*hh,4)}, v{t+2} offset:{w*64*PP + b*128 + hh*16}")
        if b == 0:
            e(f"ds_read_b128 {vr(Y,4)}, v{t+6}")
            e(f"ds_read_b128 {vr(Y+4,4)}, v{t+6} offset:16")
    e("s_waitcnt lgkmcnt(6)")
    for k in range(8):
        e(f"ds_read_b32 v{Y+8+k}, v{t+5} offset:{(32-k)*4}")
    U = V_ST + 16
    for b in range(2):
        u = U + b*32; p0 = R + b*24
        for k in range(4):
            e(f"v_lshlrev_b32 v{u+2*k}, 16, v{V_B2+4*b+k}")
            e(f"v_and_b32 v{u+2*k+1}, 0xffff0000, v{V_B2+4*b+k}")
        if b == 1: e("s_waitcnt lgkmcnt(8)")
        for k in range(4):
            e(f"v_pk_add_f32 {vr(p0+2*k,2)}, {vr(p0+2*k,2)}, {vr(p0+8+2*k,2)}")
            e(f"v_pk_add_f32 {vr(u+2*k,2)}, {vr(u+2*k,2)}, {vr(p0+16+2*k,2)}")
        for k in range(4):
            e(f"v_pk_add_f32 {vr(u+2*k,2)}, {vr(u+2*k,2)}, {vr(p0+2*k,2)}")
        for k in range(8): e(f"v_mul_f32 v{u+8+k}, 0xbfb8aa3b, v{u+k}")
        for k in range(8): e(f"v_exp_f32 v{u+8+k}, v{u+8+k}")
        for k in range(4):
            e(f"v_lshlrev_b32 v{u+16+2*k}, 16, v{V_XV+4*b+k}")
            e(f"v_and_b32 v{u+16+2*k+1}, 0xffff0000, v{V_XV+4*b+k}")
        for k in range(8): e(f"v_add_f32 v{u+8+k}, 1.0, v{u+8+k}")
        for k in range(8): e(f"v_rcp_f32 v{u+8+k}, v{u+8+k}")
        if b == 1: e("s_waitcnt lgkmcnt(0)")
        else: e("s_nop 0")
        for k in range(4):
            e(f"v_pk_mul_f32 {vr(u+2*k,2)}, {vr(u+2*k,2)}, {vr(u+8+2*k,2)}")
        for k in range(4):
            e(f"v_pk_fma_f32 {vr(u+2*k,2)}, {vr(Y+8*b+2*k,2)}, {vr(u+2*k,2)}, {vr(u+16+2*k,2)}")
        for k in range(4):
            e(f"v_cvt_pk_bf16_f32 v{u+24+k}, v{u+2*k}, v{u+2*k+1}")
        e(f"buffer_store_dwordx4 {vr(u+24,4)}, v{V_XO}, s[60:63], s{64+b} offen{fl(ST_OUT)}")
    if PROF: e("s_waitcnt vmcnt(0)")
    stamp(7)
    prof_end(1, 1)
    lab("K2_END")
    e("s_endpgm")
    lab("CODE_END")

def kd(name, nvgpr, acc_off):
    return f""".amdhsa_kernel {name}
  .amdhsa_next_free_vgpr {nvgpr}
  .amdhsa_next_free_sgpr 102
  .amdhsa_accum_offset {acc_off}
  .amdhsa_group_segment_fixed_size 0
  .amdhsa_kernarg_size 104
  .amdhsa_user_sgpr_count 2
  .amdhsa_user_sgpr_kernarg_segment_ptr 1
  .amdhsa_system_sgpr_workgroup_id_x 1
.end_amdhsa_kernel
"""

def main(out):
    hdr = f"""; FNet (folded real 2-D DFT) * silu(squared-relu FFN) + residual, two launches.
; @launch kernel=k1_kernel grid=(256,1,1) block=(512,1,1) lds={K1_LDS}
; @launch kernel=k2_kernel grid=(256,1,1) block=(256,1,1) lds={K2_LDS}
.amdgcn_target "amdgcn-amd-amdhsa--gfx950"
.text
"""
    body = []
    for nm, fn in (("k1_kernel", gen_k1), ("k2_kernel", gen_k2)):
        L.clear()
        fn()
        body.append(f".globl {nm}\n.p2align 8\n.type {nm},@function\n" + "\n".join(L) + "\n")
    txt = hdr + "".join(body) + '.section .rodata,"a"\n.p2align 6\n' + kd("k1_kernel", 256, 256) + ".p2align 6\n" + kd("k2_kernel", 256 + max(32*(opt("depth", 8)-4), 24*opt("ddepth", 8)), 256)
    open(out, "w").write(txt)

if __name__ == "__main__":
    main(sys.argv[1] if len(sys.argv) > 1 else f"cdna_kernels/{NAME}.s")
```
